```python
import torch

def _softmax(x, axis=-1):
    return torch.softmax(x, dim=axis)
def _gelu(x):
    return torch.nn.functional.gelu(x, approximate="tanh")
def _silu(x):
    return torch.nn.functional.silu(x)
def _sigmoid(x):
    return torch.sigmoid(x)
def _layernorm(x, axis=-1, eps=1e-5):
    m = x.mean(dim=axis, keepdim=True)
    v = x.var(dim=axis, keepdim=True, unbiased=False)
    return (x - m) / torch.sqrt(v + eps)
def _scatter_add(tgt, idx, src, axis=0):
    return tgt.clone().index_add_(axis, idx, src)
def _segment_sum(src, seg, n):
    out = torch.zeros((n,) + src.shape[1:], dtype=src.dtype)
    return out.index_add_(0, seg, src)
def _pad(x, pw):
    flat = tuple(v for pair in reversed(pw) for v in pair)
    return torch.nn.functional.pad(x, flat)

kernel_name = 'sequential_preLN__sliding_block__glu_gated_glu__prompt'

def setup_inputs():

    _w = (lambda a: (lambda t: t.to(torch.bfloat16) if t.is_floating_point() else t)(torch.as_tensor(a)))
    def _A_setup():
        B, S, D = 1, 2048, 576
        return {
            "x": _w((lambda *s: torch.randn(*s, dtype=torch.bfloat16) * 0.05)(B, S, D)),
            "wqkv": _w((lambda *s: torch.randn(*s, dtype=torch.bfloat16) * 0.05)(D, 3 * D)),
            "wo": _w((lambda *s: torch.randn(*s, dtype=torch.bfloat16) * 0.05)(D, D)),
        }
    _A_in = _A_setup()

    def _B_setup():
        B, S, D, F = 1, 2048, 576, 4608
        return {
            "x": _w((lambda *s: torch.randn(*s, dtype=torch.bfloat16) * 0.05)(B, S, D)),
            "w_gate": _w((lambda *s: torch.randn(*s, dtype=torch.bfloat16) * 0.05)(D, F)),
            "w_up": _w((lambda *s: torch.randn(*s, dtype=torch.bfloat16) * 0.05)(D, F)),
            "w_down": _w((lambda *s: torch.randn(*s, dtype=torch.bfloat16) * 0.05)(F, D)),
        }
    _B_in = _B_setup()

    return {
        "A_x": _A_in["x"],
        "A_wqkv": _A_in["wqkv"],
        "A_wo": _A_in["wo"],
        "B_x": _B_in["x"],
        "B_w_gate": _B_in["w_gate"],
        "B_w_up": _B_in["w_up"],
        "B_w_down": _B_in["w_down"],
    }

def reference(A_x, A_wqkv, A_wo, B_x, B_w_gate, B_w_up, B_w_down):
    def _A_ref(x, wqkv, wo):
        B, S, D = x.shape
        H = 32; Dh = D // H; W = 256
        qkv = (lambda x, *d: x.permute(*d))((x @ wqkv).reshape(B, S, 3, H, Dh), 2, 0, 3, 1, 4)
        q, k, v = qkv[0], qkv[1], qkv[2]
        scores = torch.einsum("bhqd,bhkd->bhqk", q, k) * (Dh ** -0.5)
        idx = torch.arange(S)
        mask = (idx[:, None] - idx[None, :] >= 0) & (idx[:, None] - idx[None, :] < W)
        scores = torch.where(mask[None, None], scores, -1e9)
        p = _softmax(scores, axis=-1)
        o = torch.einsum("bhqk,bhkd->bhqd", p, v)
        return (lambda x, *d: x.permute(*d))(o, 0, 2, 1, 3).reshape(B, S, D) @ wo

    def _B_ref(x, w_gate, w_up, w_down):
        g = torch.einsum("bsd,df->bsf", x, w_gate)
        u = torch.einsum("bsd,df->bsf", x, w_up)
        h = _sigmoid(g) * u
        return torch.einsum("bsf,fd->bsd", h, w_down)

    x = A_x
    h = x + _A_ref(_layernorm(x, axis=-1), A_wqkv, A_wo)
    h2 = h + _B_ref(_layernorm(h, axis=-1), B_w_gate, B_w_up, B_w_down)
    return h2
```

```python
import re

_REG_RE = re.compile(r'\b([vas])\[(\d+):(\d+)\]|\b([vas])(\d+)\b|\b(vcc|exec|m0|scc)\b')


def regs_of(op):
    out = []
    for m in _REG_RE.finditer(op):
        if m.group(1):
            out += [(m.group(1), i) for i in range(int(m.group(2)), int(m.group(3)) + 1)]
        elif m.group(4):
            out.append((m.group(4), int(m.group(5))))
        else:
            out.append((m.group(6), 0))
    return out


def split_ops(s):
    ops, depth, cur = [], 0, ''
    for ch in s:
        if ch in '[(':
            depth += 1
        if ch in '])':
            depth -= 1
        if ch == ',' and depth == 0:
            ops.append(cur.strip()); cur = ''
        else:
            cur += ch
    if cur.strip():
        ops.append(cur.strip())
    return ops


TRANS = ('v_exp_f32', 'v_log_f32', 'v_rcp_f32', 'v_rsq_f32', 'v_sqrt_f32', 'v_sin_f32', 'v_cos_f32')


class Ins:
    __slots__ = ('text', 'mn', 'defs', 'uses', 'kind', 'tag', 'optional', 'passes', 'srcc', 'ab', 'need_vm',
                 'need_lgkm', 'nops', 'wide_store', 'is_dpp', 'waitvm_tags', 'waitlgkm_tags', 'comment', 'sdefs')

    def __init__(self, text, tag=None, optional=False):
        self.text = text
        self.tag = tag
        self.optional = optional
        self.need_vm = None
        self.need_lgkm = None
        self.nops = 0
        self.passes = 0
        self.srcc = []
        self.ab = []
        self.wide_store = False
        self.is_dpp = False
        self.waitvm_tags = None
        self.waitlgkm_tags = None
        t = text.split(';')[0].strip()
        if t.endswith(':') or t.startswith('.') or not t:
            self.mn = ''
            self.kind = 'label' if t.endswith(':') else 'dir'
            self.defs, self.uses = [], []
            return
        parts = t.split(None, 1)
        mn = parts[0]
        self.mn = mn
        rest = parts[1] if len(parts) > 1 else ''
        ops = split_ops(rest)
        defs, uses = [], []
        k = 'other'
        if mn.startswith('v_mfma'):
            k = 'mfma'
            defs = regs_of(ops[0])
            self.ab = regs_of(ops[1]) + regs_of(ops[2])
            self.srcc = regs_of(ops[3])
            uses = self.ab + self.srcc
            self.passes = 8 if '32x32x16' in mn else 4
        elif mn.startswith('v_cmp'):
            k = 'valu'
            defs = regs_of(ops[0])
            uses = sum((regs_of(o) for o in ops[1:]), [])
        elif (mn.startswith('v_permlane') and 'swap' in mn) or mn.startswith('v_swap'):
            k = 'valu'
            defs = regs_of(ops[0]) + regs_of(ops[1])
            uses = list(defs)
        elif mn.startswith('v_'):
            k = 'valu'
            defs = regs_of(ops[0])
            srcs = ops[1:]
            if mn.split('_e')[0] in ('v_add_co_u32', 'v_addc_co_u32', 'v_sub_co_u32', 'v_subb_co_u32', 'v_mad_u64_u32'):
                defs += regs_of(ops[1]); srcs = ops[2:]
            uses = sum((regs_of(o) for o in srcs), [])
            if mn.startswith(('v_fmac', 'v_dot2c', 'v_pk_fmac', 'v_writelane')):
                uses += defs
            if '_dpp' in mn or 'row_' in rest or 'quad_perm' in rest:
                self.is_dpp = True
                uses += defs
        elif mn.startswith('ds_read') or mn.startswith('ds_bpermute') or mn.startswith('ds_permute') or mn.startswith('ds_swizzle'):
            k = 'ds'
            defs = regs_of(ops[0])
            uses = sum((regs_of(o) for o in ops[1:]), [])
        elif mn.startswith('ds_'):
            k = 'ds'
            uses = sum((regs_of(o) for o in ops), [])
        elif mn.startswith('buffer_load') or mn.startswith('global_load'):
            k = 'vmem'
            if re.search(r'\blds\b', rest) or 'load_lds' in mn:
                uses = sum((regs_of(o) for o in ops), []) + [('m0', 0)]
                k = 'vmem_lds'
            else:
                defs = regs_of(ops[0])
                uses = sum((regs_of(o) for o in ops[1:]), [])
        elif mn.startswith('buffer_store') or mn.startswith('global_store'):
            k = 'vmem'
            uses = sum((regs_of(o) for o in ops), [])
            if 'x3' in mn or 'x4' in mn:
                self.wide_store = True
                self.srcc = regs_of(ops[0]) if mn.startswith('buffer') else regs_of(ops[1])
        elif mn.startswith('buffer_atomic') or mn.startswith('global_atomic'):
            k = 'vmem'
            uses = sum((regs_of(o) for o in ops), [])
            if re.search(r'\bsc0\b', rest):
                defs = regs_of(ops[0])
        elif mn.startswith('buffer_') or mn.startswith('global_'):
            k = 'vmem'
        elif mn.startswith('s_load') or mn.startswith('s_buffer_load') or mn.startswith('s_memtime') or mn.startswith('s_memrealtime'):
            k = 'smem'
            defs = regs_of(ops[0])
            uses = sum((regs_of(o) for o in ops[1:]), [])
        elif mn in ('s_waitcnt', 's_barrier', 's_nop', 's_endpgm', 's_setprio', 's_sleep', 's_branch') or mn.startswith('s_cbranch'):
            k = 'sctl'
        elif mn.startswith('s_cmp') or mn.startswith('s_bitcmp'):
            k = 'salu'
            uses = sum((regs_of(o) for o in ops), [])
        elif mn.startswith('s_'):
            k = 'salu'
            defs = regs_of(ops[0])
            uses = sum((regs_of(o) for o in ops[1:]), [])
            if 'saveexec' in mn:
                defs += [('exec', 0)]
        else:
            raise ValueError('unknown instruction: ' + text)
        self.kind = k
        self.defs, self.uses = defs, uses


class Kernel:
    def __init__(self, name):
        self.name = name
        self.items = []
        self.nv = 0
        self.na = 0
        self.ns = 0
        self.names = {}
        self._opt = False
        self.extra_kd = []

    def v(self, n=1, align=1, name=None):
        b = (self.nv + align - 1) // align * align
        self.nv = b + n
        return b

    def a(self, n=1, align=1):
        b = (self.na + align - 1) // align * align
        self.na = b + n
        return b

    def s(self, n=1, align=1):
        b = (self.ns + align - 1) // align * align
        self.ns = b + n
        assert self.ns <= 100
        return b

    def e(self, text, tag=None):
        for line in text.strip('\n').split('\n'):
            line = line.strip()
            if not line:
                continue
            self.items.append(Ins(line, tag=tag, optional=self._opt))
        return self

    def opt(self, flag):
        self._opt = flag

    def label(self, l):
        self.items.append(Ins(l + ':'))

    def wait_vm(self, tags):
        i = Ins('s_waitcnt vmcnt(63)', optional=self._opt)
        i.waitvm_tags = set(tags) if not isinstance(tags, str) else {tags}
        self.items.append(i)

    def wait_lgkm_all(self):
        self.e('s_waitcnt lgkmcnt(0)')

    def save_state(self):
        i = Ins('.save'); i.kind = 'save'; self.items.append(i)

    def reset_state(self):
        i = Ins('.restore'); i.kind = 'restore'; self.items.append(i)

    def loop_begin(self, label):
        self.items.append(('loop_begin', label))
        self.label(label)

    def loop_end(self):
        self.items.append(('loop_end',))

    def _trace(self):
        seq, stack = [], []
        out = []
        i = 0
        items = self.items

        def rec(lo, hi):
            j = lo
            while j < hi:
                it = items[j]
                if isinstance(it, tuple) and it[0] == 'loop_begin':
                    depth, k2 = 1, j + 1
                    while depth:
                        t = items[k2]
                        if isinstance(t, tuple):
                            depth += 1 if t[0] == 'loop_begin' else -1
                        k2 += 1
                    for _ in range(3):
                        rec(j + 1, k2 - 1)
                    j = k2
                else:
                    out.append(it)
                    j += 1
        rec(0, len(items))
        return out

    def finalize(self, verbose=False):
        tr = self._trace()
        vm = []
        lg = []
        saved = ([], [])
        for ins in tr:
            if ins.kind in ('label', 'dir'):
                continue
            if ins.kind == 'save':
                saved = (list(vm), list(lg)); continue
            if ins.kind == 'restore':
                vm, lg = list(saved[0]), list(saved[1]); continue
            touched = set(ins.uses) | set(ins.defs)
            if ins.mn == 's_waitcnt' and ins.waitvm_tags is None:
                m = re.search(r'vmcnt\((\d+)\)', ins.text)
                if m and not ins.optional:
                    n = int(m.group(1))
                    cnt = 0; keep = []
                    for o in reversed(vm):
                        if cnt < n:
                            keep.append(o)
                        if not o[2]:
                            cnt += 1
                    vm = list(reversed(keep)) if n else []
                m = re.search(r'lgkmcnt\((\d+)\)', ins.text)
                if m and not ins.optional:
                    n = int(m.group(1))
                    if n == 0:
                        lg = []
                    else:
                        lg = lg[-n:]
                continue
            idx = -1
            for q, o in enumerate(vm):
                if ins.waitvm_tags is not None:
                    if o[1] in ins.waitvm_tags:
                        idx = q
                elif o[0] & touched:
                    idx = q
            if idx >= 0:
                n = sum(1 for o in vm[idx + 1:] if not o[2])
                n = min(n, 63)
                ins.need_vm = n if ins.need_vm is None else min(ins.need_vm, n)
                if not ins.optional:
                    vm = vm[idx + 1:]
            idx = -1
            for q, o in enumerate(lg):
                if o[0] & touched:
                    idx = q
            if idx >= 0:
                if any(o[2] for o in lg):
                    n = 0
                else:
                    n = sum(1 for o in lg[idx + 1:] if not o[1])
                n = min(n, 15)
                ins.need_lgkm = n if ins.need_lgkm is None else min(ins.need_lgkm, n)
                if not ins.optional:
                    lg = lg[len(lg) - n:] if n else []
            if ins.kind in ('vmem', 'vmem_lds'):
                vm.append((set(ins.defs), ins.tag, ins.optional))
            elif ins.kind == 'ds':
                lg.append((set(ins.defs), ins.optional, False))
            elif ins.kind == 'smem':
                lg.append((set(ins.defs), ins.optional, True))
        for _round in range(2):
            hist = []
            pos = 0
            savedh = ([], 0)
            for ins in tr:
                if ins.kind in ('label', 'dir'):
                    continue
                if ins.kind == 'save':
                    savedh = (list(hist), pos); continue
                if ins.kind == 'restore':
                    hist, pos = list(savedh[0]), savedh[1]; continue
                if ins.waitvm_tags is not None and ins.need_vm is None:
                    continue
                extra = 0
                if ins.waitvm_tags is None and (ins.need_vm is not None or ins.need_lgkm is not None):
                    extra = 1
                here = pos + (0 if ins.optional else extra)
                need = 0
                U, D = set(ins.uses), set(ins.defs)
                for (p, ppos) in reversed(hist):
                    dist = here - ppos
                    if dist > 20:
                        break
                    req = 0
                    PD = set(p.defs)
                    if p.kind == 'mfma':
                        big = 12 if p.passes == 8 else 8
                        if ins.kind == 'mfma':
                            if PD & set(ins.ab):
                                req = max(req, big)
                            if PD & set(ins.srcc):
                                if not (ins.srcc == p.defs and ins.passes == p.passes):
                                    req = max(req, big - 2)
                            elif PD & D:
                                req = max(req, big)
                        elif ins.kind in ('valu', 'vmem', 'vmem_lds', 'ds'):
                            if PD & (U | D):
                                req = max(req, big)
                        if ins.kind == 'valu' and set(p.srcc) & D:
                            req = max(req, 7 if p.passes == 8 else 3)
                    elif p.kind == 'valu':
                        vd = {r for r in PD if r[0] in 'va'}
                        sd = {r for r in PD if r[0] in ('s', 'vcc')}
                        if ins.kind == 'mfma' and vd & U:
                            req = max(req, 2)
                        if p.mn.startswith('v_dot') and vd & (U | D):
                            same_c = ins.mn == p.mn and not (vd & set(regs_of(','.join(split_ops(ins.text.split(None,1)[1])[1:3]))))
                            if not same_c:
                                req = max(req, 3)
                        if p.mn.split('_e')[0] in TRANS and vd & U and ins.kind != 'sctl':
                            req = max(req, 1)
                        if ins.kind == 'valu' and sd & U:
                            req = max(req, 4 if ins.mn.startswith(('v_readlane', 'v_writelane')) else 2)
                        if ins.kind in ('vmem', 'vmem_lds') and sd & U:
                            req = max(req, 5)
                        if ins.kind == 'salu' and sd & U:
                            req = max(req, 1)
                        if ins.mn.startswith(('v_readlane', 'v_readfirstlane')) and vd & U:
                            req = max(req, 1)
                        if (ins.mn.startswith('v_permlane') or ins.is_dpp) and vd & U:
                            req = max(req, 2)
                        if ('op_sel' in p.text or 'sdwa' in p.text) and not p.mn.startswith('v_pk') and vd & (U | D):
                            req = max(req, 1)
                    elif p.kind == 'salu':
                        if ('m0', 0) in PD and ins.kind == 'vmem_lds':
                            req = max(req, 1)
                    elif p.kind == 'vmem' and p.wide_store:
                        if set(p.srcc) & D:
                            req = max(req, 2)
                    if req > dist:
                        need = max(need, req - dist)
                if need > ins.nops:
                    ins.nops = need
                adv = ins.nops + extra
                if ins.mn == 's_nop':
                    adv += int(ins.text.split()[1]) + 1
                else:
                    adv += 1
                if not ins.optional:
                    pos += adv
                    hist.append((ins, pos))
                else:
                    hist.append((ins, pos))
                if len(hist) > 64:
                    hist = hist[-40:]
        out = []
        nn = 0
        for it in self.items:
            if isinstance(it, tuple):
                continue
            ins = it
            if ins.kind in ('save', 'restore'):
                continue
            if ins.kind in ('label', 'dir'):
                out.append(ins.text)
                continue
            n = ins.nops
            nn += n
            while n > 0:
                k = min(n, 16)
                out.append(f'    s_nop {k - 1}')
                n -= k
            if ins.waitvm_tags is not None:
                if ins.need_vm is not None:
                    out.append(f'    s_waitcnt vmcnt({ins.need_vm})')
                continue
            w = []
            if ins.need_vm is not None:
                w.append(f'vmcnt({ins.need_vm})')
            if ins.need_lgkm is not None:
                w.append(f'lgkmcnt({ins.need_lgkm})')
            if w:
                out.append('    s_waitcnt ' + ' '.join(w))
            out.append('    ' + ins.text)
        if verbose:
            print(f'[{self.name}] instrs={len(out)} nop_states={nn} vgpr={self.nv} agpr={self.na} sgpr={self.ns}')
        return out

    def text(self, verbose=False):
        body = self.finalize(verbose)
        hdr = [f'.globl {self.name}', '.p2align 8', f'.type {self.name},@function', f'{self.name}:']
        return '\n'.join(hdr + body) + '\n'

    def kd(self, kernarg=80):
        acc = max(4, (self.nv + 3) // 4 * 4)
        assert acc <= 256, f'too many arch vgprs {self.nv}'
        assert self.na <= 256
        nfv = acc + self.na if self.na else self.nv
        return f""".p2align 6
.amdhsa_kernel {self.name}
  .amdhsa_next_free_vgpr {nfv}
  .amdhsa_next_free_sgpr {max(self.ns, 16)}
  .amdhsa_accum_offset {acc}
  .amdhsa_group_segment_fixed_size 0
  .amdhsa_kernarg_size {kernarg}
  .amdhsa_user_sgpr_count 2
  .amdhsa_user_sgpr_kernarg_segment_ptr 1
  .amdhsa_system_sgpr_workgroup_id_x 1
  .amdhsa_float_denorm_mode_32 3
.end_amdhsa_kernel
"""


def R(kind, base, n=1):
    return f'{kind}{base}' if n == 1 else f'{kind}[{base}:{base + n - 1}]'


def V(b, n=1):
    return R('v', b, n)


def A(b, n=1):
    return R('a', b, n)


def S(b, n=1):
    return R('s', b, n)


def interleave(main, side, ratio=None):
    out = []
    nm = len(main)
    ns = len(side)
    j = 0
    for i, m in enumerate(main):
        out.append(m)
        tgt = (i + 1) * ns // nm
        while j < tgt:
            out.append(side[j]); j += 1
    out += side[j:]
    return out


def assemble_file(header_comments, launches, kernels, path):
    s = ''
    for l in header_comments:
        s += l + '\n'
    for (name, grid, block, lds) in launches:
        s += f'; @launch kernel={name} grid=({grid},1,1) block=({block},1,1) lds={lds}\n'
    s += '.amdgcn_target "amdgcn-amd-amdhsa--gfx950"\n.text\n'
    for k in kernels:
        s += k.text(verbose=True)
    s += '.section .rodata,"a"\n'
    for k in kernels:
        s += k.kd()
    open(path, 'w').write(s)
    return s
```

```python
from asmb import *
from layout import *
from k4 import F, bf16_round, LOG2E
from k5 import emit_stamp_dump
from k3 import row_reduce

QSCALE = 18 ** -0.5 * LOG2E


def build_k1(name='k1_kernel', stamps=False, extra=None):
    k = Kernel(name)
    SLOT = 32768
    STL = 4 * SLOT
    k.lds = STL + 2048
    k.ns = 3
    s_x = k.s(4, 4)
    s_ws = k.s(2, 2)
    srdX = k.s(4, 4); srdW = k.s(4, 4); srdS = k.s(4, 4)
    sW = k.s(); sM = k.s(); sN = k.s(); sT = k.s(); sT2 = k.s(); sTW = k.s(); sCW = k.s(); sC64 = k.s()
    sM0 = k.s(); sXo = k.s(); sWo = k.s(); sTmpO = k.s(); sOne = k.s(); sSt = k.s(); sSec = k.s()
    sMask = k.s(8, 2)
    k.nv = 1
    vDx = k.v(); vDw = k.v()
    vT = k.v(4)
    vWa = k.v(8)
    acc = k.v(64, 4)
    tf = k.v(32, 4)
    wf = k.v(32, 4)
    ssum = k.v(2); ssq = k.v(2); csum = k.v(2)
    tmp = k.v(56, 4)
    e = k.e
    sStamp = k.s(24, 2) if stamps else None
    nst = [0]

    def stamp():
        if stamps:
            e(f's_memtime {S(sStamp + 2*nst[0], 2)}'); e('s_waitcnt lgkmcnt(0)'); nst[0] += 1
    e(f'''
    s_cmp_ge_u32 s2, 224
    s_cbranch_scc1 L_{name}_x
    s_load_dwordx4 {S(s_x,4)}, s[0:1], {KA_X}
    s_load_dwordx2 {S(s_ws,2)}, s[0:1], {KA_WS}
    v_lshrrev_b32 {V(tmp)}, 6, v0
    v_and_b32 v0, 63, v0
    v_readfirstlane_b32 {S(sW)}, {V(tmp)}
    s_and_b32 {S(sT)}, s2, 7
    s_lshr_b32 {S(sT2)}, s2, 3
    s_lshl_b32 {S(sM)}, {S(sT)}, 1
    s_and_b32 {S(sT)}, {S(sT2)}, 1
    s_add_u32 {S(sM)}, {S(sM)}, {S(sT)}
    s_lshr_b32 {S(sN)}, {S(sT2)}, 1
    s_lshr_b32 {S(sTW)}, {S(sW)}, 1
    s_and_b32 {S(sCW)}, {S(sW)}, 1
    s_lshl_b32 {S(sC64)}, {S(sN)}, 1
    s_add_u32 {S(sC64)}, {S(sC64)}, {S(sCW)}
    ''')
    stamp()
    if stamps:
        e(f's_memrealtime {S(sStamp+20,2)}')
    e(f'''
    v_lshrrev_b32 {V(tmp)}, 3, v0
    v_mul_u32_u24 {V(vDx)}, 1152, {V(tmp)}
    v_lshrrev_b32 {V(tmp+1)}, 4, v0
    s_lshl_b32 {S(sT)}, {S(sCW)}, 2
    v_add_u32 {V(tmp+2)}, {S(sT)}, {V(tmp+1)}
    v_and_b32 {V(tmp+3)}, 7, v0
    v_xor_b32 {V(tmp+2)}, {V(tmp+2)}, {V(tmp+3)}
    v_lshl_add_u32 {V(vDx)}, {V(tmp+2)}, 4, {V(vDx)}
    v_lshrrev_b32 {V(tmp+2)}, 5, v0
    v_lshlrev_b32 {V(tmp+2)}, 3, {V(tmp+2)}
    v_and_b32 {V(tmp)}, 3, {V(tmp)}
    v_add_u32 {V(tmp+2)}, {V(tmp+2)}, {V(tmp)}
    v_mul_u32_u24 {V(vDw)}, 3456, {V(tmp+2)}
    v_lshlrev_b32 {V(tmp+1)}, 1, {V(tmp+1)}
    v_xor_b32 {V(tmp+1)}, {V(tmp+1)}, {V(tmp+3)}
    v_lshl_add_u32 {V(vDw)}, {V(tmp+1)}, 4, {V(vDw)}
    s_lshl_b32 {S(sM0)}, {S(sW)}, 10
    s_lshl_b32 {S(sT)}, {S(sM)}, 7
    s_lshl_b32 {S(sT2)}, {S(sW)}, 3
    s_add_u32 {S(sT)}, {S(sT)}, {S(sT2)}
    s_mul_i32 {S(sXo)}, {S(sT)}, 1152
    s_lshl_b32 {S(sT)}, {S(sTW)}, 4
    s_lshl_b32 {S(sT2)}, {S(sCW)}, 2
    s_add_u32 {S(sT)}, {S(sT)}, {S(sT2)}
    s_mul_i32 {S(sWo)}, {S(sT)}, 3456
    s_lshl_b32 {S(sT)}, {S(sN)}, 8
    s_add_u32 {S(sWo)}, {S(sWo)}, {S(sT)}
    s_mov_b32 {S(sOne)}, 0x3f803f80
    s_waitcnt lgkmcnt(0)
    s_mov_b32 {S(srdX)}, {S(s_x)}
    s_mov_b32 {S(srdX+1)}, {S(s_x+1)}
    s_mov_b32 {S(srdX+2)}, {2048*1152}
    s_mov_b32 {S(srdX+3)}, 0x00020000
    s_mov_b32 {S(srdW)}, {S(s_x+2)}
    s_mov_b32 {S(srdW+1)}, {S(s_x+3)}
    s_mov_b32 {S(srdW+2)}, {576*3456}
    s_mov_b32 {S(srdW+3)}, 0x00020000
    s_mov_b32 {S(srdS)}, {S(s_ws)}
    s_mov_b32 {S(srdS+1)}, {S(s_ws+1)}
    s_mov_b32 {S(srdS+2)}, {WS_USED}
    s_mov_b32 {S(srdS+3)}, 0x00020000
    ''')

    def dma(St):
        slot = St % 4
        out = []
        for i in range(4):
            out.append([(f's_add_u32 m0, {S(sM0)}, {slot*SLOT + i*4096}', None),
                        (f's_add_u32 {S(sTmpO)}, {S(sXo)}, {i*32*1152 + St*128}', None),
                        (f'buffer_load_dwordx4 {V(vDx)}, {S(srdX,4)}, {S(sTmpO)} offen lds', f'st{St}')])
            out.append([(f's_add_u32 m0, {S(sM0)}, {slot*SLOT + 16384 + i*4096}', None),
                        (f's_add_u32 {S(sTmpO)}, {S(sWo)}, {St*64*3456 + (i&1)*32*3456 + (i>>1)*128}', None),
                        (f'buffer_load_dwordx4 {V(vDw)}, {S(srdW,4)}, {S(sTmpO)} offen lds', f'st{St}')])
        return out

    def emit_group(g):
        for t, tag in g:
            e(t, tag=tag)
    for St in range(2):
        for g in dma(St):
            emit_group(g)
    e(f'''
    v_and_b32 {V(tmp)}, 15, v0
    v_lshrrev_b32 {V(tmp+1)}, 4, v0
    v_lshrrev_b32 {V(tmp+2)}, 1, {V(tmp)}
    v_xor_b32 {V(tmp+2)}, {V(tmp+2)}, {V(tmp+1)}
    v_lshlrev_b32 {V(tmp+3)}, 7, {V(tmp)}
    v_lshl_add_u32 {V(tmp+3)}, {V(tmp+2)}, 4, {V(tmp+3)}
    s_lshl_b32 {S(sT)}, {S(sTW)}, 13
    v_add_u32 {V(vT)}, {S(sT)}, {V(tmp+3)}
    v_add_u32 {V(vT+1)}, {2*SLOT}, {V(vT)}
    v_xor_b32 {V(vT+2)}, 64, {V(vT)}
    v_add_u32 {V(vT+3)}, {2*SLOT}, {V(vT+2)}
    v_lshrrev_b32 {V(tmp+2)}, 5, v0
    v_lshlrev_b32 {V(tmp+2)}, 4, {V(tmp+2)}
    v_bfe_u32 {V(tmp+3)}, v0, 2, 3
    v_add_u32 {V(tmp+2)}, {V(tmp+2)}, {V(tmp+3)}
    v_lshlrev_b32 {V(tmp+2)}, 7, {V(tmp+2)}
    v_and_b32 {V(tmp+4)}, 3, v0
    v_lshl_add_u32 {V(tmp+2)}, {V(tmp+4)}, 3, {V(tmp+2)}
    s_lshl_b32 {S(sT)}, {S(sCW)}, 13
    s_add_u32 {S(sT)}, {S(sT)}, 16384
    v_add_u32 {V(tmp+2)}, {S(sT)}, {V(tmp+2)}
    v_bfe_u32 {V(tmp+3)}, v0, 3, 2
    ''')
    for fb in range(4):
        e(f'v_xor_b32 {V(tmp+4)}, {fb}, {V(tmp+3)}')
        e(f'v_lshl_add_u32 {V(vWa+2*fb)}, {V(tmp+4)}, 5, {V(tmp+2)}')
        e(f'v_add_u32 {V(vWa+2*fb+1)}, {2*SLOT}, {V(vWa+2*fb)}')
    for r in (ssum, ssum + 1, ssq, ssq + 1, csum, csum + 1):
        e(f'v_mov_b32 {V(r)}, 0')
    if extra:
        extra(k, tmp)

    vT2 = k.v(4)
    e(f's_lshl_b32 {S(sT)}, {S(sCW)}, 12')
    e(f's_sub_u32 {S(sT2)}, 4096, {S(sT)}')
    for q in range(4):
        e(f'v_add_u32 {V(vT2+q)}, {S(sT2)}, {V(vT+q)}')
        e(f'v_add_u32 {V(vT+q)}, {S(sT)}, {V(vT+q)}')
    e(f's_cmp_eq_u32 {S(sTW)}, 0')
    e(f's_cbranch_scc1 L_{name}_nosw')
    k.opt(True)
    for q in range(4):
        e(f'v_swap_b32 {V(vWa+q)}, {V(vWa+4+q)}')
    k.opt(False)
    k.label(f'L_{name}_nosw')

    def reads(ks):
        St, s = ks >> 1, ks & 1
        slot = St % 4
        hi = slot >> 1
        o = []
        b = ks % 2
        for i in range(4):
            va = (vT if i < 2 else vT2) + 2 * s + hi
            o.append(f'ds_read_b128 {V(tf+b*16+i*4,4)}, {V(va)} offset:{(slot&1)*SLOT + (i&1)*2048}')
            off = (slot & 1) * SLOT + s * 4096
            o.append(f'ds_read_b64_tr_b16 {V(wf+b*16+i*4,2)}, {V(vWa+2*i+hi)} offset:{off}')
            o.append(f'ds_read_b64_tr_b16 {V(wf+b*16+i*4+2,2)}, {V(vWa+2*i+hi)} offset:{off+1024}')
        return o

    def statops(ks):
        b = ks % 2
        o = []
        for q in range(4):
            for i in range(2):
                r = tf + b * 16 + i * 4 + q
                o.append(f'v_dot2_f32_bf16 {V(ssum+i)}, {V(r)}, {S(sOne)}, {V(ssum+i)}')
                o.append(f'v_dot2_f32_bf16 {V(ssq+i)}, {V(r)}, {V(r)}, {V(ssq+i)}')
                w = wf + b * 16 + i * 4 + q
                o.append(f'v_dot2_f32_bf16 {V(csum+i)}, {V(w)}, {S(sOne)}, {V(csum+i)}')
        return o

    def mainloop(orient):
        pend = dma(2) + dma(3)
        k.wait_vm(['st0'])
        e('s_barrier')
        if orient == 0:
            stamp()
        for o in reads(0):
            e(o)
        for ks in range(18):
            b = ks % 2
            rd = []
            if ks + 1 < 18:
                if (ks + 1) % 2 == 0:
                    St = (ks + 1) // 2
                    assert not any(g[2][1] == f'st{St}' for g in pend)
                    k.wait_vm([f'st{St}'])
                    e('s_waitcnt lgkmcnt(0)')
                    e('s_barrier')
                    if St + 3 < 9:
                        pend += dma(St + 3)
                rd = reads(ks + 1)
            so = statops(ks)
            n = 0
            for i in range(4):
                for j in range(4):
                    a0 = acc + (i * 4 + j) * 4
                    c = '0' if ks == 0 else V(a0, 4)
                    T_, W_ = V(tf + b * 16 + i * 4, 4), V(wf + b * 16 + j * 4, 4)
                    if orient == 0:
                        e(f'v_mfma_f32_16x16x32_bf16 {V(a0,4)}, {W_}, {T_}, {c}')
                    else:
                        e(f'v_mfma_f32_16x16x32_bf16 {V(a0,4)}, {T_}, {W_}, {c}')
                    if rd:
                        e(rd.pop(0))
                    if n >= 4:
                        for _ in range(2):
                            if so:
                                e(so.pop(0))
                    if n % 2 == 1 and pend:
                        emit_group(pend.pop(0))
                    n += 1
            assert not so and not rd
        assert not pend

    def stats_finish():
        t = tmp
        for i in range(2):
            e('\n'.join(row_reduce(ssum + i, t)))
            e('\n'.join(row_reduce(ssq + i, t + 1)))
            e('\n'.join(row_reduce(csum + i, t + 2)))
        for i in range(2):
            m, v = ssum + i, ssq + i
            e(f'v_mul_f32 {V(m)}, {F(1.0/576)}, {V(m)}')
            e(f'v_mul_f32 {V(v)}, {F(1.0/576)}, {V(v)}')
            e(f'v_fma_f32 {V(v)}, -{V(m)}, {V(m)}, {V(v)}')
            e(f'v_max_f32 {V(v)}, 0, {V(v)}')
            e('\n'.join(bf16_round(m, m) + bf16_round(v, v)))
            e(f'v_add_f32 {V(v)}, {F(1e-5)}, {V(v)}')
            e('\n'.join(bf16_round(v, v)))
            e(f'v_sqrt_f32 {V(v)}, {V(v)}')
            e('\n'.join(bf16_round(v, v)))
            e(f'v_rcp_f32 {V(v)}, {V(v)}')
            e(f'v_sub_f32 {V(m)}, 0, {V(m)}')
        e(f'''
        v_and_b32 {V(t)}, 15, v0
        v_lshlrev_b32 {V(t)}, 2, {V(t)}
        s_lshl_b32 {S(sT)}, {S(sTW)}, 8
        s_lshl_b32 {S(sT2)}, {S(sCW)}, 7
        s_add_u32 {S(sT)}, {S(sT)}, {S(sT2)}
        s_add_u32 {S(sT)}, {S(sT)}, {STL}
        v_add_u32 {V(t+1)}, {S(sT)}, {V(t)}
        s_lshl_b32 {S(sT)}, {S(sCW)}, 8
        s_lshl_b32 {S(sT2)}, {S(sTW)}, 7
        s_add_u32 {S(sT)}, {S(sT)}, {S(sT2)}
        s_add_u32 {S(sT)}, {S(sT)}, {STL+1024}
        v_add_u32 {V(t+2)}, {S(sT)}, {V(t)}
        ds_write_b32 {V(t+1)}, {V(ssum)}
        ds_write_b32 {V(t+1)}, {V(ssum+1)} offset:64
        ds_write_b32 {V(t+1)}, {V(ssq)} offset:512
        ds_write_b32 {V(t+1)}, {V(ssq+1)} offset:576
        ds_write_b32 {V(t+2)}, {V(csum)}
        ds_write_b32 {V(t+2)}, {V(csum+1)} offset:64
        s_waitcnt lgkmcnt(0)
        s_barrier
        ''')

    e(f's_cmp_ge_u32 {S(sC64)}, 18')
    e(f's_cbranch_scc1 L_{name}_v')
    k.save_state()
    mainloop(0)
    stamp()
    t = tmp + 40
    e(f'''
    s_cmp_ge_u32 {S(sC64)}, 9
    s_cselect_b32 {S(sSec)}, 9, 0
    s_cselect_b32 {S(sSt)}, {KF}, {QF}
    s_sub_u32 {S(sSec)}, {S(sC64)}, {S(sSec)}
    s_lshl_b32 {S(sSec)}, {S(sSec)}, 4
    s_lshl_b32 {S(sT)}, {S(sM)}, 3
    s_lshl_b32 {S(sT2)}, {S(sTW)}, 2
    s_add_u32 {S(sT)}, {S(sT)}, {S(sT2)}
    s_mul_i32 {S(sT)}, {S(sT)}, 576
    s_add_u32 {S(sSt)}, {S(sSt)}, {S(sT)}
    v_lshrrev_b32 {V(t)}, 4, v0
    v_add_u32 {V(t)}, {S(sSec)}, {V(t)}
    v_and_b32 {V(t+1)}, 15, v0
    s_lshl_b32 {S(sT)}, {S(sTW)}, 3
    ''')
    for j in range(4):
        e(f'''
        s_xor_b32 {S(sT2)}, {S(sT)}, {4*j}
        v_add_u32 {V(t+2)}, {S(sT2)}, {V(t)}
        v_mul_u32_u24 {V(t+3)}, 7282, {V(t+2)}
        v_lshrrev_b32 {V(t+3)}, 16, {V(t+3)}
        v_mul_u32_u24 {V(t+4)}, 9, {V(t+3)}
        v_sub_u32 {V(t+4)}, {V(t+2)}, {V(t+4)}
        v_cmp_lt_u32 vcc, 4, {V(t+4)}
        v_cmp_eq_u32 {S(sMask+2*j,2)}, 4, {V(t+4)}
        v_mul_u32_u24 {V(t+3)}, {2*128*576}, {V(t+3)}
        v_subrev_u32 {V(t+5)}, 5, {V(t+4)}
        v_cndmask_b32 {V(t+4)}, {V(t+4)}, {V(t+5)}, vcc
        v_add_u32 {V(t+5)}, {128*576}, {V(t+3)}
        v_cndmask_b32 {V(t+6)}, {V(t+3)}, {V(t+5)}, vcc
        v_lshrrev_b32 {V(t+7)}, 1, {V(t+4)}
        v_lshl_add_u32 {V(t+6)}, {V(t+7)}, 8, {V(t+6)}
        v_and_b32 {V(t+7)}, 1, {V(t+4)}
        v_lshl_add_u32 {V(t+6)}, {V(t+7)}, 3, {V(t+6)}
        v_lshl_add_u32 {V(t+6)}, {V(t+1)}, 4, {V(t+6)}
        v_lshl_add_u32 {V(t+3)}, {V(t+1)}, 2, {V(t+3)}
        v_add_u32 {V(t+3)}, 512, {V(t+3)}
        v_cndmask_b32 {V(t+8+2*j)}, {V(t+6)}, {V(t+3)}, {S(sMask+2*j,2)}
        v_add_u32 {V(t+9+2*j)}, {128*576}, {V(t+3)}
        ''')
    aQ = t + 8
    stats_finish()
    st = tmp
    e(f'''
    v_and_b32 {V(tf)}, 15, v0
    v_lshlrev_b32 {V(tf)}, 2, {V(tf)}
    s_lshl_b32 {S(sT)}, {S(sTW)}, 8
    s_lshl_b32 {S(sT2)}, {S(sCW)}, 7
    s_add_u32 {S(sT)}, {S(sT)}, {STL}
    s_add_u32 {S(sTmpO)}, {S(sT)}, {S(sT2)}
    v_add_u32 {V(tf+1)}, {S(sTmpO)}, {V(tf)}
    s_sub_u32 {S(sT2)}, 128, {S(sT2)}
    s_add_u32 {S(sTmpO)}, {S(sT)}, {S(sT2)}
    v_add_u32 {V(tf+2)}, {S(sTmpO)}, {V(tf)}
    v_lshrrev_b32 {V(tf)}, 4, v0
    v_lshlrev_b32 {V(tf)}, 4, {V(tf)}
    s_lshl_b32 {S(sT)}, {S(sCW)}, 8
    s_lshl_b32 {S(sT2)}, {S(sTW)}, 7
    s_add_u32 {S(sT)}, {S(sT)}, {STL+1024}
    s_add_u32 {S(sTmpO)}, {S(sT)}, {S(sT2)}
    v_add_u32 {V(tf+3)}, {S(sTmpO)}, {V(tf)}
    s_sub_u32 {S(sT2)}, 128, {S(sT2)}
    s_add_u32 {S(sTmpO)}, {S(sT)}, {S(sT2)}
    v_add_u32 {V(tf+4)}, {S(sTmpO)}, {V(tf)}
    ''')
    for i in range(4):
        va = tf + 1 + (i >> 1)
        e(f'ds_read_b32 {V(st+i)}, {V(va)} offset:{(i&1)*64}')
        e(f'ds_read_b32 {V(st+4+i)}, {V(va)} offset:{512+(i&1)*64}')
    for j in range(4):
        va = tf + 3 + (j >> 1)
        e(f'ds_read_b128 {V(st+8+4*j,4)}, {V(va)} offset:{(j&1)*64}')
    e(f's_cmp_ge_u32 {S(sC64)}, 9')
    e(f's_cselect_b32 {S(sT)}, 1.0, {F(QSCALE)}')
    for i in range(4):
        e(f'v_mul_f32 {V(st+4+i)}, {S(sT)}, {V(st+4+i)}')
    e(f'''
    s_mul_i32 {S(sT)}, {S(sCW)}, {2*576}
    s_add_u32 {S(sXo)}, {S(sSt)}, {S(sT)}
    s_sub_u32 {S(sT)}, {2*576}, {S(sT)}
    s_add_u32 {S(sWo)}, {S(sSt)}, {S(sT)}
    ''')
    for j in range(4):
        for i in range(4):
            a0 = acc + (i * 4 + j) * 4
            for r in range(4):
                e(f'v_fma_f32 {V(a0+r)}, {V(st+8+4*j+r)}, {V(st+i)}, {V(a0+r)}')
            for r in range(4):
                e(f'v_mul_f32 {V(a0+r)}, {V(a0+r)}, {V(st+4+i)}')
            e(f'v_cvt_pk_bf16_f32 {V(a0)}, {V(a0)}, {V(a0+1)}')
            e(f'v_cvt_pk_bf16_f32 {V(a0+1)}, {V(a0+2)}, {V(a0+3)}')
        e(f's_andn2_b64 exec, -1, {S(sMask+2*j,2)}')
        for i in range(4):
            a0 = acc + (i * 4 + j) * 4
            so_ = sXo if i < 2 else sWo
            e(f'buffer_store_dwordx2 {V(a0,2)}, {V(aQ+2*j)}, {S(srdS,4)}, {S(so_)} offen offset:{(i&1)*576}')
        e(f's_mov_b64 exec, {S(sMask+2*j,2)}')
        e(f's_cbranch_execz L_{name}_ns{j}')
        k.opt(True)
        for i in range(4):
            a0 = acc + (i * 4 + j) * 4
            so_ = sXo if i < 2 else sWo
            e(f'buffer_store_dword {V(a0)}, {V(aQ+2*j)}, {S(srdS,4)}, {S(so_)} offen offset:{(i&1)*576}')
            e(f'buffer_store_dword {V(a0+1)}, {V(aQ+2*j+1)}, {S(srdS,4)}, {S(so_)} offen offset:{(i&1)*576}')
        k.opt(False)
        k.label(f'L_{name}_ns{j}')
        e('s_mov_b64 exec, -1')
    if stamps:
        stamp()
        e('s_waitcnt vmcnt(0)')
        stamp()
        emit_stamp_dump(k, e, sStamp, nst, srdW, s_x, sT, sW, tmp)
    e('s_endpgm')

    k.label(f'L_{name}_v')
    k.reset_state()
    mainloop(1)
    t = tmp + 40
    e(f'''
    s_sub_u32 {S(sSec)}, {S(sC64)}, 18
    s_lshl_b32 {S(sSec)}, {S(sSec)}, 6
    v_and_b32 {V(t)}, 15, v0
    v_add_u32 {V(t)}, {S(sSec)}, {V(t)}
    v_lshrrev_b32 {V(t+1)}, 4, v0
    s_lshl_b32 {S(sT)}, {S(sTW)}, 5
    s_lshl_b32 {S(sSt)}, {S(sM)}, 2
    s_lshl_b32 {S(sT2)}, {S(sTW)}, 1
    s_add_u32 {S(sSt)}, {S(sSt)}, {S(sT2)}
    s_add_u32 {S(sXo)}, {S(sSt)}, {S(sCW)}
    s_sub_u32 {S(sWo)}, 1, {S(sCW)}
    s_add_u32 {S(sWo)}, {S(sWo)}, {S(sSt)}
    ''')
    for j in range(4):
        e(f'''
        s_xor_b32 {S(sT2)}, {S(sT)}, {16*j}
        v_add_u32 {V(t+2)}, {S(sT2)}, {V(t)}
        v_mul_u32_u24 {V(t+3)}, 3641, {V(t+2)}
        v_lshrrev_b32 {V(t+3)}, 16, {V(t+3)}
        v_mul_u32_u24 {V(t+4)}, 18, {V(t+3)}
        v_sub_u32 {V(t+4)}, {V(t+2)}, {V(t+4)}
        v_cmp_lt_u32 vcc, 15, {V(t+4)}
        v_lshlrev_b32 {V(t+3)}, 6, {V(t+3)}
        ''')
        for c in range(2):
            sc = sXo if c == 0 else sWo
            e(f'''
            v_add_u32 {V(t+5)}, {S(sc)}, {V(t+3)}
            v_lshlrev_b32 {V(t+6)}, 10, {V(t+5)}
            v_lshl_add_u32 {V(t+6)}, {V(t+1)}, 8, {V(t+6)}
            v_lshl_add_u32 {V(t+6)}, {V(t+4)}, 4, {V(t+6)}
            v_add_u32 {V(t+6)}, {VF}, {V(t+6)}
            v_lshlrev_b32 {V(t+7)}, 7, {V(t+5)}
            v_lshl_add_u32 {V(t+7)}, {V(t+1)}, 5, {V(t+7)}
            v_lshl_add_u32 {V(t+7)}, {V(t+4)}, 4, {V(t+7)}
            v_add_u32 {V(t+7)}, {VT-256}, {V(t+7)}
            v_cndmask_b32 {V(t+8+2*j+c)}, {V(t+6)}, {V(t+7)}, vcc
            ''')
    aV = t + 8
    stats_finish()
    e(f's_cmp_ge_u32 {S(sC64)}, 27')
    e(f's_cbranch_scc1 L_{name}_x')
    st = tmp
    e(f'''
    v_lshrrev_b32 {V(tf)}, 4, v0
    v_lshlrev_b32 {V(tf)}, 4, {V(tf)}
    s_lshl_b32 {S(sT)}, {S(sTW)}, 8
    s_lshl_b32 {S(sT2)}, {S(sCW)}, 7
    s_add_u32 {S(sT)}, {S(sT)}, {STL}
    s_add_u32 {S(sTmpO)}, {S(sT)}, {S(sT2)}
    v_add_u32 {V(tf+1)}, {S(sTmpO)}, {V(tf)}
    s_sub_u32 {S(sT2)}, 128, {S(sT2)}
    s_add_u32 {S(sTmpO)}, {S(sT)}, {S(sT2)}
    v_add_u32 {V(tf+2)}, {S(sTmpO)}, {V(tf)}
    v_and_b32 {V(tf)}, 15, v0
    v_lshlrev_b32 {V(tf)}, 2, {V(tf)}
    s_lshl_b32 {S(sT)}, {S(sCW)}, 8
    s_lshl_b32 {S(sT2)}, {S(sTW)}, 7
    s_add_u32 {S(sT)}, {S(sT)}, {STL+1024}
    s_add_u32 {S(sTmpO)}, {S(sT)}, {S(sT2)}
    v_add_u32 {V(tf+3)}, {S(sTmpO)}, {V(tf)}
    s_sub_u32 {S(sT2)}, 128, {S(sT2)}
    s_add_u32 {S(sTmpO)}, {S(sT)}, {S(sT2)}
    v_add_u32 {V(tf+4)}, {S(sTmpO)}, {V(tf)}
    ''')
    for i in range(4):
        va = tf + 1 + (i >> 1)
        e(f'ds_read_b128 {V(st+4*i,4)}, {V(va)} offset:{(i&1)*64}')
        e(f'ds_read_b128 {V(st+16+4*i,4)}, {V(va)} offset:{512+(i&1)*64}')
    for j in range(4):
        va = tf + 3 + (j >> 1)
        e(f'ds_read_b32 {V(st+32+j)}, {V(va)} offset:{(j&1)*64}')
    for j in range(4):
        for c in range(2):
            pk = wf + (j * 2 + c) * 4
            for hf in range(2):
                i = 2 * c + hf
                a0 = acc + (i * 4 + j) * 4
                for r in range(4):
                    e(f'v_fma_f32 {V(a0+r)}, {V(st+32+j)}, {V(st+4*i+r)}, {V(a0+r)}')
                for r in range(4):
                    e(f'v_mul_f32 {V(a0+r)}, {V(a0+r)}, {V(st+16+4*i+r)}')
                e(f'v_cvt_pk_bf16_f32 {V(pk+2*hf)}, {V(a0)}, {V(a0+1)}')
                e(f'v_cvt_pk_bf16_f32 {V(pk+2*hf+1)}, {V(a0+2)}, {V(a0+3)}')
            e(f'buffer_store_dwordx4 {V(pk,4)}, {V(aV+2*j+c)}, {S(srdS,4)}, 0 offen')
    k.label(f'L_{name}_x')
    e('s_endpgm')
    return k
```

```python
from asmb import *
from layout import *
from k4 import F
from k5 import emit_stamp_dump

NEG_BIG = 0xFF7FFFFF


def row_max(x, t):
    return [f'v_mov_b32 {V(t)}, {V(x)}',
            f'v_permlane16_swap_b32 {V(x)}, {V(t)}',
            f'v_max_f32 {V(x)}, {V(x)}, {V(t)}',
            f'v_mov_b32 {V(t)}, {V(x)}',
            f'v_permlane32_swap_b32 {V(x)}, {V(t)}',
            f'v_max_f32 {V(x)}, {V(x)}, {V(t)}']


def build_k2(name='k2_kernel', stamps=False, colsum=True):
    k = Kernel(name)
    k.lds = 1024
    k.ns = 3
    s_ws = k.s(2, 2)
    s_wg = k.s(4, 4)
    srdS = k.s(4, 4)
    srdW = k.s(4, 4)
    sW = k.s(); sH = k.s(); sQB = k.s(); sT = k.s(); sT2 = k.s()
    sK = k.s(3); sQ = k.s(); sV = k.s(3); sV2 = k.s(); sO = k.s()
    sB = k.s(4)
    k.nv = 1
    vL16 = k.v(); vTail = k.v(); vV2 = k.v()
    vO = k.v(3)
    mdiag = k.v(4, 4); mfirst = k.v(4, 4)
    cq = k.v(12, 4)
    NS = 6
    sb = k.v(NS * 4, 4)
    pb = k.v(8, 4)
    o1 = k.v(4, 4); o2 = k.v(4, 4)
    vm = k.v(2)
    tmp = k.v(8, 4)
    Kf = k.a(80, 4); V1 = k.a(40, 4); V2 = k.a(40, 4); Qf = k.a(16, 4)
    assert (k.nv + 3) // 4 * 4 + k.na <= 256, (k.nv, k.na)
    e = k.e
    sStamp = k.s(24, 2) if stamps else None
    nst = [0]

    def stamp():
        if stamps:
            e(f's_memtime {S(sStamp + 2*nst[0], 2)}'); e('s_waitcnt lgkmcnt(0)'); nst[0] += 1
    e(f'''
    s_cmp_ge_u32 s2, 256
    s_cbranch_scc1 L_{name}_cs
    s_load_dwordx2 {S(s_ws,2)}, s[0:1], {KA_WS}
    v_lshrrev_b32 {V(tmp)}, 6, v0
    v_and_b32 v0, 63, v0
    v_readfirstlane_b32 {S(sW)}, {V(tmp)}
    v_lshlrev_b32 {V(vL16)}, 4, v0
    s_and_b32 {S(sT)}, s2, 7
    s_lshr_b32 {S(sT2)}, s2, 3
    s_lshl_b32 {S(sH)}, {S(sT)}, 2
    s_and_b32 {S(sT)}, {S(sT2)}, 3
    s_add_u32 {S(sH)}, {S(sH)}, {S(sT)}
    s_lshr_b32 {S(sQB)}, {S(sT2)}, 2
    s_lshl_b32 {S(sQB)}, {S(sQB)}, 2
    s_add_u32 {S(sQB)}, {S(sQB)}, {S(sW)}
    ''')
    stamp()
    if stamps:
        e(f's_memrealtime {S(sStamp+20,2)}')
    e(f'''
    s_lshl_b32 {S(sT)}, {S(sH)}, 7
    s_lshl_b32 {S(sT2)}, {S(sQB)}, 2
    s_add_u32 {S(sT)}, {S(sT)}, {S(sT2)}
    s_mul_i32 {S(sQ)}, {S(sT)}, 576
    s_add_u32 {S(sK)}, {S(sQ)}, {KF - 16*576}
    s_add_u32 {S(sK+1)}, {S(sK)}, {7*576}
    s_add_u32 {S(sK+2)}, {S(sK)}, {14*576}
    s_add_u32 {S(sQ)}, {S(sQ)}, {QF}
    s_lshr_b32 {S(sT)}, {S(sT)}, 1
    s_lshl_b32 {S(sV)}, {S(sT)}, 10
    s_add_u32 {S(sV)}, {S(sV)}, {VF - 8*1024}
    s_add_u32 {S(sV+1)}, {S(sV)}, 4096
    s_add_u32 {S(sV+2)}, {S(sV)}, 8192
    s_lshl_b32 {S(sV2)}, {S(sT)}, 7
    s_add_u32 {S(sV2)}, {S(sV2)}, {VT - 8*128}
    s_mul_i32 {S(sO)}, {S(sQB)}, {4*18*1024}
    s_add_u32 {S(sO)}, {S(sO)}, {OF}
    v_lshlrev_b32 {V(vTail)}, 2, v0
    v_add_u32 {V(vTail)}, {512-128}, {V(vTail)}
    v_lshrrev_b32 {V(tmp)}, 4, v0
    v_lshlrev_b32 {V(vV2)}, 5, {V(tmp)}
    v_and_b32 {V(tmp+1)}, 1, v0
    v_lshl_add_u32 {V(vV2)}, {V(tmp+1)}, 4, {V(vV2)}
    ''')
    for gI in range(4):
        e(f's_cmp_ge_u32 {S(sQB)}, {4-gI}')
        e(f's_cselect_b32 {S(sB+gI)}, 0, 0xff7f')
    e(f'v_mov_b32 {V(tmp+2)}, 0')
    e(f'v_mov_b32 {V(tmp+3)}, 0x3f80')
    e(f'v_cmp_gt_u32 vcc, 48, v0')
    e(f'v_cndmask_b32 {V(tmp+3)}, 0, {V(tmp+3)}, vcc')
    for j in range(4):
        e(f'v_accvgpr_write_b32 {A(Qf+4*j)}, {V(tmp+2)}')
        e(f'v_accvgpr_write_b32 {A(Qf+4*j+1)}, {V(tmp+3)}')
        e(f'v_accvgpr_write_b32 {A(Qf+4*j+2)}, {V(tmp+2)}')
        e(f'v_accvgpr_write_b32 {A(Qf+4*j+3)}, {V(tmp+2)}')
    for gI in range(5):
        if gI < 4:
            e(f'v_mov_b32 {V(tmp+3)}, {S(sB+gI)}')
        for i in range(4 * gI, 4 * gI + 4):
            e(f'v_accvgpr_write_b32 {A(Kf+4*i)}, {V(tmp+2)}')
            e(f'v_accvgpr_write_b32 {A(Kf+4*i+1)}, {V(tmp+3 if gI < 4 else tmp+2)}')
            e(f'v_accvgpr_write_b32 {A(Kf+4*i+2)}, {V(tmp+2)}')
            e(f'v_accvgpr_write_b32 {A(Kf+4*i+3)}, {V(tmp+2)}')
    e(f'''
    s_waitcnt lgkmcnt(0)
    s_mov_b32 {S(srdS)}, {S(s_ws)}
    s_mov_b32 {S(srdS+1)}, {S(s_ws+1)}
    s_mov_b32 {S(srdS+2)}, {WS_USED}
    s_mov_b32 {S(srdS+3)}, 0x00020000
    ''')

    def ldK(i, tail):
        so, off = sK + i // 7, (i % 7) * 576
        if tail:
            return f'buffer_load_dword {A(Kf+4*i)}, {V(vTail)}, {S(srdS,4)}, {S(so)} offen offset:{off}'
        return f'buffer_load_dwordx4 {A(Kf+4*i,4)}, {V(vL16)}, {S(srdS,4)}, {S(so)} offen offset:{off}'

    def ldQ(j, tail):
        if tail:
            return f'buffer_load_dword {A(Qf+4*j)}, {V(vTail)}, {S(srdS,4)}, {S(sQ)} offen offset:{j*576}'
        return f'buffer_load_dwordx4 {A(Qf+4*j,4)}, {V(vL16)}, {S(srdS,4)}, {S(sQ)} offen offset:{j*576}'

    def ldV1(c):
        return f'buffer_load_dwordx4 {A(V1+4*c,4)}, {V(vL16)}, {S(srdS,4)}, {S(sV + c//4)} offen offset:{(c%4)*1024}'

    def ldV2(c):
        return f'buffer_load_dwordx4 {A(V2+4*c,4)}, {V(vV2)}, {S(srdS,4)}, {S(sV2)} offen offset:{c*128}'
    EX_LO = 's_mov_b64 exec, 0xffffffff'
    EX_ALL = 's_mov_b64 exec, -1'
    sEx = k.s(4, 2)
    e(f's_mov_b32 {S(sEx)}, 0'); e(f's_mov_b32 {S(sEx+1)}, 0xffff')
    e(f's_mov_b32 {S(sEx+2)}, 0x00030003'); e(f's_mov_b32 {S(sEx+3)}, 0x00030003')
    EX_TAIL = f's_mov_b64 exec, {S(sEx,2)}'
    EX_V2 = f's_mov_b64 exec, {S(sEx+2,2)}'
    e(EX_LO)
    e(ldQ(0, False))
    for i in range(17):
        e(ldK(i, False))
    e(EX_TAIL)
    e(ldQ(0, True))
    for i in range(17):
        e(ldK(i, True))
    e(EX_ALL)
    e(f'v_mov_b32 {V(tmp+3)}, 0x3f803f80')
    for i in range(40):
        e(f'v_accvgpr_write_b32 {A(V2+i)}, {V(tmp+3)}')
    for c in range(9):
        e(ldV1(c))
    e(EX_V2)
    for c in range(9):
        e(ldV2(c))
    e(EX_ALL)
    e(f'''
    v_lshrrev_b32 {V(tmp)}, 4, v0
    v_lshlrev_b32 {V(tmp)}, 2, {V(tmp)}
    v_and_b32 {V(tmp+1)}, 15, v0
    v_mov_b32 {V(tmp+2)}, {hex(NEG_BIG)}
    ''')
    for r in range(4):
        e(f'v_add_u32 {V(tmp+3)}, {r}, {V(tmp)}')
        e(f'v_cmp_gt_u32 vcc, {V(tmp+3)}, {V(tmp+1)}')
        e(f'v_cndmask_b32 {V(mdiag+r)}, 0, {V(tmp+2)}, vcc')
        e(f'v_cndmask_b32 {V(mfirst+r)}, {V(tmp+2)}, {V(tmp+4)}, vcc' if False else f'v_sub_f32 {V(mfirst+r)}, {V(tmp+2)}, {V(mdiag+r)}')
    e(f's_mul_i32 {S(sT)}, {S(sH)}, 18')
    for i in range(3):
        if i < 2:
            e(f'v_add_u32 {V(tmp+3)}, {S(sT)}, {V(tmp)}')
            if i:
                e(f'v_add_u32 {V(tmp+3)}, 2, {V(tmp+3)}')
        else:
            e(f's_add_u32 {S(sT)}, {S(sT)}, 16')
            e(f'v_mov_b32 {V(tmp+3)}, {S(sT)}')
        e(f'''
        v_lshrrev_b32 {V(tmp+4)}, 5, {V(tmp+3)}
        v_lshlrev_b32 {V(vO+i)}, 10, {V(tmp+4)}
        v_bfe_u32 {V(tmp+4)}, {V(tmp+3)}, 2, 2
        v_lshl_add_u32 {V(vO+i)}, {V(tmp+4)}, 8, {V(vO+i)}
        v_lshl_add_u32 {V(vO+i)}, {V(tmp+1)}, 4, {V(vO+i)}
        v_bfe_u32 {V(tmp+4)}, {V(tmp+3)}, 4, 1
        v_lshl_add_u32 {V(vO+i)}, {V(tmp+4)}, 3, {V(vO+i)}
        v_bfe_u32 {V(tmp+4)}, {V(tmp+3)}, 1, 1
        v_lshl_add_u32 {V(vO+i)}, {V(tmp+4)}, 2, {V(vO+i)}
        ''')
    stamp()
    late = [EX_LO] + [ldQ(j, False) for j in (1, 2, 3)] + [ldK(i, False) for i in (17, 18, 19)] + \
           [EX_TAIL] + [ldQ(j, True) for j in (1, 2, 3)] + [ldK(i, True) for i in (17, 18, 19)] + \
           [EX_V2, ldV2(9), EX_ALL, ldV1(9)]

    sidx = [0]

    def pass1(j):
        ops = []
        pendv = []
        for i in range(17):
            b = sb + (sidx[0] % NS) * 4; sidx[0] += 1
            c = V(mfirst, 4) if i == 0 else V(mdiag, 4) if i == 16 else '0'
            ops.append(f'v_mfma_f32_16x16x32_bf16 {V(b,4)}, {A(Kf+4*(j+i),4)}, {A(Qf+4*j,4)}, {c}')
            m = vm + (i & 1)
            if i < 2:
                va = [f'v_max3_f32 {V(m)}, {V(b)}, {V(b+1)}, {V(b+2)}', f'v_max_f32 {V(m)}, {V(m)}, {V(b+3)}']
            else:
                va = [f'v_max3_f32 {V(m)}, {V(m)}, {V(b)}, {V(b+1)}', f'v_max3_f32 {V(m)}, {V(m)}, {V(b+2)}, {V(b+3)}']
            pendv.append(va)
            if len(pendv) > 3:
                ops += pendv.pop(0)
        for va in pendv:
            ops += va
        ops.append(f'v_max_f32 {V(vm)}, {V(vm)}, {V(vm+1)}')
        ops += row_max(vm, tmp)
        for r in range(4):
            ops.append(f'v_sub_f32 {V(cq+r)}, 0, {V(vm)}')
        for r in range(4):
            ops.append(f'v_sub_f32 {V(cq+4+r)}, {V(mdiag+r)}, {V(vm)}')
            ops.append(f'v_sub_f32 {V(cq+8+r)}, {V(mfirst+r)}, {V(vm)}')
        return ops

    def pass2(j):
        ops = []
        c0 = j // 2
        stages = []
        for ci in range(9):
            c = c0 + ci
            sm, va = [], []
            p = pb + (ci % 2) * 4
            for hf in range(2):
                kb = 2 * c + hf
                i = kb - j
                if i < 0 or i > 16:
                    va += [f'v_mov_b32 {V(p+2*hf)}, 0', f'v_mov_b32 {V(p+2*hf+1)}, 0']
                    continue
                b = sb + (sidx[0] % NS) * 4; sidx[0] += 1
                cc = cq + (8 if i == 0 else 4 if i == 16 else 0)
                sm.append(f'v_mfma_f32_16x16x32_bf16 {V(b,4)}, {A(Kf+4*kb,4)}, {A(Qf+4*j,4)}, {V(cc,4)}')
                va += [f'v_exp_f32 {V(b+r)}, {V(b+r)}' for r in range(4)]
                va += [f'v_cvt_pk_bf16_f32 {V(p+2*hf+q)}, {V(b+2*q)}, {V(b+2*q+1)}' for q in range(2)]
            ca = '0' if ci == 0 else V(o1, 4)
            cb = '0' if ci == 0 else V(o2, 4)
            pv = [f'v_mfma_f32_16x16x32_bf16 {V(o1,4)}, {A(V1+4*c,4)}, {V(p,4)}, {ca}',
                  f'v_mfma_f32_16x16x32_bf16 {V(o2,4)}, {A(V2+4*c,4)}, {V(p,4)}, {cb}']
            stages.append((sm, va, pv))
        ops += stages[0][0]
        for ci in range(9):
            if ci + 1 < 9:
                ops += stages[ci + 1][0]
            va = list(stages[ci][1])
            if ci > 0:
                ops += va[:2] + stages[ci - 1][2] + va[2:]
            else:
                ops += va
        ops += ['s_nop 1'] + stages[8][2]
        return ops

    def final(j):
        t = tmp
        ops = [f'v_rcp_f32 {V(t)}, {V(o2+2)}']
        ops += [f'v_mul_f32 {V(o1+r)}, {V(o1+r)}, {V(t)}' for r in range(4)]
        ops += [f'v_mul_f32 {V(o2+r)}, {V(o2+r)}, {V(t)}' for r in range(2)]
        ops += [f'v_cvt_pk_bf16_f32 {V(t+1)}, {V(o1)}, {V(o1+1)}', f'v_cvt_pk_bf16_f32 {V(t+2)}, {V(o1+2)}, {V(o1+3)}',
                f'v_cvt_pk_bf16_f32 {V(t+3)}, {V(o2)}, {V(o2+1)}']
        ops += [f'buffer_store_dword {V(t+1)}, {V(vO)}, {S(srdS,4)}, {S(sO)} offen',
                f'buffer_store_dword {V(t+2)}, {V(vO+1)}, {S(srdS,4)}, {S(sO)} offen',
                's_mov_b64 exec, 0xffff',
                f'buffer_store_dword {V(t+3)}, {V(vO+2)}, {S(srdS,4)}, {S(sO)} offen',
                EX_ALL,
                f's_add_u32 {S(sO)}, {S(sO)}, {18*1024}']
        return ops

    for j in range(4):
        p1 = pass1(j)
        if j == 0:
            e('\n'.join(p1[:12])); e('\n'.join(late)); e('\n'.join(p1[12:]))
        else:
            fin = final(j - 1)
            e('\n'.join(p1[:4])); e('\n'.join(fin)); e('\n'.join(p1[4:]))
        if j == 0:
            stamp()
        e('\n'.join(pass2(j)))
        if j == 0:
            stamp()
    e('\n'.join(final(3)))
    if stamps:
        stamp()
        e('s_waitcnt vmcnt(0)')
        stamp()
        emit_stamp_dump(k, e, sStamp, nst, srdW, s_wg, sT, sW, tmp)
    e('s_endpgm')

    k.label(f'L_{name}_cs')
    if not colsum:
        e('s_endpgm')
        return k
    ld = 4
    e(f'''
    s_sub_u32 {S(sT)}, s2, 256
    s_cmp_ge_u32 {S(sT)}, 144
    s_cbranch_scc1 L_{name}_end
    s_load_dwordx2 {S(s_ws,2)}, s[0:1], {KA_WS}
    s_load_dwordx4 {S(s_wg,4)}, s[0:1], {KA_WG}
    v_lshrrev_b32 v1, 6, v0
    v_and_b32 v0, 63, v0
    v_readfirstlane_b32 {S(sW)}, v1
    s_and_b32 {S(sT2)}, {S(sT)}, 3
    s_mul_i32 {S(sT2)}, {S(sT2)}, 18
    s_lshr_b32 {S(sH)}, {S(sT)}, 3
    s_add_u32 {S(sT2)}, {S(sT2)}, {S(sH)}
    s_bfe_u32 {S(sH)}, {S(sT)}, 0x10002
    v_lshrrev_b32 v1, 3, v0
    v_mul_u32_u24 v1, 9216, v1
    v_and_b32 v2, 7, v0
    v_lshl_add_u32 v1, v2, 4, v1
    s_mul_i32 {S(sQ)}, {S(sW)}, {144*9216}
    s_lshl_b32 {S(sT)}, {S(sT2)}, 7
    s_add_u32 {S(sQ)}, {S(sQ)}, {S(sT)}
    s_waitcnt lgkmcnt(0)
    s_cmp_eq_u32 {S(sH)}, 0
    s_cselect_b32 {S(srdW)}, {S(s_wg)}, {S(s_wg+2)}
    s_cselect_b32 {S(srdW+1)}, {S(s_wg+1)}, {S(s_wg+3)}
    s_mov_b32 {S(srdW+2)}, {576*9216}
    s_mov_b32 {S(srdW+3)}, 0x00020000
    s_mov_b32 {S(srdS)}, {S(s_ws)}
    s_mov_b32 {S(srdS+1)}, {S(s_ws+1)}
    s_mov_b32 {S(srdS+2)}, {WS_USED}
    s_mov_b32 {S(srdS+3)}, 0x00020000
    ''')
    for i in range(18):
        e(f'buffer_load_dwordx4 {A(4*i,4)}, v1, {S(srdW,4)}, {S(sQ)} offen')
        if i < 17:
            e(f's_add_u32 {S(sQ)}, {S(sQ)}, {8*9216}')
    ac = 8
    for q in range(8):
        e(f'v_mov_b32 {V(ac+q)}, 0')
    for i in range(18):
        for q in range(4):
            e(f'v_accvgpr_read_b32 {V(16+q)}, {A(4*i+q)}')
        for q in range(4):
            e(f'v_lshlrev_b32 {V(20+q)}, 16, {V(16+q)}')
            e(f'v_and_b32 {V(16+q)}, 0xffff0000, {V(16+q)}')
        for q in range(4):
            e(f'v_add_f32 {V(ac+2*q)}, {V(ac+2*q)}, {V(20+q)}')
            e(f'v_add_f32 {V(ac+2*q+1)}, {V(ac+2*q+1)}, {V(16+q)}')
    for q in range(8):
        e(f'v_add_f32_dpp {V(16+q)}, {V(ac+q)}, {V(ac+q)} row_ror:8 row_mask:0xf bank_mask:0xf')
    for q in range(8):
        x, t = 16 + q, 24 + q
        e(f'''
        v_mov_b32 {V(t)}, {V(x)}
        v_permlane16_swap_b32 {V(x)}, {V(t)}
        v_add_f32 {V(x)}, {V(x)}, {V(t)}
        v_mov_b32 {V(t)}, {V(x)}
        v_permlane32_swap_b32 {V(x)}, {V(t)}
        v_add_f32 {V(x)}, {V(x)}, {V(t)}
        ''')
    e(f'''
    v_lshlrev_b32 v1, 5, v2
    s_lshl_b32 {S(sT)}, {S(sW)}, 8
    v_add_u32 v1, {S(sT)}, v1
    s_mov_b64 exec, 0xff
    ds_write_b128 v1, v[16:19]
    ds_write_b128 v1, v[20:23] offset:16
    s_mov_b64 exec, -1
    s_waitcnt lgkmcnt(0)
    s_barrier
    s_cmp_lg_u32 {S(sW)}, 0
    s_cbranch_scc1 L_{name}_end
    v_lshlrev_b32 v1, 2, v0
    ds_read_b32 v4, v1
    ds_read_b32 v5, v1 offset:256
    ds_read_b32 v6, v1 offset:512
    ds_read_b32 v7, v1 offset:768
    s_mul_i32 {S(sT)}, {S(sH)}, {4608*4}
    s_lshl_b32 {S(sT2)}, {S(sT2)}, 8
    s_add_u32 {S(sT)}, {S(sT)}, {S(sT2)}
    s_add_u32 {S(sT)}, {S(sT)}, {CS}
    v_add_f32 v4, v4, v5
    v_add_f32 v6, v6, v7
    v_add_f32 v4, v4, v6
    buffer_store_dword v4, v1, {S(srdS,4)}, {S(sT)} offen
    ''')
    k.label(f'L_{name}_end')
    e('s_endpgm')
    return k
```

```python
from asmb import *
from layout import *
from k4 import F
from k5 import emit_stamp_dump


def row_reduce(x, t):
    return [f'v_mov_b32 {V(t)}, {V(x)}',
            f'v_permlane16_swap_b32 {V(x)}, {V(t)}',
            f'v_add_f32 {V(x)}, {V(x)}, {V(t)}',
            f'v_mov_b32 {V(t)}, {V(x)}',
            f'v_permlane32_swap_b32 {V(x)}, {V(t)}',
            f'v_add_f32 {V(x)}, {V(x)}, {V(t)}']


def build_k3(name='k3_kernel', stamps=False, extra=None):
    k = Kernel(name)
    XL = 75 * 1024
    k.lds = XL + 10 * 1024
    k.ns = 3
    s_x = k.s(2, 2); s_wo = k.s(2, 2); s_ws = k.s(2, 2)
    srdW = k.s(4, 4); srdS = k.s(4, 4); srdX = k.s(4, 4); srdH = k.s(4, 4)
    sW = k.s(); sM = k.s(); sN = k.s(); sT = k.s(); sT2 = k.s(); sTb = k.s()
    sM0 = k.s(); sRow = k.s(); sTok = k.s()
    k.nv = 1
    vL16 = k.v(); vDma = k.v(); vX = k.v()
    vA = k.v(4)
    acc = k.v(16, 4)
    wf = k.v(32, 4)
    tmp = k.v(24, 4)
    tok = k.v(72, 4)
    e = k.e
    sStamp = k.s(24, 2) if stamps else None
    nst = [0]

    def stamp():
        if stamps:
            e(f's_memtime {S(sStamp + 2*nst[0], 2)}'); e('s_waitcnt lgkmcnt(0)'); nst[0] += 1
    e(f'''
    s_and_b32 {S(sT)}, s2, 7
    s_lshr_b32 {S(sT2)}, s2, 3
    s_mul_i32 {S(sT)}, {S(sT)}, 30
    s_add_u32 {S(sT)}, {S(sT)}, {S(sT2)}
    s_cmp_ge_u32 s2, 240
    s_cbranch_scc1 L_{name}_x
    s_cmp_ge_u32 {S(sT)}, 234
    s_cbranch_scc1 L_{name}_end
    s_load_dwordx2 {S(s_x,2)}, s[0:1], {KA_X}
    s_load_dwordx2 {S(s_wo,2)}, s[0:1], {KA_WO}
    s_load_dwordx2 {S(s_ws,2)}, s[0:1], {KA_WS}
    v_lshrrev_b32 {V(tmp)}, 6, v0
    v_and_b32 v0, 63, v0
    v_readfirstlane_b32 {S(sW)}, {V(tmp)}
    v_lshlrev_b32 {V(vL16)}, 4, v0
    s_mul_i32 {S(sM)}, {S(sT)}, 7282
    s_lshr_b32 {S(sM)}, {S(sM)}, 16
    s_mul_i32 {S(sT2)}, {S(sM)}, 9
    s_sub_u32 {S(sN)}, {S(sT)}, {S(sT2)}
    ''')
    stamp()
    if stamps:
        e(f's_memrealtime {S(sStamp+20,2)}')
    e(f'''
    v_lshrrev_b32 {V(tmp)}, 3, v0
    v_mul_u32_u24 {V(vDma)}, 1152, {V(tmp)}
    v_lshrrev_b32 {V(tmp)}, 4, v0
    v_lshlrev_b32 {V(tmp)}, 1, {V(tmp)}
    v_and_b32 {V(tmp+1)}, 7, v0
    v_xor_b32 {V(tmp)}, {V(tmp)}, {V(tmp+1)}
    v_lshl_add_u32 {V(vDma)}, {V(tmp)}, 4, {V(vDma)}
    s_lshl_b32 {S(sM0)}, {S(sW)}, 10
    s_mul_i32 {S(sRow)}, {S(sW)}, {8*1152}
    s_lshl_b32 {S(sT)}, {S(sN)}, 7
    s_add_u32 {S(sRow)}, {S(sRow)}, {S(sT)}
    s_mul_i32 {S(sTb)}, {S(sM)}, 5
    s_add_u32 {S(sTb)}, {S(sTb)}, {S(sW)}
    s_mul_i32 {S(sTok)}, {S(sTb)}, {18*1024}
    s_waitcnt lgkmcnt(0)
    s_mov_b32 {S(srdW)}, {S(s_wo)}
    s_mov_b32 {S(srdW+1)}, {S(s_wo+1)}
    s_mov_b32 {S(srdW+2)}, {576*1152}
    s_mov_b32 {S(srdW+3)}, 0x00020000
    s_add_u32 {S(srdS)}, {S(s_ws)}, {OF}
    s_addc_u32 {S(srdS+1)}, {S(s_ws+1)}, 0
    s_mov_b32 {S(srdS+2)}, {128*18*1024}
    s_mov_b32 {S(srdS+3)}, 0x00020000
    s_mov_b32 {S(srdX)}, {S(s_x)}
    s_mov_b32 {S(srdX+1)}, {S(s_x+1)}
    s_mov_b32 {S(srdX+2)}, {2048*1152}
    s_mov_b32 {S(srdX+3)}, 0x00020000
    s_mov_b32 {S(srdH)}, {S(s_ws)}
    s_mov_b32 {S(srdH+1)}, {S(s_ws+1)}
    s_mov_b32 {S(srdH+2)}, {WS_USED}
    s_mov_b32 {S(srdH+3)}, 0x00020000
    ''')
    tb_ = 0
    for c in range(3):
        for i in range(5 * c, 5 * c + 5):
            e(f's_add_u32 m0, {S(sM0)}, {i*5*1024}')
            if i:
                e(f's_add_u32 {S(sRow)}, {S(sRow)}, {5*8*1152}')
            e(f'buffer_load_dwordx4 {V(vDma)}, {S(srdW,4)}, {S(sRow)} offen lds', tag=f'c{c}')
        for ks in range(6 * c, 6 * c + 6):
            if ks % 4 == 0 and ks:
                e(f's_add_u32 {S(sTok)}, {S(sTok)}, 4096')
            e(f'buffer_load_dwordx4 {V(tok+ks*4,4)}, {V(vL16)}, {S(srdS,4)}, {S(sTok)} offen offset:{(ks%4)*1024}')
        if c == 0:
            e(f'''
            v_lshrrev_b32 {V(tmp)}, 2, v0
            v_lshlrev_b32 {V(tmp+1)}, 7, {V(tmp)}
            v_and_b32 {V(tmp+2)}, 3, v0
            v_lshl_add_u32 {V(tmp+1)}, {V(tmp+2)}, 3, {V(tmp+1)}
            v_bfe_u32 {V(tmp+2)}, v0, 3, 2
            ''')
            for fb in range(4):
                e(f'v_xor_b32 {V(tmp+3)}, {fb}, {V(tmp+2)}')
                e(f'v_lshl_add_u32 {V(vA+fb)}, {V(tmp+3)}, 5, {V(tmp+1)}')
    e(f'''
    s_mul_i32 {S(sT)}, {S(sTb)}, {16*1152}
    s_lshl_b32 {S(sT2)}, {S(sN)}, 7
    s_add_u32 {S(sT)}, {S(sT)}, {S(sT2)}
    s_lshl_b32 {S(sT2)}, {S(sW)}, 11
    s_add_u32 m0, {S(sT2)}, {XL}
    ''')
    e(f'buffer_load_dwordx4 {V(vDma)}, {S(srdX,4)}, {S(sT)} offen lds', tag='x')
    e(f's_add_u32 m0, {S(sT2)}, {XL+1024}')
    e(f's_add_u32 {S(sT)}, {S(sT)}, {8*1152}')
    e(f'buffer_load_dwordx4 {V(vDma)}, {S(srdX,4)}, {S(sT)} offen lds', tag='x')
    e(f'''
    v_and_b32 {V(tmp)}, 15, v0
    v_lshlrev_b32 {V(vX)}, 7, {V(tmp)}
    v_lshrrev_b32 {V(tmp+1)}, 4, v0
    v_lshl_add_u32 {V(vX)}, {V(tmp+1)}, 3, {V(vX)}
    v_add_u32 {V(vX)}, {S(sT2)}, {V(vX)}
    v_add_u32 {V(vX)}, {XL}, {V(vX)}
    ''')
    if extra:
        extra(k, tmp)

    def reads(ks):
        o = []
        for fb in range(4):
            b = wf + (ks % 2) * 16 + fb * 4
            hi = ks >= 15
            off = (ks - (15 if hi else 0)) * 4096
            va = (tmp + 4 + fb) if hi else (vA + fb)
            o.append(f'ds_read_b64_tr_b16 {V(b,2)}, {V(va)} offset:{off}')
            o.append(f'ds_read_b64_tr_b16 {V(b+2,2)}, {V(va)} offset:{off+2048}')
        return o
    for fb in range(4):
        e(f'v_add_u32 {V(tmp+4+fb)}, {15*4096}, {V(vA+fb)}')

    k.wait_vm(['c0'])
    e('s_barrier')
    stamp()
    for o in reads(0):
        e(o)
    for ks in range(18):
        rd = []
        if ks + 1 < 18:
            if (ks + 1) % 6 == 0:
                k.wait_vm([f'c{(ks+1)//6}'])
                e('s_barrier')
            rd = reads(ks + 1)
        for fb in range(4):
            for _ in range(2):
                if rd:
                    e(rd.pop(0))
            c = '0' if ks == 0 else V(acc + fb * 4, 4)
            e(f'v_mfma_f32_16x16x32_bf16 {V(acc+fb*4,4)}, {V(wf+(ks%2)*16+fb*4,4)}, {V(tok+ks*4,4)}, {c}')
    stamp()
    k.wait_vm(['x'])
    xr = tmp + 8
    e(f'v_bfe_u32 {V(tmp)}, v0, 1, 2')
    for fb in range(4):
        e(f'v_xor_b32 {V(tmp+1)}, {fb}, {V(tmp)}')
        e(f'v_lshl_add_u32 {V(tmp+1)}, {V(tmp+1)}, 5, {V(vX)}')
        e(f'ds_read_b64 {V(xr+2*fb,2)}, {V(tmp+1)}')
    pk = wf
    xf = wf + 8
    for q in range(8):
        e(f'v_cvt_pk_bf16_f32 {V(pk+q)}, {V(acc+2*q)}, {V(acc+2*q+1)}')
    for q in range(8):
        e(f'v_lshlrev_b32 {V(acc+2*q)}, 16, {V(pk+q)}')
        e(f'v_and_b32 {V(acc+2*q+1)}, 0xffff0000, {V(pk+q)}')
        e(f'v_lshlrev_b32 {V(xf+2*q)}, 16, {V(xr+q)}')
        e(f'v_and_b32 {V(xf+2*q+1)}, 0xffff0000, {V(xr+q)}')
    for q in range(16):
        e(f'v_add_f32 {V(acc+q)}, {V(acc+q)}, {V(xf+q)}')
    for q in range(8):
        e(f'v_cvt_pk_bf16_f32 {V(pk+q)}, {V(acc+2*q)}, {V(acc+2*q+1)}')
    e(f'''
    s_cmp_ge_u32 {S(sTb)}, 128
    s_cbranch_scc1 L_{name}_end
    s_mul_i32 {S(sT)}, {S(sTb)}, 18
    s_lshl_b32 {S(sT2)}, {S(sN)}, 1
    s_add_u32 {S(sT)}, {S(sT)}, {S(sT2)}
    s_lshl_b32 {S(sT)}, {S(sT)}, 10
    s_add_u32 {S(sT)}, {S(sT)}, {HF}
    buffer_store_dwordx4 {V(pk,4)}, {V(vL16)}, {S(srdH,4)}, {S(sT)} offen
    buffer_store_dwordx4 {V(pk+4,4)}, {V(vL16)}, {S(srdH,4)}, {S(sT)} offen offset:1024
    ''')
    for q in range(8):
        e(f'v_lshlrev_b32 {V(acc+2*q)}, 16, {V(pk+q)}')
        e(f'v_and_b32 {V(acc+2*q+1)}, 0xffff0000, {V(pk+q)}')
    sm = tmp + 16
    e(f'v_add_f32 {V(sm)}, {V(acc)}, {V(acc+1)}')
    e(f'v_add_f32 {V(tmp)}, {V(acc+2)}, {V(acc+3)}')
    for q in range(4, 16, 2):
        e(f'v_add_f32 {V(sm)}, {V(sm)}, {V(acc+q)}')
        e(f'v_add_f32 {V(tmp)}, {V(tmp)}, {V(acc+q+1)}')
    e(f'v_add_f32 {V(sm)}, {V(sm)}, {V(tmp)}')
    e('\n'.join(row_reduce(sm, tmp)))
    e(f'v_mul_f32 {V(tmp+1)}, {F(1.0/64)}, {V(sm)}')
    for q in range(16):
        e(f'v_sub_f32 {V(acc+q)}, {V(acc+q)}, {V(tmp+1)}')
    e(f'v_mul_f32 {V(sm+1)}, {V(acc)}, {V(acc)}')
    e(f'v_mul_f32 {V(tmp)}, {V(acc+1)}, {V(acc+1)}')
    for q in range(2, 16, 2):
        e(f'v_fmac_f32 {V(sm+1)}, {V(acc+q)}, {V(acc+q)}')
        e(f'v_fmac_f32 {V(tmp)}, {V(acc+q+1)}, {V(acc+q+1)}')
    e(f'v_add_f32 {V(sm+1)}, {V(sm+1)}, {V(tmp)}')
    e('\n'.join(row_reduce(sm + 1, tmp)))
    e(f'''
    v_lshlrev_b32 {V(tmp)}, 3, v0
    s_lshl_b32 {S(sT)}, {S(sTb)}, 7
    s_lshl_b32 {S(sT2)}, {S(sN)}, 14
    s_add_u32 {S(sT)}, {S(sT)}, {S(sT2)}
    s_add_u32 {S(sT)}, {S(sT)}, {ST}
    s_mov_b64 exec, 0xffff
    buffer_store_dwordx2 {V(sm,2)}, {V(tmp)}, {S(srdH,4)}, {S(sT)} offen
    s_mov_b64 exec, -1
    ''')
    if stamps:
        stamp()
        e('s_waitcnt vmcnt(0)')
        stamp()
        emit_stamp_dump(k, e, sStamp, nst, srdW, s_x, sT, sW, tmp)
    k.label(f'L_{name}_end')
    e('s_endpgm')
    k.label(f'L_{name}_x')
    k.extra_entry = True
    e('s_endpgm')
    return k
```

```python
from asmb import *
from layout import *
import struct

LOG2E = 1.4426950408889634


def F(x):
    return hex(struct.unpack('<I', struct.pack('<f', x))[0])


def bf16_round(dst, src):
    return [f'v_cvt_pk_bf16_f32 {V(dst)}, {V(src)}, {V(src)}', f'v_lshlrev_b32 {V(dst)}, 16, {V(dst)}']


def ln_stats_ops(st, nparts, npart_elems, t0, t1, s_inv, s_n):
    o = []
    so = o.append
    so(f'v_add_f32 {V(t0)}, {V(st)}, {V(st+2)}')
    for nt in range(2, nparts):
        so(f'v_add_f32 {V(t0)}, {V(t0)}, {V(st+2*nt)}')
    so(f'v_mul_f32 {V(t0)}, {F(1.0/576)}, {V(t0)}')
    so(f'v_mov_b32 {V(t1)}, 0')
    for nt in range(nparts):
        so(f'v_fma_f32 {V(st+2*nt)}, {V(st+2*nt)}, {S(s_inv)}, -{V(t0)}')
        so(f'v_mul_f32 {V(st+2*nt)}, {V(st+2*nt)}, {V(st+2*nt)}')
        so(f'v_add_f32 {V(t1)}, {V(t1)}, {V(st+2*nt+1)}')
        so(f'v_fma_f32 {V(t1)}, {V(st+2*nt)}, {S(s_n)}, {V(t1)}')
    so(f'v_mul_f32 {V(t1)}, {F(1.0/576)}, {V(t1)}')
    o += bf16_round(t0, t0)
    o += bf16_round(t1, t1)
    so(f'v_add_f32 {V(t1)}, {F(1e-5)}, {V(t1)}')
    o += bf16_round(t1, t1)
    so(f'v_sqrt_f32 {V(t1)}, {V(t1)}')
    o += bf16_round(t1, t1)
    return o


def build_k4(TAIL=6, WF=6, PF=5, use_pk=False, name='k4_kernel', vm_every=2, pre_stages=2, stamps=False,
             no_mfma=False, no_lds=False, no_store=False, no_vm=False, no_bar=False, prefetch_code=None, no_side=False, rgroup=1, prio=False, rd128=False, wf_v=False, half_reads=False):
    assert not use_pk
    k = Kernel(name)
    NKS = 18
    RING = 8
    PART = RING * 9216
    UOFF = PART
    CSL = 2 * PART
    k.lds = CSL + 2048
    k.ns = 3
    s_wg = k.s(4, 4)
    s_ws = k.s(2, 2)
    srdW = k.s(4, 4)
    srdS = k.s(4, 4)
    sW = k.s(); sPart = k.s(); sJ = k.s(); sM = k.s(); sN = k.s(); sT = k.s(); sT2 = k.s()
    sM8 = k.s(); sM0 = k.s(); sTok0 = k.s(); sTok1 = k.s(); sGrp = k.s(); sSt = k.s(); sSt8 = k.s()
    k.nv = 1
    vL16 = k.v()
    vSt = k.v()
    vCs = k.v()
    acc = k.v(144, 4)
    vA = k.v(4)
    vNegM = k.v(2); vAa = k.v(2); vSs = k.v(2)
    vdma = k.v(3)
    tmp = k.v(20, 4)
    wf = k.v(WF * 4, 4) if wf_v else k.a(WF * 4, 4)
    WR = V if wf_v else A
    ntokA = (256 - ((k.nv + 3) // 4 * 4) - k.na) // 8
    tokA = k.a(ntokA * 8, 4)
    TF = ntokA
    assert (k.nv + 3) // 4 * 4 + k.na <= 256, (k.nv, k.na)

    def ACC(fb, part, tb):
        return acc + ((fb * 2 + part) * 2 + tb) * 4

    main_ks = NKS - TAIL
    tokbuf = {}
    extra = [('v', tmp + 4), ('v', tmp + 12)]
    n_extra = 2
    ring_ks = [ks for ks in range(NKS - n_extra)]
    for i, ks in enumerate(ring_ks):
        tokbuf[ks] = ('a', tokA + (i % TF) * 8)
    for i in range(n_extra):
        tokbuf[NKS - n_extra + i] = extra[i]

    def TOK(ks, tb):
        kind, b = tokbuf[ks]
        return R(kind, b + 4 * tb, 4)

    e = k.e
    sStamp = k.s(24, 2) if stamps else None
    nst = [0]

    def stamp():
        if stamps:
            e(f's_memtime {S(sStamp + 2*nst[0], 2)}'); e('s_waitcnt lgkmcnt(0)'); nst[0] += 1
    e(f'''
    s_cmp_ge_u32 s2, 256
    s_cbranch_scc1 L_{name}_end
    s_load_dwordx4 {S(s_wg,4)}, s[0:1], {KA_WG}
    s_load_dwordx2 {S(s_ws,2)}, s[0:1], {KA_WS}
    v_lshrrev_b32 {V(tmp)}, 6, v0
    v_and_b32 v0, 63, v0
    v_readfirstlane_b32 {S(sW)}, {V(tmp)}
    v_lshlrev_b32 {V(vL16)}, 4, v0
    s_and_b32 {S(sT)}, s2, 7
    s_lshr_b32 {S(sT2)}, s2, 3
    s_lshr_b32 {S(sM)}, {S(sT)}, 2
    s_lshl_b32 {S(sM)}, {S(sM)}, 2
    s_and_b32 {S(sN)}, {S(sT2)}, 3
    s_add_u32 {S(sM)}, {S(sM)}, {S(sN)}
    s_and_b32 {S(sN)}, {S(sT)}, 3
    s_lshl_b32 {S(sN)}, {S(sN)}, 3
    s_lshr_b32 {S(sT2)}, {S(sT2)}, 2
    s_add_u32 {S(sN)}, {S(sN)}, {S(sT2)}
    s_lshr_b32 {S(sPart)}, {S(sW)}, 2
    s_and_b32 {S(sJ)}, {S(sW)}, 3
    ''')
    stamp()
    if stamps:
        e(f's_memrealtime {S(sStamp+20,2)}')
    e(f'''
    s_lshl_b32 {S(sT)}, {S(sJ)}, 6
    v_add_u32 {V(tmp)}, {S(sT)}, v0
    s_lshl_b32 {S(sT)}, {S(sJ)}, 4
    v_add_u32 {V(tmp+3)}, {S(sT)}, v0
    s_mul_i32 {S(sM8)}, {S(sPart)}, {UOFF}
    s_lshl_b32 {S(sT)}, {S(sJ)}, 8
    s_add_u32 {S(sM8)}, {S(sM8)}, {S(sT)}
    s_mul_i32 {S(sGrp)}, {S(sN)}, 288
    s_mul_i32 {S(sM0)}, {S(sPart)}, {UOFF}
    s_lshl_b32 {S(sT)}, {S(sJ)}, 10
    s_add_u32 {S(sM0)}, {S(sM0)}, {S(sT)}
    s_lshl_b32 {S(sT)}, {S(sM)}, 3
    s_add_u32 {S(sT)}, {S(sT)}, {S(sW)}
    s_mul_i32 {S(sTok0)}, {S(sT)}, {36*1024}
    s_add_u32 {S(sTok0)}, {S(sTok0)}, {HF}
    s_add_u32 {S(sTok1)}, {S(sTok0)}, {18*1024}
    s_mul_i32 {S(sSt)}, {S(sT)}, {2*144*1024}
    s_add_u32 {S(sSt)}, {S(sSt)}, {HH}
    s_lshr_b32 {S(sT2)}, {S(sN)}, 1
    s_mul_i32 {S(sT2)}, {S(sT2)}, {9*1024}
    s_add_u32 {S(sSt)}, {S(sSt)}, {S(sT2)}
    s_and_b32 {S(sT2)}, {S(sN)}, 1
    s_lshl_b32 {S(sSt8)}, {S(sT2)}, 3
    s_add_u32 {S(sSt8)}, {S(sSt8)}, {S(sSt)}
    s_add_u32 {S(sSt8)}, {S(sSt8)}, {8*1024}
    s_lshl_b32 {S(sT2)}, {S(sT2)}, 12
    s_add_u32 {S(sSt)}, {S(sSt)}, {S(sT2)}
    ''')

    def dma_voff(i):
        d = vdma + i
        return [f'v_add_u32 {V(tmp+1)}, {256*i}, {V(tmp)}' if i < 2 else f'v_add_u32 {V(tmp+1)}, 512, {V(tmp+3)}',
                f'v_mul_u32_u24 {V(tmp+2)}, 3641, {V(tmp+1)}',
                f'v_lshrrev_b32 {V(tmp+2)}, 16, {V(tmp+2)}',
                f'v_mul_u32_u24 {V(tmp+2)}, {9216-288}, {V(tmp+2)}',
                f'v_lshl_add_u32 {V(d)}, {V(tmp+1)}, 4, {V(tmp+2)}']
    for i in range(3):
        e('\n'.join(dma_voff(i)))
    e(f'''
    s_waitcnt lgkmcnt(0)
    s_cmp_eq_u32 {S(sPart)}, 0
    s_cselect_b32 {S(srdW)}, {S(s_wg)}, {S(s_wg+2)}
    s_cselect_b32 {S(srdW+1)}, {S(s_wg+1)}, {S(s_wg+3)}
    s_mov_b32 {S(srdW+2)}, {576*9216}
    s_mov_b32 {S(srdW+3)}, 0x00020000
    s_mov_b32 {S(srdS)}, {S(s_ws)}
    s_mov_b32 {S(srdS+1)}, {S(s_ws+1)}
    s_mov_b32 {S(srdS+2)}, {WS_USED}
    s_mov_b32 {S(srdS+3)}, 0x00020000
    ''')

    order = [(ks, fb, p) for ks in range(main_ks) for fb in range(9) for p in range(2)]
    groups = [(0, 1), (2, 3), (4, 5), (6, 7), (8,)]
    grp_last = {}
    for gi, g in enumerate(groups):
        for ks in range(main_ks, NKS):
            for fb in g:
                for p in range(2):
                    order.append((ks, fb, p))
        grp_last[gi] = len(order) - 1
    N = len(order)
    first_use, last_use = {}, {}
    for n, (ks, fb, p) in enumerate(order):
        first_use.setdefault(ks, n)
        last_use[ks] = n
    dmas = [dict(G=G, i=i, smin=G, smax=G) for G in range(18) for i in range(3)]
    pend = []
    for d in dmas:
        pend.append((first_use[d['smin']] - PF, 0, 'dma', d))
    for ks in range(NKS):
        for tb in range(2):
            pend.append((first_use[ks], 1 + tb, 'tok', (ks, tb)))
    pend.sort(key=lambda x: (x[0], x[1]))
    barrier_passed = [-1]
    tok_sbase = [0, 0]
    grp_cur = [0]
    voff_done = set(range(3))
    corr_end = [10 ** 9]

    def eligible(p, n):
        if p[2] == 'dma':
            d = p[3]
            return d['smax'] < RING or barrier_passed[0] >= d['smax'] - 6
        ks, tb = p[3]
        if tokbuf[ks][0] == 'v':
            return n > corr_end[0]
        return ks < TF or last_use[ks - TF] < n

    def issue(p):
        if no_vm and not ((p[2] == 'dma' and p[3]['smin'] < 1) or (p[2] == 'tok' and p[3][0] < TF)):
            return
        if p[2] == 'dma':
            d = p[3]
            slot = d['G'] % RING
            if d['i'] < 2:
                e(f's_add_u32 m0, {S(sM0)}, {slot * 9216 + d["i"] * 4096}')
            else:
                e(f's_add_u32 m0, {S(sM8)}, {slot * 9216 + 8192}')
            while grp_cur[0] < d['G']:
                e(f's_add_u32 {S(sGrp)}, {S(sGrp)}, {32*9216}'); grp_cur[0] += 1
            if d['i'] == 2:
                e('s_mov_b64 exec, 0xffff')
            e(f'buffer_load_dwordx4 {V(vdma+d["i"])}, {S(srdW,4)}, {S(sGrp)} offen lds', tag=f'st{d["smin"]}')
            if d['i'] == 2:
                e('s_mov_b64 exec, -1')
        else:
            ks, tb = p[3]
            sT_ = sTok1 if tb else sTok0
            while ks - tok_sbase[tb] >= 4:
                e(f's_add_u32 {S(sT_)}, {S(sT_)}, 4096'); tok_sbase[tb] += 4
            off = (ks - tok_sbase[tb]) * 1024
            e(f'buffer_load_dwordx4 {TOK(ks, tb)}, {V(vL16)}, {S(srdS,4)}, {S(sT_)} offen offset:{off}')

    def pop_issue(n, maxn=1):
        c = 0
        while pend and c < maxn:
            for q, p in enumerate(pend):
                if eligible(p, n):
                    if any(pp[2] == p[2] for pp in pend[:q]):
                        continue
                    issue(p); pend.pop(q); c += 1
                    break
            else:
                break

    npre = sum(1 for p in pend if (p[2] == 'dma' and p[3]['smin'] < pre_stages) or (p[2] == 'tok' and p[3][0] < pre_stages))
    pop_issue(-1, npre)
    e(f'''
    v_lshrrev_b32 {V(tmp+4)}, 2, v0
    v_mul_u32_u24 {V(vA)}, 288, {V(tmp+4)}
    v_and_b32 {V(tmp+5)}, 3, v0
    v_lshl_add_u32 {V(vA)}, {V(tmp+5)}, 3, {V(vA)}
    v_add_u32 {V(vA+1)}, {4*9216}, {V(vA)}
    v_add_u32 {V(vA+2)}, {UOFF}, {V(vA)}
    v_add_u32 {V(vA+3)}, {UOFF+4*9216}, {V(vA)}
    v_lshrrev_b32 {V(tmp+4)}, 4, v0
    v_lshlrev_b32 {V(vCs)}, 4, {V(tmp+4)}
    v_add_u32 {V(vCs)}, {CSL}, {V(vCs)}
    v_add_u32 {V(vSt)}, {144*1024}, {V(vL16)}
    ''')
    e(f'''
    s_mul_i32 {S(sT2)}, {S(sPart)}, {4608*4}
    s_mul_i32 {S(sJ)}, {S(sN)}, {144*4}
    s_add_u32 {S(sT2)}, {S(sT2)}, {S(sJ)}
    s_add_u32 {S(sT2)}, {S(sT2)}, {CS}
    s_lshl_b32 {S(sJ)}, {S(sPart)}, 10
    s_add_u32 m0, {S(sJ)}, {CSL}
    ''')
    e(f'buffer_load_dwordx4 {V(vL16)}, {S(srdS,4)}, {S(sT2)} offen lds', tag='st2')
    e(f'''
    v_and_b32 {V(tmp)}, 31, v0
    v_lshlrev_b32 {V(tmp)}, 3, {V(tmp)}
    s_lshl_b32 {S(sT)}, {S(sT)}, 8
    s_add_u32 {S(sT)}, {S(sT)}, {ST}
    ''')
    for nt in range(9):
        e(f'buffer_load_dwordx2 {V(tmp+2+2*nt,2)}, {V(tmp)}, {S(srdS,4)}, {S(sT)} offen')
        if nt < 8:
            e(f's_add_u32 {S(sT)}, {S(sT)}, 16384')
    if prefetch_code:
        prefetch_code(k, tmp)

    stats_ops = ln_stats_ops(tmp + 2, 9, 64, tmp, tmp + 1, sJ, sT2)
    so = stats_ops.append
    so(f'v_sub_f32 {V(vNegM)}, 0, {V(tmp)}')
    so(f'v_sub_f32 {V(vNegM+1)}, 0, {V(tmp)}')
    so(f'v_mov_b32 {V(vSs)}, {V(tmp+1)}')
    so(f'v_mov_b32 {V(vSs+1)}, {V(tmp+1)}')
    so(f'v_rcp_f32 {V(vAa)}, {V(tmp+1)}')
    so(f'v_mul_f32 {V(vAa)}, {F(-LOG2E)}, {V(vAa)}')
    so(f'v_mov_b32 {V(vAa+1)}, {V(vAa)}')
    for r in (vNegM, vSs, vAa):
        so(f'v_permlane16_swap_b32 {V(r)}, {V(r+1)}')

    def corr_read(fb, p, t):
        return [f'ds_read_b128 {V(t,4)}, {V(vCs)} offset:{fb*64+p*1024}']

    def corr_ops(fb, p, t):
        o = []
        for tb in range(2):
            a0 = ACC(fb, p, tb)
            if use_pk:
                o += [f'v_pk_fma_f32 {V(a0+2*q,2)}, {V(t+2*q,2)}, {V(vNegM+2*tb,2)}, {V(a0+2*q,2)}' for q in range(2)]
            else:
                o += [f'v_fma_f32 {V(a0+q)}, {V(t+q)}, {V(vNegM+tb)}, {V(a0+q)}' for q in range(4)]
        return o

    def epi_ops(gi, tb):
        g = groups[gi]
        o = []
        Gs = [ACC(fb, 0, tb) for fb in g]
        Us = [ACC(fb, 1, tb) for fb in g]
        aa, ss = vAa + tb, vSs + tb
        for G in Gs:
            if use_pk:
                o += [f'v_pk_mul_f32 {V(G+2*q,2)}, {V(G+2*q,2)}, {V(aa,2)}' for q in range(2)]
            else:
                o += [f'v_mul_f32 {V(G+q)}, {V(G+q)}, {V(aa)}' for q in range(4)]
        for G in Gs:
            o += [f'v_exp_f32 {V(G+q)}, {V(G+q)}' for q in range(4)]
        for G in Gs:
            if use_pk:
                o += [f'v_pk_fma_f32 {V(G+2*q,2)}, {V(G+2*q,2)}, {V(ss,2)}, {V(ss,2)}' for q in range(2)]
            else:
                o += [f'v_fma_f32 {V(G+q)}, {V(G+q)}, {V(ss)}, {V(ss)}' for q in range(4)]
        for G in Gs:
            o += [f'v_rcp_f32 {V(G+q)}, {V(G+q)}' for q in range(4)]
        for G, U in zip(Gs, Us):
            if use_pk:
                o += [f'v_pk_mul_f32 {V(U+2*q,2)}, {V(U+2*q,2)}, {V(G+2*q,2)}' for q in range(2)]
            else:
                o += [f'v_mul_f32 {V(U+q)}, {V(U+q)}, {V(G+q)}' for q in range(4)]
        D = Gs[0]
        for bi, U in enumerate(Us):
            o += [f'v_cvt_pk_bf16_f32 {V(D+2*bi+q)}, {V(U+2*q)}, {V(U+2*q+1)}' for q in range(2)]
        va = vSt if tb else vL16
        if not no_store:
            if len(g) == 2:
                o += [f'buffer_store_dwordx4 {V(D,4)}, {V(va)}, {S(srdS,4)}, {S(sSt)} offen offset:{gi*1024}']
            else:
                o += [f'buffer_store_dwordx2 {V(D,2)}, {V(va)}, {S(srdS,4)}, {S(sSt8)} offen']
        return o

    e(f's_mov_b32 {S(sJ)}, {F(1.0/64)}')
    e(f's_mov_b32 {S(sT2)}, {F(64.0)}')

    side = {}

    def spread(ops, n0, n1):
        cnt = n1 - n0
        for i, o in enumerate(ops):
            side.setdefault(n0 + i * cnt // len(ops), []).append(o)
    spread(stats_ops, 18 * 2, 18 * 4)
    ci = 0
    for fb in range(9):
        for p in range(2):
            ks = 4 + ci // 3
            n_m = ks * 18 + fb * 2 + p
            t = tmp + 4 + 4 * (ci % 4)
            spread(corr_read(fb, p, t), n_m - 1, n_m)
            spread(corr_ops(fb, p, t), n_m + 4, n_m + 8)
            corr_end[0] = n_m + 8
            ci += 1
    assert 4 + 17 // 3 < main_ks
    for gi in range(4):
        nd = grp_last[gi]
        span = grp_last[gi + 1] - nd
        ops = epi_ops(gi, 0) + epi_ops(gi, 1)
        spread(ops, nd + 2, nd + max(span, 8))

    def reads(n):
        ks, fb, p = order[n]
        if ks > barrier_passed[0]:
            assert not any(q[2] == 'dma' and q[3]['smin'] <= ks for q in pend), ('dma late', ks)
            k.wait_vm([f'st{s}' for s in range(ks + 1)])
            if not no_bar or ks == 0:
                e('s_barrier')
            barrier_passed[0] = ks
            if ks in (0, 1, 4, 8, main_ks):
                stamp()
        slot = ks % RING
        va = vA + 2 * p + (slot >> 2)
        off = (slot & 3) * 9216 + fb * 32
        b = wf + (n % WF) * 4
        if half_reads and n >= WF and n % 2:
            return
        if not no_lds or n < WF:
            if rd128:
                e(f'ds_read_b128 {WR(b,4)}, {V(vL16)} offset:{(off//1024)*1024}')
            else:
                e(f'ds_read_b64_tr_b16 {WR(b,2)}, {V(va)} offset:{off}')
                e(f'ds_read_b64_tr_b16 {WR(b+2,2)}, {V(va)} offset:{off+4608}')

    for n in range(PF):
        reads(n)
    if prio:
        e(f's_cmp_ge_u32 {S(sW)}, 4')
        e(f's_cbranch_scc0 L_{name}_np')
        e('s_setprio 1')
        k.label(f'L_{name}_np')
    for n in range(N):
        ks, fb, p = order[n]
        if n % rgroup == 0:
            for q in range(rgroup):
                if n + PF + q < N:
                    reads(n + PF + q)
        assert not any(q[2] == 'tok' and q[3][0] <= ks for q in pend), ('tok late', ks)
        ops = side.get(n, []) if not no_side else []
        h = (len(ops) + 1) // 2
        for tb in range(2):
            a0 = ACC(fb, p, tb)
            c = '0' if ks == 0 else V(a0, 4)
            e(f'v_mfma_f32_16x16x32_bf16 {V(a0,4)}, {WR(wf+(n%WF)*4,4)}, {TOK(ks,tb)}, {c}')
            for o in (ops[:h] if tb == 0 else ops[h:]):
                e(o)
        if n % vm_every == 0:
            pop_issue(n + 1, 1)
    for n in sorted(side):
        if n >= N:
            for o in side[n]:
                e(o)
    assert not pend, pend
    stamp()
    for o in interleave(epi_ops(4, 0), epi_ops(4, 1)):
        e(o)
    if stamps:
        stamp()
        e('s_waitcnt vmcnt(0)')
        stamp()
        e(f's_memrealtime {S(sStamp+22,2)}')
        e(f's_load_dwordx2 {S(s_wg,2)}, s[0:1], {KA_OUT}')
        e('s_waitcnt lgkmcnt(0)')
        e(f's_mov_b32 {S(srdW)}, {S(s_wg)}'); e(f's_mov_b32 {S(srdW+1)}, {S(s_wg+1)}')
        e(f's_lshl_b32 {S(sT)}, s2, 3'); e(f's_add_u32 {S(sT)}, {S(sT)}, {S(sW)}'); e(f's_lshl_b32 {S(sT)}, {S(sT)}, 6')
        e(f'v_mov_b32 {V(tmp)}, 0')
        for i in range(12):
            e(f'v_mov_b32 {V(tmp+1)}, {S(sStamp+2*i)}')
            e(f'buffer_store_dword {V(tmp+1)}, {V(tmp)}, {S(srdW,4)}, {S(sT)} offen offset:{4*i}')
            e('s_waitcnt vmcnt(0)')
    k.label(f'L_{name}_end')
    e('s_endpgm')
    return k
```

```python
from asmb import *
from layout import *
from k4 import F


def emit_stamp_dump(k, e, sStamp, nst, srd, sp, sT, sW, vt, nwaves_log2=3):
    e(f's_memrealtime {S(sStamp+22,2)}')
    e(f's_load_dwordx2 {S(sp,2)}, s[0:1], {KA_BX}')
    e('s_waitcnt lgkmcnt(0)')
    e(f's_mov_b32 {S(srd)}, {S(sp)}'); e(f's_mov_b32 {S(srd+1)}, {S(sp+1)}'); e(f's_mov_b32 {S(srd+2)}, 0x100000'); e(f's_mov_b32 {S(srd+3)}, 0x00020000')
    e(f's_lshl_b32 {S(sT)}, s2, 3'); e(f's_add_u32 {S(sT)}, {S(sT)}, {S(sW)}'); e(f's_lshl_b32 {S(sT)}, {S(sT)}, 6')
    e(f'v_mov_b32 {V(vt)}, 0')
    for i in range(12):
        e(f'v_mov_b32 {V(vt+1)}, {S(sStamp+2*i)}')
        e(f'buffer_store_dword {V(vt+1)}, {V(vt)}, {S(srd,4)}, {S(sT)} offen offset:{4*i}')
        e('s_waitcnt vmcnt(0)')


def build_k5(name='k5_kernel', PD=6, RING=8, stamps=False, prefetch_code=None, no_mfma=False):
    k = Kernel(name)
    NKS = 36
    WAVE_LDS = RING * 4096
    assert WAVE_LDS >= 20 * 1088
    HL = 4 * WAVE_LDS
    k.lds = HL + 10 * 1024
    k.ns = 3
    s_wd = k.s(4, 4)
    s_ws = k.s(2, 2)
    srdW = k.s(4, 4); srdS = k.s(4, 4); srdO = k.s(4, 4)
    sW = k.s(); sM = k.s(); sN = k.s(); sT = k.s(); sT2 = k.s()
    sM0 = k.s(); sRow = k.s(); sRow2 = k.s()
    sTok = k.s(5)
    k.nv = 1
    vL16 = k.v(); vDma = k.v()
    vA = k.v(4)
    acc = k.v(80, 4)
    wf = k.v(32, 4)
    tmp = k.v(40, 4)
    tok = k.a(RING * 20, 4)
    e = k.e
    sStamp = k.s(24, 2) if stamps else None
    nst = [0]

    def stamp():
        if stamps:
            e(f's_memtime {S(sStamp + 2*nst[0], 2)}'); e('s_waitcnt lgkmcnt(0)'); nst[0] += 1
    e(f'''
    s_and_b32 {S(sT)}, s2, 7
    s_lshr_b32 {S(sT2)}, s2, 3
    s_mul_i32 {S(sT)}, {S(sT)}, 30
    s_add_u32 {S(sT)}, {S(sT)}, {S(sT2)}
    s_cmp_ge_u32 s2, 240
    s_cbranch_scc1 L_{name}_end
    s_cmp_ge_u32 {S(sT)}, 234
    s_cbranch_scc1 L_{name}_end
    s_load_dwordx4 {S(s_wd,4)}, s[0:1], {KA_WD}
    s_load_dwordx2 {S(s_ws,2)}, s[0:1], {KA_WS}
    v_lshrrev_b32 {V(tmp)}, 6, v0
    v_and_b32 v0, 63, v0
    v_readfirstlane_b32 {S(sW)}, {V(tmp)}
    v_lshlrev_b32 {V(vL16)}, 4, v0
    s_mul_i32 {S(sM)}, {S(sT)}, 7282
    s_lshr_b32 {S(sM)}, {S(sM)}, 16
    s_mul_i32 {S(sT2)}, {S(sM)}, 9
    s_sub_u32 {S(sN)}, {S(sT)}, {S(sT2)}
    ''')
    stamp()
    if stamps:
        e(f's_memrealtime {S(sStamp+20,2)}')
    e(f'''
    v_lshrrev_b32 {V(tmp)}, 3, v0
    v_mul_u32_u24 {V(vDma)}, 1152, {V(tmp)}
    v_lshrrev_b32 {V(tmp)}, 4, v0
    v_lshlrev_b32 {V(tmp)}, 1, {V(tmp)}
    v_and_b32 {V(tmp+1)}, 7, v0
    v_xor_b32 {V(tmp)}, {V(tmp)}, {V(tmp+1)}
    v_lshl_add_u32 {V(vDma)}, {V(tmp)}, 4, {V(vDma)}
    s_mul_i32 {S(sM0)}, {S(sW)}, {WAVE_LDS}
    s_mul_i32 {S(sRow)}, {S(sW)}, {4*288*1152}
    s_lshl_b32 {S(sT)}, {S(sN)}, 7
    s_add_u32 {S(sRow)}, {S(sRow)}, {S(sT)}
    s_mul_i32 {S(sTok)}, {S(sM)}, {5*144*1024}
    s_mul_i32 {S(sT)}, {S(sW)}, {36*1024}
    s_add_u32 {S(sTok)}, {S(sTok)}, {S(sT)}
    ''')
    for tb in range(1, 5):
        e(f's_add_u32 {S(sTok+tb)}, {S(sTok)}, {tb*144*1024}')
    e(f'''
    s_waitcnt lgkmcnt(0)
    s_mov_b32 {S(srdW)}, {S(s_wd)}
    s_mov_b32 {S(srdW+1)}, {S(s_wd+1)}
    s_mov_b32 {S(srdW+2)}, {4608*1152}
    s_mov_b32 {S(srdW+3)}, 0x00020000
    s_add_u32 {S(srdS)}, {S(s_ws)}, {HH}
    s_addc_u32 {S(srdS+1)}, {S(s_ws+1)}, 0
    s_mov_b32 {S(srdS+2)}, {128*144*1024}
    s_mov_b32 {S(srdS+3)}, 0x00020000
    s_add_u32 {S(srdO)}, {S(s_ws)}, {HF}
    s_addc_u32 {S(srdO+1)}, {S(s_ws+1)}, 0
    s_mov_b32 {S(srdO+2)}, {128*18*1024}
    s_mov_b32 {S(srdO+3)}, 0x00020000
    ''')

    def rows_of(ks):
        P, i = divmod(ks, 9)
        b = 288 * P
        if i < 4:
            r0 = b + 32 * i
            return [r0, r0 + 8, r0 + 16, r0 + 24]
        if i < 8:
            r0 = b + 144 + 32 * (i - 4)
            return [r0, r0 + 8, r0 + 16, r0 + 24]
        return [b + 128, b + 136, b + 272, b + 280]

    tok_base = [0]

    def loads(ks):
        slot = ks % RING
        out = []
        for q, r in enumerate(rows_of(ks)):
            out.append([(f's_add_u32 m0, {S(sM0)}, {slot*4096 + q*1024}', None),
                        (f's_add_u32 {S(sRow2)}, {S(sRow)}, {r*1152}', None),
                        (f'buffer_load_dwordx4 {V(vDma)}, {S(srdW,4)}, {S(sRow2)} offen lds', f'w{ks}')])
        for tb in range(5):
            g = []
            if ks % 4 == 0 and ks > 0:
                g.append((f's_add_u32 {S(sTok+tb)}, {S(sTok+tb)}, 4096', None))
            g.append((f'buffer_load_dwordx4 {A(tok + slot*20 + tb*4, 4)}, {V(vL16)}, {S(srdS,4)}, {S(sTok+tb)} offen offset:{(ks%4)*1024}', None))
            out.append(g)
        return out

    def emit_group(g):
        for t, tag in g:
            e(t, tag=tag)

    for ks in range(2):
        for g in loads(ks):
            emit_group(g)
    e(f'''
    v_lshrrev_b32 {V(tmp)}, 2, v0
    v_lshlrev_b32 {V(tmp+1)}, 7, {V(tmp)}
    v_and_b32 {V(tmp+2)}, 3, v0
    v_lshl_add_u32 {V(tmp+1)}, {V(tmp+2)}, 3, {V(tmp+1)}
    v_add_u32 {V(tmp+1)}, {S(sM0)}, {V(tmp+1)}
    v_bfe_u32 {V(tmp+2)}, v0, 3, 2
    ''')
    for fb in range(4):
        e(f'v_xor_b32 {V(tmp+3)}, {fb}, {V(tmp+2)}')
        e(f'v_lshl_add_u32 {V(vA+fb)}, {V(tmp+3)}, 5, {V(tmp+1)}')
    for ks in range(2, PD):
        for g in loads(ks):
            emit_group(g)
    for i in range(3):
        e(f'''
        s_add_u32 {S(sT)}, {S(sW)}, {4*i}
        s_lshr_b32 {S(sT2)}, {S(sT)}, 1
        s_mul_i32 {S(sRow2)}, {S(sM)}, 5
        s_add_u32 {S(sT2)}, {S(sT2)}, {S(sRow2)}
        s_mul_i32 {S(sT2)}, {S(sT2)}, 18
        s_and_b32 {S(sRow2)}, {S(sT)}, 1
        s_add_u32 {S(sT2)}, {S(sT2)}, {S(sRow2)}
        s_lshl_b32 {S(sRow2)}, {S(sN)}, 1
        s_add_u32 {S(sT2)}, {S(sT2)}, {S(sRow2)}
        s_lshl_b32 {S(sT2)}, {S(sT2)}, 10
        s_lshl_b32 {S(sRow2)}, {S(sT)}, 10
        s_add_u32 m0, {S(sRow2)}, {HL}
        ''')
        if i == 2:
            e(f's_cmp_ge_u32 {S(sT)}, 10')
            e(f's_cbranch_scc1 L_{name}_skiph')
            k.opt(True)
        e(f'buffer_load_dwordx4 {V(vL16)}, {S(srdO,4)}, {S(sT2)} offen lds', tag='hres')
        if i == 2:
            k.opt(False)
            k.label(f'L_{name}_skiph')
    if prefetch_code:
        prefetch_code(k, tmp)

    def reads(ks):
        slot = ks % RING
        k.wait_vm([f'w{ks}'])
        o = []
        for fb in range(4):
            b = wf + (ks % 2) * 16 + fb * 4
            o.append(f'ds_read_b64_tr_b16 {V(b,2)}, {V(vA+fb)} offset:{slot*4096}')
            o.append(f'ds_read_b64_tr_b16 {V(b+2,2)}, {V(vA+fb)} offset:{slot*4096+2048}')
        return o

    for o in reads(0):
        e(o)
    stamp()
    for ks in range(NKS):
        slot = ks % RING
        if ks in (9, 18, 27):
            stamp()
        lg = loads(ks + PD) if ks + PD < NKS else []
        n = 0
        for fb in range(4):
            for tb in range(5):
                a0 = acc + (tb * 4 + fb) * 4
                c = '0' if ks == 0 else V(a0, 4)
                if not no_mfma or ks == 0:
                    e(f'v_mfma_f32_16x16x32_bf16 {V(a0,4)}, {V(wf+(ks%2)*16+fb*4,4)}, {A(tok+slot*20+tb*4,4)}, {c}')
                elif fb == 0:
                    e(f'v_accvgpr_mov_b32 {A(tok+slot*20+tb*4)}, {A(tok+slot*20+tb*4)}')
                n += 1
                if n == 4 and ks + 1 < NKS:
                    rd = reads(ks + 1)
                if n >= 4 and ks + 1 < NKS and rd:
                    e(rd.pop(0))
                if n % 2 == 0 and lg:
                    emit_group(lg.pop(0))
        while lg:
            emit_group(lg.pop(0))
    stamp()
    e(f'''
    v_lshrrev_b32 {V(tmp)}, 4, v0
    v_mul_u32_u24 {V(tmp)}, 272, {V(tmp)}
    v_and_b32 {V(tmp+1)}, 15, v0
    v_lshl_add_u32 {V(tmp)}, {V(tmp+1)}, 4, {V(tmp)}
    v_add_u32 {V(tmp)}, {S(sM0)}, {V(tmp)}
    ''')
    for blk in range(20):
        e(f'ds_write_b128 {V(tmp)}, {V(acc+blk*4,4)} offset:{blk*1088}')
    e(f'''
    s_mov_b32 {S(srdO)}, {S(s_wd+2)}
    s_mov_b32 {S(srdO+1)}, {S(s_wd+3)}
    s_mov_b32 {S(srdO+2)}, {2048*1152}
    v_lshrrev_b32 {V(tmp+2)}, 3, v0
    s_lshl_b32 {S(sT)}, {S(sW)}, 3
    v_add_u32 {V(tmp+2)}, {S(sT)}, {V(tmp+2)}
    v_and_b32 {V(tmp+3)}, 7, v0
    ''')
    e(f'''
    v_lshrrev_b32 {V(tmp+4)}, 4, {V(tmp+2)}
    v_lshlrev_b32 {V(tmp+4)}, 2, {V(tmp+4)}
    v_lshrrev_b32 {V(tmp+5)}, 1, {V(tmp+3)}
    v_add_u32 {V(tmp+4)}, {V(tmp+4)}, {V(tmp+5)}
    v_mul_u32_u24 {V(tmp+4)}, 1088, {V(tmp+4)}
    v_and_b32 {V(tmp+5)}, 1, {V(tmp+3)}
    v_mul_u32_u24 {V(tmp+6)}, 544, {V(tmp+5)}
    v_and_b32 {V(tmp+7)}, 15, {V(tmp+2)}
    v_lshlrev_b32 {V(tmp+7)}, 4, {V(tmp+7)}
    v_add3_u32 {V(tmp+4)}, {V(tmp+4)}, {V(tmp+6)}, {V(tmp+7)}
    v_add_u32 {V(tmp+8)}, {2*WAVE_LDS}, {V(tmp+4)}
    ''')
    e(f'''
    v_lshrrev_b32 {V(tmp+6)}, 4, {V(tmp+2)}
    v_lshlrev_b32 {V(tmp+6)}, 1, {V(tmp+6)}
    v_lshrrev_b32 {V(tmp+9)}, 2, {V(tmp+3)}
    v_add_u32 {V(tmp+6)}, {V(tmp+6)}, {V(tmp+9)}
    v_lshlrev_b32 {V(tmp+6)}, 10, {V(tmp+6)}
    v_lshl_add_u32 {V(tmp+6)}, {V(tmp+5)}, 9, {V(tmp+6)}
    v_bfe_u32 {V(tmp+9)}, {V(tmp+3)}, 1, 1
    v_lshl_add_u32 {V(tmp+6)}, {V(tmp+9)}, 3, {V(tmp+6)}
    v_add3_u32 {V(tmp+6)}, {V(tmp+6)}, {V(tmp+7)}, {S(sRow2)}
    ''' .replace(f'{S(sRow2)}\n', f'{V(tmp+10)}\n'))
    k.items.insert(len(k.items) - 1, Ins(f'v_mov_b32 {V(tmp+10)}, {HL}'))
    e(f'''
    v_mul_u32_u24 {V(tmp+9)}, 1152, {V(tmp+2)}
    v_lshl_add_u32 {V(tmp+9)}, {V(tmp+3)}, 4, {V(tmp+9)}
    s_mul_i32 {S(sT)}, {S(sM)}, {80*1152}
    s_lshl_b32 {S(sT2)}, {S(sN)}, 7
    s_add_u32 {S(sT)}, {S(sT)}, {S(sT2)}
    ''')
    k.wait_vm(['hres'])
    e('s_waitcnt lgkmcnt(0)')
    e('s_barrier')
    P = acc
    assert wf == acc + 80
    for r in range(3):
        base = P + r * 36
        if r == 2:
            e(f's_cmp_ge_u32 {S(sW)}, 2')
            e(f's_cbranch_scc1 L_{name}_r2a')
            k.opt(True)
        for w in range(4):
            va = tmp + 4 if w < 2 else tmp + 8
            off = (w & 1) * WAVE_LDS + r * 8 * 1088
            e(f'ds_read_b128 {V(base+w*8,4)}, {V(va)} offset:{off}')
            e(f'ds_read_b128 {V(base+w*8+4,4)}, {V(va)} offset:{off+272}')
        e(f'ds_read_b64 {V(base+32,2)}, {V(tmp+6)} offset:{r*4096}')
        e(f'ds_read_b64 {V(base+34,2)}, {V(tmp+6)} offset:{r*4096+256}')
        if r == 2:
            k.opt(False)
            k.label(f'L_{name}_r2a')
    for r in range(3):
        base = P + r * 36
        if r == 2:
            e(f's_cmp_ge_u32 {S(sW)}, 2')
            e(f's_cbranch_scc1 L_{name}_r2b')
            k.opt(True)
            e('s_waitcnt lgkmcnt(0)')
        for q in range(8):
            e(f'v_add_f32 {V(base+q)}, {V(base+q)}, {V(base+8+q)}')
            e(f'v_add_f32 {V(base+16+q)}, {V(base+16+q)}, {V(base+24+q)}')
        for q in range(8):
            e(f'v_add_f32 {V(base+q)}, {V(base+q)}, {V(base+16+q)}')
        for q in range(4):
            e(f'v_cvt_pk_bf16_f32 {V(base+8+q)}, {V(base+2*q)}, {V(base+2*q+1)}')
        for q in range(4):
            e(f'v_lshlrev_b32 {V(base+2*q)}, 16, {V(base+8+q)}')
            e(f'v_and_b32 {V(base+2*q+1)}, 0xffff0000, {V(base+8+q)}')
            e(f'v_lshlrev_b32 {V(base+16+2*q)}, 16, {V(base+32+q)}')
            e(f'v_and_b32 {V(base+16+2*q+1)}, 0xffff0000, {V(base+32+q)}')
        for q in range(8):
            e(f'v_add_f32 {V(base+q)}, {V(base+q)}, {V(base+16+q)}')
        for q in range(4):
            e(f'v_cvt_pk_bf16_f32 {V(base+8+q)}, {V(base+2*q)}, {V(base+2*q+1)}')
        e(f'buffer_store_dwordx4 {V(base+8,4)}, {V(tmp+9)}, {S(srdO,4)}, {S(sT)} offen')
        e(f's_add_u32 {S(sT)}, {S(sT)}, {32*1152}')
        if r == 2:
            k.opt(False)
            k.label(f'L_{name}_r2b')
    if stamps:
        stamp()
        e('s_waitcnt vmcnt(0)')
        stamp()
        emit_stamp_dump(k, e, sStamp, nst, srdW, s_wd, sT, sW, tmp)
    k.label(f'L_{name}_end')
    e('s_endpgm')
    return k
```

```python
S_, D_, F_, H_, DH = 2048, 576, 4608, 32, 18
QF = 0x000000
KF = 0x240000
VF = 0x480000
VT = 0x680000
OF = 0x6C0000
HF = 0x900000
ST = 0xB40000
CS = 0xB70000
HH = 0xC00000
WS_USED = 0x1E00000
KA_X, KA_WQKV, KA_WO, KA_BX, KA_WG, KA_WU, KA_WD, KA_OUT, KA_DBG, KA_WS = [8 * i for i in range(10)]


def hh_block_order():
    out = []
    for P in range(16):
        e, o = 18 * P, 18 * P + 9
        for i in range(4):
            out += [e + 2 * i, e + 2 * i + 1]
        for i in range(4):
            out += [o + 2 * i, o + 2 * i + 1]
        out += [e + 8, o + 8]
    return out


import numpy as np


def to_frag(u16, nks):
    return u16.reshape(128, 16, nks, 2, 4, 4).transpose(0, 2, 4, 1, 3, 5).copy()


def from_frag(u16, nks):
    return u16.reshape(128, nks, 4, 16, 2, 4).transpose(0, 3, 1, 4, 2, 5).reshape(2048, nks * 32)


def head_slots(h):
    return list(range(18)) if h % 2 == 0 else list(range(2, 18)) + [0, 1]


def pack_qk(u16):
    out = np.zeros((32, 128, 288), dtype=np.uint16)
    for h in range(32):
        a = u16[:, 18 * h:18 * h + 18][:, head_slots(h)].reshape(128, 16, 18)
        out[h, :, :256] = a[:, :, :16].reshape(128, 16, 2, 8).transpose(0, 2, 1, 3).reshape(128, 256)
        out[h, :, 256:] = a[:, :, 16:].reshape(128, 32)
    return out


def unpack_qk(arr):
    arr = arr.reshape(32, 128, 288)
    out = np.zeros((2048, 576), dtype=np.uint16)
    for h in range(32):
        a = np.zeros((128, 16, 18), dtype=np.uint16)
        a[:, :, :16] = arr[h, :, :256].reshape(128, 2, 16, 8).transpose(0, 2, 1, 3).reshape(128, 16, 16)
        a[:, :, 16:] = arr[h, :, 256:].reshape(128, 16, 2)
        out[:, [18 * h + d for d in head_slots(h)]] = a.reshape(2048, 18)
    return out


def pack_v(u16):
    v = u16.reshape(64, 2, 4, 4, 32, 18)
    a = v.transpose(4, 0, 2, 5, 1, 3)
    vf = a[:, :, :, :16].copy()
    vt = a[:, :, :, 16:].copy()
    return vf, vt


def unpack_v(vf, vt):
    a = np.concatenate([vf.reshape(32, 64, 4, 16, 2, 4), vt.reshape(32, 64, 4, 2, 2, 4)], axis=3)
    return a.transpose(1, 4, 2, 5, 0, 3).reshape(2048, 576)
```

```python
import sys, os; sys.path.insert(0,'dev')
from asmb import *; from layout import *
import k1, k2, k3, k4, k5
NAME = 'sequential_preLN__sliding_block__glu_gated_glu__prompt'
def build(path, **opt):
    ref = open(f'cdna_kernels/{NAME}.s.ref').read().split('\n')
    hdr = [l for l in ref if l.startswith(';') and '@launch' not in l and 'Override launch' not in l and 'grid=ceil' not in l]
    K1 = k1.build_k1(name=NAME+'_kernel'); K2 = k2.build_k2(); K3 = k3.build_k3(); K4 = k4.build_k4(); K5 = k5.build_k5()
    launches = [(K1.name, 224, 256, K1.lds), (K2.name, 400, 256, K2.lds), (K3.name, 240, 320, K3.lds), (K4.name, 256, 512, K4.lds), (K5.name, 240, 256, K5.lds)]
    assemble_file(hdr, launches, [K1, K2, K3, K4, K5], path)
if __name__ == '__main__':
    build(sys.argv[1] if len(sys.argv) > 1 else f'cdna_kernels/{NAME}.s')
```

```python
import re

_REG_RE = re.compile(r'\b([vas])\[(\d+):(\d+)\]|\b([vas])(\d+)\b|\b(vcc|exec|m0|scc)\b')


def regs_of(op):
    out = []
    if '_kernel' in op or 'L_' in op:
        return out
    for m in _REG_RE.finditer(op):
        if m.group(1):
            out += [(m.group(1), i) for i in range(int(m.group(2)), int(m.group(3)) + 1)]
        elif m.group(4):
            out.append((m.group(4), int(m.group(5))))
        else:
            out.append((m.group(6), 0))
    return out


def split_ops(s):
    ops, depth, cur = [], 0, ''
    for ch in s:
        if ch in '[(':
            depth += 1
        if ch in '])':
            depth -= 1
        if ch == ',' and depth == 0:
            ops.append(cur.strip()); cur = ''
        else:
            cur += ch
    if cur.strip():
        ops.append(cur.strip())
    return ops


TRANS = ('v_exp_f32', 'v_log_f32', 'v_rcp_f32', 'v_rsq_f32', 'v_sqrt_f32', 'v_sin_f32', 'v_cos_f32')


class Ins:
    __slots__ = ('text', 'mn', 'defs', 'uses', 'kind', 'tag', 'optional', 'passes', 'srcc', 'ab', 'need_vm',
                 'need_lgkm', 'nops', 'wide_store', 'is_dpp', 'waitvm_tags', 'waitlgkm_tags', 'comment', 'sdefs')

    def __init__(self, text, tag=None, optional=False):
        self.text = text
        self.tag = tag
        self.optional = optional
        self.need_vm = None
        self.need_lgkm = None
        self.nops = 0
        self.passes = 0
        self.srcc = []
        self.ab = []
        self.wide_store = False
        self.is_dpp = False
        self.waitvm_tags = None
        self.waitlgkm_tags = None
        t = text.split(';')[0].strip()
        if t.endswith(':') or t.startswith('.') or not t:
            self.mn = ''
            self.kind = 'label' if t.endswith(':') else 'dir'
            self.defs, self.uses = [], []
            return
        parts = t.split(None, 1)
        mn = parts[0]
        self.mn = mn
        rest = parts[1] if len(parts) > 1 else ''
        ops = split_ops(rest)
        defs, uses = [], []
        k = 'other'
        if mn.startswith('v_mfma'):
            k = 'mfma'
            defs = regs_of(ops[0])
            self.ab = regs_of(ops[1]) + regs_of(ops[2])
            self.srcc = regs_of(ops[3])
            uses = self.ab + self.srcc
            self.passes = 8 if '32x32x16' in mn else 4
        elif mn.startswith('v_cmp'):
            k = 'valu'
            defs = regs_of(ops[0])
            uses = sum((regs_of(o) for o in ops[1:]), [])
        elif (mn.startswith('v_permlane') and 'swap' in mn) or mn.startswith('v_swap'):
            k = 'valu'
            defs = regs_of(ops[0]) + regs_of(ops[1])
            uses = list(defs)
        elif mn.startswith('v_'):
            k = 'valu'
            defs = regs_of(ops[0])
            srcs = ops[1:]
            if mn.split('_e')[0] in ('v_add_co_u32', 'v_addc_co_u32', 'v_sub_co_u32', 'v_subb_co_u32', 'v_mad_u64_u32'):
                defs += regs_of(ops[1]); srcs = ops[2:]
            uses = sum((regs_of(o) for o in srcs), [])
            if mn.startswith(('v_fmac', 'v_dot2c', 'v_pk_fmac', 'v_writelane')):
                uses += defs
            if '_dpp' in mn or 'row_' in rest or 'quad_perm' in rest:
                self.is_dpp = True
                uses += defs
        elif mn.startswith('ds_read') or mn.startswith('ds_bpermute') or mn.startswith('ds_permute') or mn.startswith('ds_swizzle'):
            k = 'ds'
            defs = regs_of(ops[0])
            uses = sum((regs_of(o) for o in ops[1:]), [])
        elif mn.startswith('ds_'):
            k = 'ds'
            uses = sum((regs_of(o) for o in ops), [])
        elif mn.startswith('buffer_load') or mn.startswith('global_load'):
            k = 'vmem'
            if re.search(r'\blds\b', rest) or 'load_lds' in mn:
                uses = sum((regs_of(o) for o in ops), []) + [('m0', 0)]
                k = 'vmem_lds'
            else:
                defs = regs_of(ops[0])
                uses = sum((regs_of(o) for o in ops[1:]), [])
        elif mn.startswith('buffer_store') or mn.startswith('global_store'):
            k = 'vmem'
            uses = sum((regs_of(o) for o in ops), [])
            if 'x3' in mn or 'x4' in mn:
                self.wide_store = True
                self.srcc = regs_of(ops[0]) if mn.startswith('buffer') else regs_of(ops[1])
        elif mn.startswith('buffer_atomic') or mn.startswith('global_atomic'):
            k = 'vmem'
            uses = sum((regs_of(o) for o in ops), [])
            if re.search(r'\bsc0\b', rest):
                defs = regs_of(ops[0])
        elif mn.startswith('buffer_') or mn.startswith('global_'):
            k = 'vmem'
        elif mn.startswith('s_load') or mn.startswith('s_buffer_load') or mn.startswith('s_memtime') or mn.startswith('s_memrealtime'):
            k = 'smem'
            defs = regs_of(ops[0])
            uses = sum((regs_of(o) for o in ops[1:]), [])
        elif mn in ('s_waitcnt', 's_barrier', 's_nop', 's_endpgm', 's_setprio', 's_sleep', 's_branch') or mn.startswith('s_cbranch'):
            k = 'sctl'
        elif mn.startswith('s_cmp') or mn.startswith('s_bitcmp'):
            k = 'salu'
            uses = sum((regs_of(o) for o in ops), [])
        elif mn.startswith('s_'):
            k = 'salu'
            defs = regs_of(ops[0])
            uses = sum((regs_of(o) for o in ops[1:]), [])
            if 'saveexec' in mn:
                defs += [('exec', 0)]
        else:
            raise ValueError('unknown instruction: ' + text)
        self.kind = k
        self.defs, self.uses = defs, uses


class Kernel:
    def __init__(self, name):
        self.name = name
        self.items = []
        self.nv = 0
        self.na = 0
        self.ns = 0
        self.names = {}
        self._opt = False
        self.extra_kd = []

    def v(self, n=1, align=1, name=None):
        b = (self.nv + align - 1) // align * align
        self.nv = b + n
        return b

    def a(self, n=1, align=1):
        b = (self.na + align - 1) // align * align
        self.na = b + n
        return b

    def s(self, n=1, align=1):
        b = (self.ns + align - 1) // align * align
        self.ns = b + n
        assert self.ns <= 100
        return b

    def e(self, text, tag=None):
        for line in text.strip('\n').split('\n'):
            line = line.strip()
            if not line:
                continue
            self.items.append(Ins(line, tag=tag, optional=self._opt))
        return self

    def opt(self, flag):
        self._opt = flag

    def label(self, l):
        self.items.append(Ins(l + ':'))

    def wait_vm(self, tags):
        i = Ins('s_waitcnt vmcnt(63)', optional=self._opt)
        i.waitvm_tags = set(tags) if not isinstance(tags, str) else {tags}
        self.items.append(i)

    def wait_lgkm_all(self):
        self.e('s_waitcnt lgkmcnt(0)')

    def save_state(self):
        i = Ins('.save'); i.kind = 'save'; self.items.append(i)

    def reset_state(self):
        i = Ins('.restore'); i.kind = 'restore'; self.items.append(i)

    def clear_state(self):
        i = Ins('.clear'); i.kind = 'clear'; self.items.append(i)

    def loop_begin(self, label):
        self.items.append(('loop_begin', label))
        self.label(label)

    def loop_end(self):
        self.items.append(('loop_end',))

    def _trace(self):
        seq, stack = [], []
        out = []
        i = 0
        items = self.items

        def rec(lo, hi):
            j = lo
            while j < hi:
                it = items[j]
                if isinstance(it, tuple) and it[0] == 'loop_begin':
                    depth, k2 = 1, j + 1
                    while depth:
                        t = items[k2]
                        if isinstance(t, tuple):
                            depth += 1 if t[0] == 'loop_begin' else -1
                        k2 += 1
                    for _ in range(3):
                        rec(j + 1, k2 - 1)
                    j = k2
                else:
                    out.append(it)
                    j += 1
        rec(0, len(items))
        return out

    def finalize(self, verbose=False):
        tr = self._trace()
        vm = []
        lg = []
        saved = ([], [])
        for ins in tr:
            if ins.kind in ('label', 'dir'):
                continue
            if ins.kind == 'save':
                saved = (list(vm), list(lg)); continue
            if ins.kind == 'restore':
                vm, lg = list(saved[0]), list(saved[1]); continue
            if ins.kind == 'clear':
                vm, lg = [], []; continue
            touched = set(ins.uses) | set(ins.defs)
            if ins.mn == 's_waitcnt' and ins.waitvm_tags is None:
                m = re.search(r'vmcnt\((\d+)\)', ins.text)
                if m and not ins.optional:
                    n = int(m.group(1))
                    cnt = 0; keep = []
                    for o in reversed(vm):
                        if cnt < n:
                            keep.append(o)
                        if not o[2]:
                            cnt += 1
                    vm = list(reversed(keep)) if n else []
                m = re.search(r'lgkmcnt\((\d+)\)', ins.text)
                if m and not ins.optional:
                    n = int(m.group(1))
                    if n == 0:
                        lg = []
                    else:
                        lg = lg[-n:]
                continue
            idx = -1
            for q, o in enumerate(vm):
                if ins.waitvm_tags is not None:
                    if o[1] in ins.waitvm_tags:
                        idx = q
                elif o[0] & touched:
                    idx = q
            if idx >= 0:
                n = sum(1 for o in vm[idx + 1:] if not o[2])
                n = min(n, 63)
                ins.need_vm = n if ins.need_vm is None else min(ins.need_vm, n)
                if not ins.optional:
                    vm = vm[idx + 1:]
            idx = -1
            for q, o in enumerate(lg):
                if o[0] & touched:
                    idx = q
            if idx >= 0:
                if any(o[2] for o in lg):
                    n = 0
                else:
                    n = sum(1 for o in lg[idx + 1:] if not o[1])
                n = min(n, 15)
                ins.need_lgkm = n if ins.need_lgkm is None else min(ins.need_lgkm, n)
                if not ins.optional:
                    lg = lg[len(lg) - n:] if n else []
            if ins.kind in ('vmem', 'vmem_lds'):
                vm.append((set(ins.defs), ins.tag, ins.optional))
            elif ins.kind == 'ds':
                lg.append((set(ins.defs), ins.optional, False))
            elif ins.kind == 'smem':
                lg.append((set(ins.defs), ins.optional, True))
        for _round in range(2):
            hist = []
            pos = 0
            savedh = ([], 0)
            for ins in tr:
                if ins.kind in ('label', 'dir'):
                    continue
                if ins.kind == 'save':
                    savedh = (list(hist), pos); continue
                if ins.kind == 'restore':
                    hist, pos = list(savedh[0]), savedh[1]; continue
                if ins.kind == 'clear':
                    continue
                if ins.waitvm_tags is not None and ins.need_vm is None:
                    continue
                extra = 0
                if ins.waitvm_tags is None and (ins.need_vm is not None or ins.need_lgkm is not None):
                    extra = 1
                here = pos + (0 if ins.optional else extra)
                need = 0
                U, D = set(ins.uses), set(ins.defs)
                for (p, ppos) in reversed(hist):
                    dist = here - ppos
                    if dist > 20:
                        break
                    req = 0
                    PD = set(p.defs)
                    if p.kind == 'mfma':
                        big = 12 if p.passes == 8 else 8
                        if ins.kind == 'mfma':
                            if PD & set(ins.ab):
                                req = max(req, big)
                            if PD & set(ins.srcc):
                                if not (ins.srcc == p.defs and ins.passes == p.passes):
                                    req = max(req, big - 2)
                            elif PD & D:
                                req = max(req, big)
                        elif ins.kind in ('valu', 'vmem', 'vmem_lds', 'ds'):
                            if PD & (U | D):
                                req = max(req, big)
                        if ins.kind == 'valu' and set(p.srcc) & D:
                            req = max(req, 7 if p.passes == 8 else 3)
                    elif p.kind == 'valu':
                        vd = {r for r in PD if r[0] in 'va'}
                        sd = {r for r in PD if r[0] in ('s', 'vcc')}
                        if ins.kind == 'mfma' and vd & U:
                            req = max(req, 2)
                        if p.mn.startswith('v_dot') and vd & (U | D):
                            same_c = ins.mn == p.mn and not (vd & set(regs_of(','.join(split_ops(ins.text.split(None,1)[1])[1:3]))))
                            if not same_c:
                                req = max(req, 3)
                        if p.mn.split('_e')[0] in TRANS and vd & U and ins.kind != 'sctl':
                            req = max(req, 1)
                        if ins.kind == 'valu' and sd & U:
                            req = max(req, 4 if ins.mn.startswith(('v_readlane', 'v_writelane')) else 2)
                        if ins.kind in ('vmem', 'vmem_lds') and sd & U:
                            req = max(req, 5)
                        if ins.kind == 'salu' and sd & U:
                            req = max(req, 1)
                        if ins.mn.startswith(('v_readlane', 'v_readfirstlane')) and vd & U:
                            req = max(req, 1)
                        if (ins.mn.startswith('v_permlane') or ins.is_dpp) and vd & U:
                            req = max(req, 2)
                        if ('op_sel' in p.text or 'sdwa' in p.text) and not p.mn.startswith('v_pk') and vd & (U | D):
                            req = max(req, 1)
                    elif p.kind == 'salu':
                        if ('m0', 0) in PD and ins.kind == 'vmem_lds':
                            req = max(req, 1)
                    elif p.kind == 'vmem' and p.wide_store:
                        if set(p.srcc) & D:
                            req = max(req, 2)
                    if req > dist:
                        need = max(need, req - dist)
                if need > ins.nops:
                    ins.nops = need
                adv = ins.nops + extra
                if ins.mn == 's_nop':
                    adv += int(ins.text.split()[1]) + 1
                else:
                    adv += 1
                if not ins.optional:
                    pos += adv
                    hist.append((ins, pos))
                else:
                    hist.append((ins, pos))
                if len(hist) > 64:
                    hist = hist[-40:]
        out = []
        nn = 0
        for it in self.items:
            if isinstance(it, tuple):
                continue
            ins = it
            if ins.kind in ('save', 'restore', 'clear'):
                continue
            if ins.kind in ('label', 'dir'):
                out.append(ins.text)
                continue
            n = ins.nops
            nn += n
            while n > 0:
                k = min(n, 16)
                out.append(f'    s_nop {k - 1}')
                n -= k
            if ins.waitvm_tags is not None:
                if ins.need_vm is not None:
                    out.append(f'    s_waitcnt vmcnt({ins.need_vm})')
                continue
            w = []
            if ins.need_vm is not None:
                w.append(f'vmcnt({ins.need_vm})')
            if ins.need_lgkm is not None:
                w.append(f'lgkmcnt({ins.need_lgkm})')
            if w:
                out.append('    s_waitcnt ' + ' '.join(w))
            out.append('    ' + ins.text)
        if verbose:
            print(f'[{self.name}] instrs={len(out)} nop_states={nn} vgpr={self.nv} agpr={self.na} sgpr={self.ns}')
        return out

    def text(self, verbose=False):
        body = self.finalize(verbose)
        hdr = [f'.globl {self.name}', '.p2align 8', f'.type {self.name},@function', f'{self.name}:']
        return '\n'.join(hdr + body) + '\n'

    def kd(self, kernarg=80):
        acc = max(4, (self.nv + 3) // 4 * 4)
        assert acc <= 256, f'too many arch vgprs {self.nv}'
        assert self.na <= 256
        nfv = acc + self.na if self.na else self.nv
        return f""".p2align 6
.amdhsa_kernel {self.name}
  .amdhsa_next_free_vgpr {nfv}
  .amdhsa_next_free_sgpr {max(self.ns, 16)}
  .amdhsa_accum_offset {acc}
  .amdhsa_group_segment_fixed_size 0
  .amdhsa_kernarg_size {kernarg}
  .amdhsa_user_sgpr_count 2
  .amdhsa_user_sgpr_kernarg_segment_ptr 1
  .amdhsa_system_sgpr_workgroup_id_x 1
  .amdhsa_float_denorm_mode_32 3
.end_amdhsa_kernel
"""


def R(kind, base, n=1):
    return f'{kind}{base}' if n == 1 else f'{kind}[{base}:{base + n - 1}]'


def V(b, n=1):
    return R('v', b, n)


def A(b, n=1):
    return R('a', b, n)


def S(b, n=1):
    return R('s', b, n)


def interleave(main, side, ratio=None):
    out = []
    nm = len(main)
    ns = len(side)
    j = 0
    for i, m in enumerate(main):
        out.append(m)
        tgt = (i + 1) * ns // nm
        while j < tgt:
            out.append(side[j]); j += 1
    out += side[j:]
    return out


def assemble_file(header_comments, launches, kernels, path):
    s = ''
    for l in header_comments:
        s += l + '\n'
    for (name, grid, block, lds) in launches:
        s += f'; @launch kernel={name} grid=({grid},1,1) block=({block},1,1) lds={lds}\n'
    s += '.amdgcn_target "amdgcn-amd-amdhsa--gfx950"\n.text\n'
    for k in kernels:
        s += k.text(verbose=True)
    s += '.section .rodata,"a"\n'
    for k in kernels:
        s += k.kd()
    open(path, 'w').write(s)
    return s
```

```python
from asmb import *
from layout import *
from k4 import F, bf16_round, LOG2E
from k4 import emit_stamp_dump
from k3 import row_reduce

QSCALE = 18 ** -0.5 * LOG2E


def build_k1(name='k1_kernel', stamps=False, extra=None, prefetch=True, code_bytes=0, pf_delay=2):
    k = Kernel(name)
    SLOT = 32768
    STL = 4 * SLOT
    k.lds = STL + 2048
    k.ns = 3
    s_x = k.s(4, 4)
    s_ws = k.s(2, 2)
    srdX = k.s(4, 4); srdW = k.s(4, 4); srdS = k.s(4, 4)
    sW = k.s(); sM = k.s(); sN = k.s(); sT = k.s(); sT2 = k.s(); sTW = k.s(); sCW = k.s(); sC64 = k.s()
    sM0 = k.s(); sXo = k.s(); sWo = k.s(); sTmpO = k.s(); sOne = k.s(); sSt = k.s(); sSec = k.s()
    sMask = k.s(8, 2)
    sO0 = k.s(); sO1 = k.s()
    k.nv = 1
    vDx = k.v(); vDw = k.v()
    vT = k.v(4)
    vWa = k.v(8)
    acc = k.v(64, 4)
    tf = k.v(32, 4)
    wf = k.v(32, 4)
    ssum = k.v(8, 4); ssq = k.v(8, 4); csum = k.v(8, 4); ones = k.v(4, 4)
    adr = k.v(8)
    sDiag = k.s(8, 4)
    tmp = k.v(56, 4)
    e = k.e
    sStamp = k.s(24, 2) if stamps else None
    nst = [0]

    def stamp():
        if stamps:
            e(f's_memtime {S(sStamp + 2*nst[0], 2)}'); e('s_waitcnt lgkmcnt(0)'); nst[0] += 1
    e(f'''
    s_cmp_ge_u32 s2, 256
    s_cbranch_scc1 L_{name}_x
    v_lshrrev_b32 {V(tmp)}, 6, v0
    v_and_b32 v0, 63, v0
    v_readfirstlane_b32 {S(sW)}, {V(tmp)}
    s_cmp_ge_u32 s2, 224
    s_cbranch_scc1 L_{name}_pf
    s_load_dwordx4 {S(s_x,4)}, s[0:1], {KA_X}
    s_load_dwordx2 {S(s_ws,2)}, s[0:1], {KA_WS}
    s_and_b32 {S(sT)}, s2, 7
    s_lshr_b32 {S(sT2)}, s2, 3
    s_lshl_b32 {S(sM)}, {S(sT)}, 1
    s_and_b32 {S(sT)}, {S(sT2)}, 1
    s_add_u32 {S(sM)}, {S(sM)}, {S(sT)}
    s_lshr_b32 {S(sN)}, {S(sT2)}, 1
    s_lshr_b32 {S(sTW)}, {S(sW)}, 1
    s_and_b32 {S(sCW)}, {S(sW)}, 1
    s_lshl_b32 {S(sC64)}, {S(sN)}, 1
    s_add_u32 {S(sC64)}, {S(sC64)}, {S(sCW)}
    ''')
    stamp()
    if stamps:
        e(f's_memrealtime {S(sStamp+20,2)}')
    e(f'''
    v_lshrrev_b32 {V(tmp)}, 3, v0
    v_mul_u32_u24 {V(vDx)}, 1152, {V(tmp)}
    v_lshrrev_b32 {V(tmp+1)}, 4, v0
    s_lshl_b32 {S(sT)}, {S(sCW)}, 2
    v_add_u32 {V(tmp+2)}, {S(sT)}, {V(tmp+1)}
    v_and_b32 {V(tmp+3)}, 7, v0
    v_xor_b32 {V(tmp+2)}, {V(tmp+2)}, {V(tmp+3)}
    v_lshl_add_u32 {V(vDx)}, {V(tmp+2)}, 4, {V(vDx)}
    v_lshrrev_b32 {V(tmp+2)}, 5, v0
    v_lshlrev_b32 {V(tmp+2)}, 3, {V(tmp+2)}
    v_and_b32 {V(tmp)}, 3, {V(tmp)}
    v_add_u32 {V(tmp+2)}, {V(tmp+2)}, {V(tmp)}
    v_mul_u32_u24 {V(vDw)}, 3456, {V(tmp+2)}
    v_lshlrev_b32 {V(tmp+1)}, 1, {V(tmp+1)}
    v_xor_b32 {V(tmp+1)}, {V(tmp+1)}, {V(tmp+3)}
    v_lshl_add_u32 {V(vDw)}, {V(tmp+1)}, 4, {V(vDw)}
    s_lshl_b32 {S(sM0)}, {S(sW)}, 10
    s_lshl_b32 {S(sT)}, {S(sM)}, 7
    s_lshl_b32 {S(sT2)}, {S(sW)}, 3
    s_add_u32 {S(sT)}, {S(sT)}, {S(sT2)}
    s_mul_i32 {S(sXo)}, {S(sT)}, 1152
    s_lshl_b32 {S(sT)}, {S(sTW)}, 4
    s_lshl_b32 {S(sT2)}, {S(sCW)}, 2
    s_add_u32 {S(sT)}, {S(sT)}, {S(sT2)}
    s_mul_i32 {S(sWo)}, {S(sT)}, 3456
    s_lshl_b32 {S(sT)}, {S(sN)}, 8
    s_add_u32 {S(sWo)}, {S(sWo)}, {S(sT)}
    s_mov_b32 {S(sOne)}, 0x3f803f80
    s_waitcnt lgkmcnt(0)
    s_mov_b32 {S(srdX)}, {S(s_x)}
    s_mov_b32 {S(srdX+1)}, {S(s_x+1)}
    s_mov_b32 {S(srdX+2)}, {2048*1152}
    s_mov_b32 {S(srdX+3)}, 0x00020000
    s_mov_b32 {S(srdW)}, {S(s_x+2)}
    s_mov_b32 {S(srdW+1)}, {S(s_x+3)}
    s_mov_b32 {S(srdW+2)}, {576*3456}
    s_mov_b32 {S(srdW+3)}, 0x00020000
    s_mov_b32 {S(srdS)}, {S(s_ws)}
    s_mov_b32 {S(srdS+1)}, {S(s_ws+1)}
    s_mov_b32 {S(srdS+2)}, {WS_USED}
    s_mov_b32 {S(srdS+3)}, 0x00020000
    ''')

    def dma(St):
        slot = St % 4
        out = []
        for i in range(4):
            out.append([(f's_add_u32 m0, {S(sM0)}, {slot*SLOT + i*4096}', None),
                        (f's_add_u32 {S(sTmpO)}, {S(sXo)}, {i*32*1152 + St*128}', None),
                        (f'buffer_load_dwordx4 {V(vDx)}, {S(srdX,4)}, {S(sTmpO)} offen lds', f'st{St}')])
            out.append([(f's_add_u32 m0, {S(sM0)}, {slot*SLOT + 16384 + i*4096}', None),
                        (f's_add_u32 {S(sTmpO)}, {S(sWo)}, {St*64*3456 + (i&1)*32*3456 + (i>>1)*128}', None),
                        (f'buffer_load_dwordx4 {V(vDw)}, {S(srdW,4)}, {S(sTmpO)} offen lds', f'st{St}')])
        return out

    def emit_group(g):
        for t, tag in g:
            e(t, tag=tag)
    for St in range(2):
        for g in dma(St):
            emit_group(g)
    e(f'''
    v_and_b32 {V(tmp)}, 15, v0
    v_lshrrev_b32 {V(tmp+1)}, 4, v0
    v_lshrrev_b32 {V(tmp+2)}, 1, {V(tmp)}
    v_xor_b32 {V(tmp+2)}, {V(tmp+2)}, {V(tmp+1)}
    v_lshlrev_b32 {V(tmp+3)}, 7, {V(tmp)}
    v_lshl_add_u32 {V(tmp+3)}, {V(tmp+2)}, 4, {V(tmp+3)}
    s_lshl_b32 {S(sT)}, {S(sTW)}, 13
    v_add_u32 {V(vT)}, {S(sT)}, {V(tmp+3)}
    v_add_u32 {V(vT+1)}, {2*SLOT}, {V(vT)}
    v_xor_b32 {V(vT+2)}, 64, {V(vT)}
    v_add_u32 {V(vT+3)}, {2*SLOT}, {V(vT+2)}
    v_lshrrev_b32 {V(tmp+2)}, 5, v0
    v_lshlrev_b32 {V(tmp+2)}, 4, {V(tmp+2)}
    v_bfe_u32 {V(tmp+3)}, v0, 2, 3
    v_add_u32 {V(tmp+2)}, {V(tmp+2)}, {V(tmp+3)}
    v_lshlrev_b32 {V(tmp+2)}, 7, {V(tmp+2)}
    v_and_b32 {V(tmp+4)}, 3, v0
    v_lshl_add_u32 {V(tmp+2)}, {V(tmp+4)}, 3, {V(tmp+2)}
    s_lshl_b32 {S(sT)}, {S(sCW)}, 13
    s_add_u32 {S(sT)}, {S(sT)}, 16384
    v_add_u32 {V(tmp+2)}, {S(sT)}, {V(tmp+2)}
    v_bfe_u32 {V(tmp+3)}, v0, 3, 2
    ''')
    for fb in range(4):
        e(f'v_xor_b32 {V(tmp+4)}, {fb}, {V(tmp+3)}')
        e(f'v_lshl_add_u32 {V(vWa+2*fb)}, {V(tmp+4)}, 5, {V(tmp+2)}')
        e(f'v_add_u32 {V(vWa+2*fb+1)}, {2*SLOT}, {V(vWa+2*fb)}')
    for r in range(4):
        e(f'v_mov_b32 {V(ones+r)}, 0x3f803f80')
    e(f'''
    v_and_b32 {V(tmp)}, 3, v0
    v_cmp_eq_u32 {S(sDiag,2)}, 1, {V(tmp)}
    v_cmp_eq_u32 {S(sDiag+2,2)}, 2, {V(tmp)}
    v_cmp_eq_u32 {S(sDiag+4,2)}, 3, {V(tmp)}
    v_bfe_u32 {V(tmp)}, v0, 2, 2
    v_lshrrev_b32 {V(tmp+1)}, 4, v0
    v_cmp_eq_u32 {S(sDiag+6,2)}, {V(tmp)}, {V(tmp+1)}
    ''')

    vT2 = k.v(4)
    e(f's_lshl_b32 {S(sT)}, {S(sCW)}, 12')
    e(f's_sub_u32 {S(sT2)}, 4096, {S(sT)}')
    for q in range(4):
        e(f'v_add_u32 {V(vT2+q)}, {S(sT2)}, {V(vT+q)}')
        e(f'v_add_u32 {V(vT+q)}, {S(sT)}, {V(vT+q)}')
    e(f's_cmp_eq_u32 {S(sTW)}, 0')
    e(f's_cbranch_scc1 L_{name}_nosw')
    k.opt(True)
    for q in range(4):
        e(f'v_swap_b32 {V(vWa+q)}, {V(vWa+4+q)}')
    k.opt(False)
    k.label(f'L_{name}_nosw')

    def reads(ks):
        St, s = ks >> 1, ks & 1
        slot = St % 4
        hi = slot >> 1
        o = []
        b = ks % 2
        for i in range(4):
            va = (vT if i < 2 else vT2) + 2 * s + hi
            o.append(f'ds_read_b128 {V(tf+b*16+i*4,4)}, {V(va)} offset:{(slot&1)*SLOT + (i&1)*2048}')
            off = (slot & 1) * SLOT + s * 4096
            o.append(f'ds_read_b64_tr_b16 {V(wf+b*16+i*4,2)}, {V(vWa+2*i+hi)} offset:{off}')
            o.append(f'ds_read_b64_tr_b16 {V(wf+b*16+i*4+2,2)}, {V(vWa+2*i+hi)} offset:{off+1024}')
        return o

    def statops(ks):
        b = ks % 2
        o = []
        for i in range(2):
            T_, W_ = V(tf + b * 16 + i * 4, 4), V(wf + b * 16 + i * 4, 4)
            for (d, x, y) in ((ssum + 4 * i, V(ones, 4), T_), (ssq + 4 * i, T_, T_), (csum + 4 * i, V(ones, 4), W_)):
                c = '0' if ks == 0 else V(d, 4)
                o.append(f'v_mfma_f32_16x16x32_bf16 {V(d,4)}, {x}, {y}, {c}')
        return o

    def mainloop(orient):
        pend = dma(2) + dma(3)
        k.wait_vm(['st0'])
        e('s_barrier')
        if orient == 0:
            stamp()
        for o in reads(0):
            e(o)
        for ks in range(18):
            b = ks % 2
            rd = []
            if ks + 1 < 18:
                if (ks + 1) % 2 == 0:
                    St = (ks + 1) // 2
                    assert not any(x[1] == f'st{St}' for g in pend for x in g)
                    k.wait_vm([f'st{St}'])
                    e('s_waitcnt lgkmcnt(0)')
                    e('s_barrier')
                    if St + 3 < 9:
                        pend += dma(St + 3)
                rd = reads(ks + 1)
            so = statops(ks)
            n = 0
            for i in range(4):
                for j in range(4):
                    a0 = acc + (i * 4 + j) * 4
                    c = '0' if ks == 0 else V(a0, 4)
                    T_, W_ = V(tf + b * 16 + i * 4, 4), V(wf + b * 16 + j * 4, 4)
                    if orient == 0:
                        e(f'v_mfma_f32_16x16x32_bf16 {V(a0,4)}, {W_}, {T_}, {c}')
                    else:
                        e(f'v_mfma_f32_16x16x32_bf16 {V(a0,4)}, {T_}, {W_}, {c}')
                    if rd:
                        e(rd.pop(0))
                    if n >= 10 and so:
                        e(so.pop(0))
                    if n % 2 == 1 and pend:
                        emit_group(pend.pop(0))
                    n += 1
            assert not so and not rd
        assert not pend

    def stats_addr():
        t = tmp
        e(f'''
        v_and_b32 {V(t)}, 15, v0
        v_lshlrev_b32 {V(t)}, 2, {V(t)}
        s_lshl_b32 {S(sT)}, {S(sTW)}, 8
        s_lshl_b32 {S(sT2)}, {S(sCW)}, 7
        s_add_u32 {S(sT)}, {S(sT)}, {S(sT2)}
        s_add_u32 {S(sT)}, {S(sT)}, {STL}
        v_add_u32 {V(adr)}, {S(sT)}, {V(t)}
        s_lshl_b32 {S(sT)}, {S(sCW)}, 8
        s_lshl_b32 {S(sT2)}, {S(sTW)}, 7
        s_add_u32 {S(sT)}, {S(sT)}, {S(sT2)}
        s_add_u32 {S(sT)}, {S(sT)}, {STL+1024}
        v_add_u32 {V(adr+1)}, {S(sT)}, {V(t)}
        ''')

    def stats_finish(store_mean=False):
        ops = [[], []]
        for i in range(2):
            m, v = ssum + 4 * i, ssq + 4 * i
            o = ops[i]
            for r in range(1, 4):
                o.append(f'v_cndmask_b32 {V(v)}, {V(v)}, {V(v+r)}, {S(sDiag+2*(r-1),2)}')
            o.append(f'v_mul_f32 {V(m)}, {F(1.0/576)}, {V(m)}')
            o.append(f'v_mov_b32 {V(m+1)}, {V(m)}')
            o.append(f'v_mul_f32 {V(v)}, {F(1.0/576)}, {V(v)}')
            o.append(f'v_fma_f32 {V(v)}, -{V(m)}, {V(m)}, {V(v)}')
            o.append(f'v_max_f32 {V(v)}, 0, {V(v)}')
            o += bf16_round(m, m) + bf16_round(v, v)
            o.append(f'v_add_f32 {V(v)}, {F(1e-5)}, {V(v)}')
            o += bf16_round(v, v)
            o.append(f'v_sqrt_f32 {V(v)}, {V(v)}')
            o += bf16_round(v, v)
            o.append(f'v_rcp_f32 {V(v)}, {V(v)}')
            o.append(f'v_sub_f32 {V(m)}, 0, {V(m)}')
        e('\n'.join(interleave(ops[0], ops[1])))
        e(f'''
        s_mov_b64 exec, {S(sDiag+6,2)}
        ds_write_b32 {V(adr)}, {V(ssum)}
        ds_write_b32 {V(adr)}, {V(ssum+4)} offset:64
        ds_write_b32 {V(adr)}, {V(ssq)} offset:512
        ds_write_b32 {V(adr)}, {V(ssq+4)} offset:576
        ds_write_b32 {V(adr+1)}, {V(csum)}
        ds_write_b32 {V(adr+1)}, {V(csum+4)} offset:64
        ''')
        if store_mean:
            e(f's_cmp_lg_u32 {S(sN)}, 0')
            e(f's_cbranch_scc1 L_{name}_nomx')
            k.opt(True)
            e(f's_lshl_b32 {S(sT)}, {S(sM)}, 9')
            e(f's_add_u32 {S(sT)}, {S(sT)}, {MX-STL}')
            e(f'buffer_store_dword {V(ssum+1)}, {V(adr)}, {S(srdS,4)}, {S(sT)} offen')
            e(f'buffer_store_dword {V(ssum+5)}, {V(adr)}, {S(srdS,4)}, {S(sT)} offen offset:64')
            k.opt(False)
            k.label(f'L_{name}_nomx')
        e(f'''
        s_mov_b64 exec, -1
        s_waitcnt lgkmcnt(0)
        s_barrier
        ''')

    e(f's_cmp_ge_u32 {S(sC64)}, 18')
    e(f's_cbranch_scc1 L_{name}_v')
    k.save_state()
    t = tmp + 40
    e(f'''
    s_cmp_ge_u32 {S(sC64)}, 9
    s_cselect_b32 {S(sSec)}, 9, 0
    s_cselect_b32 {S(sSt)}, {KF}, {QF}
    s_sub_u32 {S(sSec)}, {S(sC64)}, {S(sSec)}
    s_lshl_b32 {S(sSec)}, {S(sSec)}, 4
    s_lshl_b32 {S(sT)}, {S(sM)}, 3
    s_lshl_b32 {S(sT2)}, {S(sTW)}, 2
    s_add_u32 {S(sT)}, {S(sT)}, {S(sT2)}
    s_mul_i32 {S(sT)}, {S(sT)}, 576
    s_add_u32 {S(sSt)}, {S(sSt)}, {S(sT)}
    v_lshrrev_b32 {V(t)}, 4, v0
    v_add_u32 {V(t)}, {S(sSec)}, {V(t)}
    v_and_b32 {V(t+1)}, 15, v0
    s_lshl_b32 {S(sT)}, {S(sTW)}, 3
    ''')
    for j in range(4):
        e(f'''
        s_xor_b32 {S(sT2)}, {S(sT)}, {4*j}
        v_add_u32 {V(t+2)}, {S(sT2)}, {V(t)}
        v_mul_u32_u24 {V(t+3)}, 7282, {V(t+2)}
        v_lshrrev_b32 {V(t+3)}, 16, {V(t+3)}
        v_mul_u32_u24 {V(t+4)}, 9, {V(t+3)}
        v_sub_u32 {V(t+4)}, {V(t+2)}, {V(t+4)}
        v_cmp_lt_u32 vcc, 4, {V(t+4)}
        v_cmp_eq_u32 {S(sMask+2*j,2)}, 4, {V(t+4)}
        v_mul_u32_u24 {V(t+3)}, {2*128*576}, {V(t+3)}
        v_subrev_u32 {V(t+5)}, 5, {V(t+4)}
        v_cndmask_b32 {V(t+4)}, {V(t+4)}, {V(t+5)}, vcc
        v_add_u32 {V(t+5)}, {128*576}, {V(t+3)}
        v_cndmask_b32 {V(t+6)}, {V(t+3)}, {V(t+5)}, vcc
        v_lshrrev_b32 {V(t+7)}, 1, {V(t+4)}
        v_lshl_add_u32 {V(t+6)}, {V(t+7)}, 8, {V(t+6)}
        v_and_b32 {V(t+7)}, 1, {V(t+4)}
        v_lshl_add_u32 {V(t+6)}, {V(t+7)}, 3, {V(t+6)}
        v_lshl_add_u32 {V(t+6)}, {V(t+1)}, 4, {V(t+6)}
        v_lshl_add_u32 {V(t+3)}, {V(t+1)}, 2, {V(t+3)}
        v_add_u32 {V(t+3)}, 512, {V(t+3)}
        v_cndmask_b32 {V(t+8+2*j)}, {V(t+6)}, {V(t+3)}, {S(sMask+2*j,2)}
        v_add_u32 {V(t+9+2*j)}, {128*576}, {V(t+3)}
        ''')
    stats_addr()
    e(f'''
    v_and_b32 {V(tmp)}, 15, v0
    v_lshlrev_b32 {V(tmp)}, 2, {V(tmp)}
    s_lshl_b32 {S(sT)}, {S(sTW)}, 8
    s_lshl_b32 {S(sT2)}, {S(sCW)}, 7
    s_add_u32 {S(sT)}, {S(sT)}, {STL}
    s_add_u32 {S(sTmpO)}, {S(sT)}, {S(sT2)}
    v_add_u32 {V(adr+2)}, {S(sTmpO)}, {V(tmp)}
    s_sub_u32 {S(sT2)}, 128, {S(sT2)}
    s_add_u32 {S(sTmpO)}, {S(sT)}, {S(sT2)}
    v_add_u32 {V(adr+3)}, {S(sTmpO)}, {V(tmp)}
    v_lshrrev_b32 {V(tmp)}, 4, v0
    v_lshlrev_b32 {V(tmp)}, 4, {V(tmp)}
    s_lshl_b32 {S(sT)}, {S(sCW)}, 8
    s_lshl_b32 {S(sT2)}, {S(sTW)}, 7
    s_add_u32 {S(sT)}, {S(sT)}, {STL+1024}
    s_add_u32 {S(sTmpO)}, {S(sT)}, {S(sT2)}
    v_add_u32 {V(adr+4)}, {S(sTmpO)}, {V(tmp)}
    s_sub_u32 {S(sT2)}, 128, {S(sT2)}
    s_add_u32 {S(sTmpO)}, {S(sT)}, {S(sT2)}
    v_add_u32 {V(adr+5)}, {S(sTmpO)}, {V(tmp)}
    ''')
    mainloop(0)
    stamp()
    aQ = t + 8
    stats_finish(True)
    st = tmp
    for i in range(4):
        va = adr + 2 + (i >> 1)
        e(f'ds_read_b32 {V(st+i)}, {V(va)} offset:{(i&1)*64}')
        e(f'ds_read_b32 {V(st+4+i)}, {V(va)} offset:{512+(i&1)*64}')
    for j in range(4):
        va = adr + 4 + (j >> 1)
        e(f'ds_read_b128 {V(st+8+4*j,4)}, {V(va)} offset:{(j&1)*64}')
    e(f's_cmp_ge_u32 {S(sC64)}, 9')
    e(f's_cselect_b32 {S(sT)}, 1.0, {F(QSCALE)}')
    for i in range(4):
        e(f'v_mul_f32 {V(st+4+i)}, {S(sT)}, {V(st+4+i)}')
    e(f'''
    s_mul_i32 {S(sT)}, {S(sCW)}, {2*576}
    s_add_u32 {S(sO0)}, {S(sSt)}, {S(sT)}
    s_sub_u32 {S(sT)}, {2*576}, {S(sT)}
    s_add_u32 {S(sO1)}, {S(sSt)}, {S(sT)}
    ''')
    for j in range(4):
        for i in range(4):
            a0 = acc + (i * 4 + j) * 4
            for r in range(4):
                e(f'v_fma_f32 {V(a0+r)}, {V(st+8+4*j+r)}, {V(st+i)}, {V(a0+r)}')
            for r in range(4):
                e(f'v_mul_f32 {V(a0+r)}, {V(a0+r)}, {V(st+4+i)}')
            e(f'v_cvt_pk_bf16_f32 {V(a0)}, {V(a0)}, {V(a0+1)}')
            e(f'v_cvt_pk_bf16_f32 {V(a0+1)}, {V(a0+2)}, {V(a0+3)}')
        e(f's_andn2_b64 exec, -1, {S(sMask+2*j,2)}')
        for i in range(4):
            a0 = acc + (i * 4 + j) * 4
            so_ = sO0 if i < 2 else sO1
            e(f'buffer_store_dwordx2 {V(a0,2)}, {V(aQ+2*j)}, {S(srdS,4)}, {S(so_)} offen offset:{(i&1)*576}')
        e(f's_mov_b64 exec, {S(sMask+2*j,2)}')
        e(f's_cbranch_execz L_{name}_ns{j}')
        k.opt(True)
        for i in range(4):
            a0 = acc + (i * 4 + j) * 4
            so_ = sO0 if i < 2 else sO1
            e(f'buffer_store_dword {V(a0)}, {V(aQ+2*j)}, {S(srdS,4)}, {S(so_)} offen offset:{(i&1)*576}')
            e(f'buffer_store_dword {V(a0+1)}, {V(aQ+2*j+1)}, {S(srdS,4)}, {S(so_)} offen offset:{(i&1)*576}')
        k.opt(False)
        k.label(f'L_{name}_ns{j}')
        e('s_mov_b64 exec, -1')
    if stamps:
        stamp()
        e('s_waitcnt vmcnt(0)')
        stamp()
        emit_stamp_dump(k, e, sStamp, nst, srdW, s_x, sT, sW, tmp, int(stamps) - 1)
    e('s_endpgm')

    k.label(f'L_{name}_v')
    k.reset_state()
    t = tmp + 40
    e(f'''
    s_sub_u32 {S(sSec)}, {S(sC64)}, 18
    s_lshl_b32 {S(sSec)}, {S(sSec)}, 6
    v_and_b32 {V(t)}, 15, v0
    v_add_u32 {V(t)}, {S(sSec)}, {V(t)}
    v_lshrrev_b32 {V(t+1)}, 4, v0
    s_lshl_b32 {S(sT)}, {S(sTW)}, 5
    s_lshl_b32 {S(sSt)}, {S(sM)}, 2
    s_lshl_b32 {S(sT2)}, {S(sTW)}, 1
    s_add_u32 {S(sSt)}, {S(sSt)}, {S(sT2)}
    s_add_u32 {S(sO0)}, {S(sSt)}, {S(sCW)}
    s_sub_u32 {S(sO1)}, 1, {S(sCW)}
    s_add_u32 {S(sO1)}, {S(sO1)}, {S(sSt)}
    ''')
    for j in range(4):
        e(f'''
        s_xor_b32 {S(sT2)}, {S(sT)}, {16*j}
        v_add_u32 {V(t+2)}, {S(sT2)}, {V(t)}
        v_mul_u32_u24 {V(t+3)}, 3641, {V(t+2)}
        v_lshrrev_b32 {V(t+3)}, 16, {V(t+3)}
        v_mul_u32_u24 {V(t+4)}, 18, {V(t+3)}
        v_sub_u32 {V(t+4)}, {V(t+2)}, {V(t+4)}
        v_cmp_lt_u32 vcc, 15, {V(t+4)}
        v_lshlrev_b32 {V(t+3)}, 6, {V(t+3)}
        ''')
        for c in range(2):
            sc = sO0 if c == 0 else sO1
            e(f'''
            v_add_u32 {V(t+5)}, {S(sc)}, {V(t+3)}
            v_lshlrev_b32 {V(t+6)}, 10, {V(t+5)}
            v_lshl_add_u32 {V(t+6)}, {V(t+1)}, 8, {V(t+6)}
            v_lshl_add_u32 {V(t+6)}, {V(t+4)}, 4, {V(t+6)}
            v_add_u32 {V(t+6)}, {VF}, {V(t+6)}
            v_lshlrev_b32 {V(t+7)}, 7, {V(t+5)}
            v_lshl_add_u32 {V(t+7)}, {V(t+1)}, 5, {V(t+7)}
            v_lshl_add_u32 {V(t+7)}, {V(t+4)}, 4, {V(t+7)}
            v_add_u32 {V(t+7)}, {VT-256}, {V(t+7)}
            v_cndmask_b32 {V(t+8+2*j+c)}, {V(t+6)}, {V(t+7)}, vcc
            ''')
    stats_addr()
    e(f'''
    v_lshrrev_b32 {V(tmp)}, 4, v0
    v_lshlrev_b32 {V(tmp)}, 4, {V(tmp)}
    s_lshl_b32 {S(sT)}, {S(sTW)}, 8
    s_lshl_b32 {S(sT2)}, {S(sCW)}, 7
    s_add_u32 {S(sT)}, {S(sT)}, {STL}
    s_add_u32 {S(sTmpO)}, {S(sT)}, {S(sT2)}
    v_add_u32 {V(adr+2)}, {S(sTmpO)}, {V(tmp)}
    s_sub_u32 {S(sT2)}, 128, {S(sT2)}
    s_add_u32 {S(sTmpO)}, {S(sT)}, {S(sT2)}
    v_add_u32 {V(adr+3)}, {S(sTmpO)}, {V(tmp)}
    v_and_b32 {V(tmp)}, 15, v0
    v_lshlrev_b32 {V(tmp)}, 2, {V(tmp)}
    s_lshl_b32 {S(sT)}, {S(sCW)}, 8
    s_lshl_b32 {S(sT2)}, {S(sTW)}, 7
    s_add_u32 {S(sT)}, {S(sT)}, {STL+1024}
    s_add_u32 {S(sTmpO)}, {S(sT)}, {S(sT2)}
    v_add_u32 {V(adr+4)}, {S(sTmpO)}, {V(tmp)}
    s_sub_u32 {S(sT2)}, 128, {S(sT2)}
    s_add_u32 {S(sTmpO)}, {S(sT)}, {S(sT2)}
    v_add_u32 {V(adr+5)}, {S(sTmpO)}, {V(tmp)}
    ''')
    mainloop(1)
    aV = t + 8
    stats_finish()
    e(f's_cmp_ge_u32 {S(sC64)}, 27')
    e(f's_cbranch_scc1 L_{name}_x')
    st = tmp
    for i in range(4):
        va = adr + 2 + (i >> 1)
        e(f'ds_read_b128 {V(st+4*i,4)}, {V(va)} offset:{(i&1)*64}')
        e(f'ds_read_b128 {V(st+16+4*i,4)}, {V(va)} offset:{512+(i&1)*64}')
    for j in range(4):
        va = adr + 4 + (j >> 1)
        e(f'ds_read_b32 {V(st+32+j)}, {V(va)} offset:{(j&1)*64}')
    for j in range(4):
        for c in range(2):
            pk = wf + (j * 2 + c) * 4
            for hf in range(2):
                i = 2 * c + hf
                a0 = acc + (i * 4 + j) * 4
                for r in range(4):
                    e(f'v_fma_f32 {V(a0+r)}, {V(st+32+j)}, {V(st+4*i+r)}, {V(a0+r)}')
                for r in range(4):
                    e(f'v_mul_f32 {V(a0+r)}, {V(a0+r)}, {V(st+16+4*i+r)}')
                e(f'v_cvt_pk_bf16_f32 {V(pk+2*hf)}, {V(a0)}, {V(a0+1)}')
                e(f'v_cvt_pk_bf16_f32 {V(pk+2*hf+1)}, {V(a0+2)}, {V(a0+3)}')
            e(f'buffer_store_dwordx4 {V(pk,4)}, {V(aV+2*j+c)}, {S(srdS,4)}, 0 offen')
    k.label(f'L_{name}_x')
    e('s_endpgm')
    k.label(f'L_{name}_pf')
    k.clear_state()
    e(f'''
    s_load_dwordx2 {S(s_x,2)}, s[0:1], {KA_WO}
    s_load_dwordx2 {S(s_ws,2)}, s[0:1], {KA_WS}
    s_sub_u32 {S(sT)}, s2, 224
    s_lshl_b32 {S(sT)}, {S(sT)}, 2
    s_add_u32 {S(sT)}, {S(sT)}, {S(sW)}
    s_cmp_ge_u32 {S(sT)}, 72
    s_cbranch_scc1 L_{name}_x
    v_lshrrev_b32 v1, 3, v0
    v_mul_u32_u24 v2, 1152, v1
    v_and_b32 v3, 7, v0
    v_lshl_add_u32 v2, v3, 4, v2
    s_mul_i32 {S(sT2)}, {S(sT)}, {8*1152}
    s_waitcnt lgkmcnt(0)
    s_mov_b32 {S(srdX)}, {S(s_x)}
    s_mov_b32 {S(srdX+1)}, {S(s_x+1)}
    s_mov_b32 {S(srdX+2)}, {576*1152}
    s_mov_b32 {S(srdX+3)}, 0x00020000
    s_mov_b32 {S(srdS)}, {S(s_ws)}
    s_mov_b32 {S(srdS+1)}, {S(s_ws+1)}
    s_mov_b32 {S(srdS+2)}, {WS_USED}
    s_mov_b32 {S(srdS+3)}, 0x00020000
    ''')
    for i in range(9):
        e(f'buffer_load_dwordx4 {V(16+4*i,4)}, v2, {S(srdX,4)}, {S(sT2)} offen offset:{i*128}')
    e(f'''
    s_lshl_b32 {S(sT)}, {S(sT)}, 3
    v_add_u32 v1, {S(sT)}, v1
    v_lshrrev_b32 v4, 5, v1
    v_lshlrev_b32 v5, 6, v4
    v_bfe_u32 v4, v1, 2, 2
    v_lshl_add_u32 v5, v4, 4, v5
    v_bfe_u32 v4, v1, 4, 1
    v_lshl_add_u32 v5, v4, 3, v5
    v_and_b32 v4, 3, v1
    v_lshl_add_u32 v5, v4, 1, v5
    v_add_u32 v5, {WB}, v5
    v_mov_b32 v6, 0
    v_mov_b32 v7, 0
    v_cmp_eq_u32 {S(sMask,2)}, 0, v3
    ''')
    for i in range(36):
        e(f'v_lshlrev_b32 v8, 16, {V(16+i)}')
        e(f'v_and_b32 v9, 0xffff0000, {V(16+i)}')
        e(f'v_add_f32 v6, v6, v8')
        e(f'v_add_f32 v7, v7, v9')
    e(f'''
    v_add_f32 v6, v6, v7
    v_add_f32_dpp v7, v6, v6 quad_perm:[1,0,3,2] row_mask:0xf bank_mask:0xf
    v_add_f32_dpp v6, v7, v7 quad_perm:[2,3,0,1] row_mask:0xf bank_mask:0xf
    v_add_f32_dpp v7, v6, v6 row_half_mirror row_mask:0xf bank_mask:0xf
    v_mul_f32 v7, {F(1.0/576)}, v7
    v_cvt_pk_bf16_f32 v8, v7, v7
    v_lshlrev_b32 v9, 16, v8
    v_sub_f32 v7, v7, v9
    v_cvt_pk_bf16_f32 v9, v7, v7
    s_mov_b64 exec, {S(sMask,2)}
    buffer_store_short v8, v5, {S(srdS,4)}, 0 offen
    buffer_store_short v9, v5, {S(srdS,4)}, 0 offen offset:1152
    s_endpgm
    ''')
    return k
```

```python
from asmb import *
from layout import *
from k4 import F
from k4 import emit_stamp_dump
from pf import pf_gate_up

NEG_BIG = 0xFF7FFFFF


def row_max(x, t):
    return [f'v_mov_b32 {V(t)}, {V(x)}',
            f'v_permlane16_swap_b32 {V(x)}, {V(t)}',
            f'v_max_f32 {V(x)}, {V(x)}, {V(t)}',
            f'v_mov_b32 {V(t)}, {V(x)}',
            f'v_permlane32_swap_b32 {V(x)}, {V(t)}',
            f'v_max_f32 {V(x)}, {V(x)}, {V(t)}']


def build_k2(name='k2_kernel', stamps=False, colsum=False, prefetch=True, pf_n=2, pf_lanes=45, pf_late=True):
    k = Kernel(name)
    k.lds = 1024
    k.ns = 3
    s_ws = k.s(2, 2)
    s_wg = k.s(4, 4)
    srdS = k.s(4, 4)
    srdW = k.s(4, 4)
    sW = k.s(); sH = k.s(); sQB = k.s(); sT = k.s(); sT2 = k.s()
    sK = k.s(3); sQ = k.s(); sV = k.s(3); sV2 = k.s(); sO = k.s()
    sB = k.s(4)
    s_p8 = k.s(8, 4); srdP = k.s(8, 4)
    k.nv = 1
    vL16 = k.v(); vTail = k.v(); vV2 = k.v()
    vO = k.v(3)
    mdiag = k.v(4, 4); mfirst = k.v(4, 4)
    cq = k.v(12, 4)
    NS = 6
    sb = k.v(NS * 4, 4)
    pb = k.v(8, 4)
    o1 = k.v(4, 4); o2 = k.v(4, 4)
    vm = k.v(2)
    tmp = k.v(8, 4)
    vP = k.v(7)
    ores = k.v(12)
    Kf = k.a(80, 4); V1 = k.a(40, 4); V2 = k.a(40, 4); Qf = k.a(16, 4)
    e = k.e
    sStamp = k.s(24, 2) if stamps else None
    nst = [0]

    def stamp():
        if stamps:
            e(f's_memtime {S(sStamp + 2*nst[0], 2)}'); e('s_waitcnt lgkmcnt(0)'); nst[0] += 1
    e(f'''
    s_cmp_ge_u32 s2, 256
    s_cbranch_scc1 L_{name}_cs
    s_load_dwordx2 {S(s_ws,2)}, s[0:1], {KA_WS}
    s_load_dwordx8 {S(s_p8,8)}, s[0:1], {KA_WO}
    v_lshrrev_b32 {V(tmp)}, 6, v0
    v_and_b32 v0, 63, v0
    v_readfirstlane_b32 {S(sW)}, {V(tmp)}
    v_lshlrev_b32 {V(vL16)}, 4, v0
    s_and_b32 {S(sT)}, s2, 7
    s_lshr_b32 {S(sT2)}, s2, 3
    s_lshl_b32 {S(sH)}, {S(sT)}, 2
    s_and_b32 {S(sT)}, {S(sT2)}, 3
    s_add_u32 {S(sH)}, {S(sH)}, {S(sT)}
    s_lshr_b32 {S(sQB)}, {S(sT2)}, 2
    s_lshl_b32 {S(sQB)}, {S(sQB)}, 2
    s_add_u32 {S(sQB)}, {S(sQB)}, {S(sW)}
    ''')
    stamp()
    if stamps:
        e(f's_memrealtime {S(sStamp+20,2)}')
    e(f'''
    s_lshl_b32 {S(sT)}, {S(sH)}, 7
    s_lshl_b32 {S(sT2)}, {S(sQB)}, 2
    s_add_u32 {S(sT)}, {S(sT)}, {S(sT2)}
    s_mul_i32 {S(sQ)}, {S(sT)}, 576
    s_add_u32 {S(sK)}, {S(sQ)}, {KF - 16*576}
    s_add_u32 {S(sK+1)}, {S(sK)}, {7*576}
    s_add_u32 {S(sK+2)}, {S(sK)}, {14*576}
    s_add_u32 {S(sQ)}, {S(sQ)}, {QF}
    s_lshr_b32 {S(sT)}, {S(sT)}, 1
    s_lshl_b32 {S(sV)}, {S(sT)}, 10
    s_add_u32 {S(sV)}, {S(sV)}, {VF - 8*1024}
    s_add_u32 {S(sV+1)}, {S(sV)}, 4096
    s_add_u32 {S(sV+2)}, {S(sV)}, 8192
    s_lshl_b32 {S(sV2)}, {S(sT)}, 7
    s_add_u32 {S(sV2)}, {S(sV2)}, {VT - 8*128}
    s_mul_i32 {S(sO)}, {S(sQB)}, {4*18*1024}
    s_add_u32 {S(sO)}, {S(sO)}, {OF}
    v_lshlrev_b32 {V(vTail)}, 2, v0
    v_add_u32 {V(vTail)}, {512-128}, {V(vTail)}
    v_lshrrev_b32 {V(tmp)}, 4, v0
    v_lshlrev_b32 {V(vV2)}, 5, {V(tmp)}
    v_and_b32 {V(tmp+1)}, 1, v0
    v_lshl_add_u32 {V(vV2)}, {V(tmp+1)}, 4, {V(vV2)}
    ''')
    for gI in range(4):
        e(f's_cmp_ge_u32 {S(sQB)}, {4-gI}')
        e(f's_cselect_b32 {S(sB+gI)}, 0, 0xff7f')
    e(f'v_mov_b32 {V(tmp+2)}, 0')
    e(f'v_mov_b32 {V(tmp+3)}, 0x3f80')
    e(f'v_cmp_gt_u32 vcc, 48, v0')
    e(f'v_cndmask_b32 {V(tmp+3)}, 0, {V(tmp+3)}, vcc')
    for j in range(4):
        e(f'v_accvgpr_write_b32 {A(Qf+4*j)}, {V(tmp+2)}')
        e(f'v_accvgpr_write_b32 {A(Qf+4*j+1)}, {V(tmp+3)}')
        e(f'v_accvgpr_write_b32 {A(Qf+4*j+2)}, {V(tmp+2)}')
        e(f'v_accvgpr_write_b32 {A(Qf+4*j+3)}, {V(tmp+2)}')
    for gI in range(5):
        if gI < 4:
            e(f'v_mov_b32 {V(tmp+3)}, {S(sB+gI)}')
        for i in range(4 * gI, 4 * gI + 4):
            e(f'v_accvgpr_write_b32 {A(Kf+4*i)}, {V(tmp+2)}')
            e(f'v_accvgpr_write_b32 {A(Kf+4*i+1)}, {V(tmp+3 if gI < 4 else tmp+2)}')
            e(f'v_accvgpr_write_b32 {A(Kf+4*i+2)}, {V(tmp+2)}')
            e(f'v_accvgpr_write_b32 {A(Kf+4*i+3)}, {V(tmp+2)}')
    e(f'''
    s_waitcnt lgkmcnt(0)
    s_mov_b32 {S(srdS)}, {S(s_ws)}
    s_mov_b32 {S(srdS+1)}, {S(s_ws+1)}
    s_mov_b32 {S(srdS+2)}, {WS_USED}
    s_mov_b32 {S(srdS+3)}, 0x00020000
    ''')

    def ldK(i, tail):
        so, off = sK + i // 7, (i % 7) * 576
        if tail:
            return f'buffer_load_dword {A(Kf+4*i)}, {V(vTail)}, {S(srdS,4)}, {S(so)} offen offset:{off}'
        return f'buffer_load_dwordx4 {A(Kf+4*i,4)}, {V(vL16)}, {S(srdS,4)}, {S(so)} offen offset:{off}'

    def ldQ(j, tail):
        if tail:
            return f'buffer_load_dword {A(Qf+4*j)}, {V(vTail)}, {S(srdS,4)}, {S(sQ)} offen offset:{j*576}'
        return f'buffer_load_dwordx4 {A(Qf+4*j,4)}, {V(vL16)}, {S(srdS,4)}, {S(sQ)} offen offset:{j*576}'

    def ldV1(c):
        return f'buffer_load_dwordx4 {A(V1+4*c,4)}, {V(vL16)}, {S(srdS,4)}, {S(sV + c//4)} offen offset:{(c%4)*1024}'

    def ldV2(c):
        return f'buffer_load_dwordx4 {A(V2+4*c,4)}, {V(vV2)}, {S(srdS,4)}, {S(sV2)} offen offset:{c*128}'
    EX_LO = 's_mov_b64 exec, 0xffffffff'
    EX_ALL = 's_mov_b64 exec, -1'
    sEx = k.s(4, 2)
    e(f's_mov_b32 {S(sEx)}, 0'); e(f's_mov_b32 {S(sEx+1)}, 0xffff')
    e(f's_mov_b32 {S(sEx+2)}, 0x00030003'); e(f's_mov_b32 {S(sEx+3)}, 0x00030003')
    EX_TAIL = f's_mov_b64 exec, {S(sEx,2)}'
    EX_V2 = f's_mov_b64 exec, {S(sEx+2,2)}'
    e(EX_LO)
    e(ldQ(0, False))
    for i in range(17):
        e(ldK(i, False))
    e(EX_TAIL)
    e(ldQ(0, True))
    for i in range(17):
        e(ldK(i, True))
    e(EX_ALL)
    e(f'v_mov_b32 {V(tmp+3)}, 0x3f803f80')
    for i in range(40):
        e(f'v_accvgpr_write_b32 {A(V2+i)}, {V(tmp+3)}')
    for c in range(9):
        e(ldV1(c))
    e(EX_V2)
    for c in range(9):
        e(ldV2(c))
    e(EX_ALL)
    e(f'''
    v_lshrrev_b32 {V(tmp)}, 4, v0
    v_lshlrev_b32 {V(tmp)}, 2, {V(tmp)}
    v_and_b32 {V(tmp+1)}, 15, v0
    v_mov_b32 {V(tmp+2)}, {hex(NEG_BIG)}
    ''')
    for r in range(4):
        e(f'v_add_u32 {V(tmp+3)}, {r}, {V(tmp)}')
        e(f'v_cmp_gt_u32 vcc, {V(tmp+3)}, {V(tmp+1)}')
        e(f'v_cndmask_b32 {V(mdiag+r)}, 0, {V(tmp+2)}, vcc')
        e(f'v_cndmask_b32 {V(mfirst+r)}, {V(tmp+2)}, {V(tmp+4)}, vcc' if False else f'v_sub_f32 {V(mfirst+r)}, {V(tmp+2)}, {V(mdiag+r)}')
    e(f's_mul_i32 {S(sT)}, {S(sH)}, 18')
    for i in range(3):
        if i < 2:
            e(f'v_add_u32 {V(tmp+3)}, {S(sT)}, {V(tmp)}')
            if i:
                e(f'v_add_u32 {V(tmp+3)}, 2, {V(tmp+3)}')
        else:
            e(f's_add_u32 {S(sT)}, {S(sT)}, 16')
            e(f'v_mov_b32 {V(tmp+3)}, {S(sT)}')
        e(f'''
        v_lshrrev_b32 {V(tmp+4)}, 5, {V(tmp+3)}
        v_lshlrev_b32 {V(vO+i)}, 10, {V(tmp+4)}
        v_bfe_u32 {V(tmp+4)}, {V(tmp+3)}, 2, 2
        v_lshl_add_u32 {V(vO+i)}, {V(tmp+4)}, 8, {V(vO+i)}
        v_lshl_add_u32 {V(vO+i)}, {V(tmp+1)}, 4, {V(vO+i)}
        v_bfe_u32 {V(tmp+4)}, {V(tmp+3)}, 4, 1
        v_lshl_add_u32 {V(vO+i)}, {V(tmp+4)}, 3, {V(vO+i)}
        v_bfe_u32 {V(tmp+4)}, {V(tmp+3)}, 1, 1
        v_lshl_add_u32 {V(vO+i)}, {V(tmp+4)}, 2, {V(vO+i)}
        ''')
    late = [EX_LO] + [ldQ(j, False) for j in (1, 2, 3)] + [ldK(i, False) for i in (17, 18, 19)] + \
           [EX_TAIL] + [ldQ(j, True) for j in (1, 2, 3)] + [ldK(i, True) for i in (17, 18, 19)] + \
           [EX_V2, ldV2(9), EX_ALL, ldV1(9)]
    if prefetch:
        su, pl = pf_gate_up(k, sW, s_p8, srdP, sT, sT2, vP, pf_n, pf_lanes)
        e(su)
        if not pf_late:
            late += pl; pl = []

    stamp()
    sidx = [0]

    def pass1(j):
        ops = []
        pendv = []
        for i in range(17):
            b = sb + (sidx[0] % NS) * 4; sidx[0] += 1
            c = V(mfirst, 4) if i == 0 else V(mdiag, 4) if i == 16 else '0'
            ops.append(f'v_mfma_f32_16x16x32_bf16 {V(b,4)}, {A(Kf+4*(j+i),4)}, {A(Qf+4*j,4)}, {c}')
            m = vm + (i & 1)
            if i < 2:
                va = [f'v_max3_f32 {V(m)}, {V(b)}, {V(b+1)}, {V(b+2)}', f'v_max_f32 {V(m)}, {V(m)}, {V(b+3)}']
            else:
                va = [f'v_max3_f32 {V(m)}, {V(m)}, {V(b)}, {V(b+1)}', f'v_max3_f32 {V(m)}, {V(m)}, {V(b+2)}, {V(b+3)}']
            pendv.append(va)
            if len(pendv) > 3:
                ops += pendv.pop(0)
        for va in pendv:
            ops += va
        ops.append(f'v_max_f32 {V(vm)}, {V(vm)}, {V(vm+1)}')
        ops += row_max(vm, tmp)
        for r in range(4):
            ops.append(f'v_sub_f32 {V(cq+r)}, 0, {V(vm)}')
        for r in range(4):
            ops.append(f'v_sub_f32 {V(cq+4+r)}, {V(mdiag+r)}, {V(vm)}')
            ops.append(f'v_sub_f32 {V(cq+8+r)}, {V(mfirst+r)}, {V(vm)}')
        return ops

    def pass2(j):
        ops = []
        c0 = j // 2
        stages = []
        for ci in range(9):
            c = c0 + ci
            sm, va = [], []
            p = pb + (ci % 2) * 4
            for hf in range(2):
                kb = 2 * c + hf
                i = kb - j
                if i < 0 or i > 16:
                    va += [f'v_mov_b32 {V(p+2*hf)}, 0', f'v_mov_b32 {V(p+2*hf+1)}, 0']
                    continue
                b = sb + (sidx[0] % NS) * 4; sidx[0] += 1
                cc = cq + (8 if i == 0 else 4 if i == 16 else 0)
                sm.append(f'v_mfma_f32_16x16x32_bf16 {V(b,4)}, {A(Kf+4*kb,4)}, {A(Qf+4*j,4)}, {V(cc,4)}')
                va += [f'v_exp_f32 {V(b+r)}, {V(b+r)}' for r in range(4)]
                va += [f'v_cvt_pk_bf16_f32 {V(p+2*hf+q)}, {V(b+2*q)}, {V(b+2*q+1)}' for q in range(2)]
            ca = '0' if ci == 0 else V(o1, 4)
            cb = '0' if ci == 0 else V(o2, 4)
            pv = [f'v_mfma_f32_16x16x32_bf16 {V(o1,4)}, {A(V1+4*c,4)}, {V(p,4)}, {ca}',
                  f'v_mfma_f32_16x16x32_bf16 {V(o2,4)}, {A(V2+4*c,4)}, {V(p,4)}, {cb}']
            stages.append((sm, va, pv))
        ops += stages[0][0]
        for ci in range(9):
            if ci + 1 < 9:
                ops += stages[ci + 1][0]
            va = list(stages[ci][1])
            if ci > 0:
                ops += va[:2] + stages[ci - 1][2] + va[2:]
            else:
                ops += va
        ops += ['s_nop 1'] + stages[8][2]
        return ops

    def final(j):
        t = tmp
        r0 = ores + 3 * j
        ops = [f'v_rcp_f32 {V(t)}, {V(o2+2)}']
        ops += [f'v_mul_f32 {V(o1+r)}, {V(o1+r)}, {V(t)}' for r in range(4)]
        ops += [f'v_mul_f32 {V(o2+r)}, {V(o2+r)}, {V(t)}' for r in range(2)]
        ops += [f'v_cvt_pk_bf16_f32 {V(r0)}, {V(o1)}, {V(o1+1)}', f'v_cvt_pk_bf16_f32 {V(r0+1)}, {V(o1+2)}, {V(o1+3)}',
                f'v_cvt_pk_bf16_f32 {V(r0+2)}, {V(o2)}, {V(o2+1)}']
        return ops

    def stores():
        ops = []
        for j in range(4):
            ops.append(f's_add_u32 {S(sK+0)}, {S(sO)}, {18*1024*j}')
            ops += [f'buffer_store_dword {V(ores+3*j)}, {V(vO)}, {S(srdS,4)}, {S(sK)} offen',
                    f'buffer_store_dword {V(ores+3*j+1)}, {V(vO+1)}, {S(srdS,4)}, {S(sK)} offen']
        ops.append('s_mov_b64 exec, 0xffff')
        for j in range(4):
            ops.append(f's_add_u32 {S(sK+0)}, {S(sO)}, {18*1024*j}')
            ops.append(f'buffer_store_dword {V(ores+3*j+2)}, {V(vO+2)}, {S(srdS,4)}, {S(sK)} offen')
        ops.append(EX_ALL)
        return ops

    for j in range(4):
        p1 = pass1(j)
        if j == 0:
            e('\n'.join(p1[:12])); e('\n'.join(late)); e('\n'.join(p1[12:]))
        else:
            fin = final(j - 1)
            e('\n'.join(p1[:4])); e('\n'.join(fin)); e('\n'.join(p1[4:]))
        if j == 0:
            stamp()
        e('\n'.join(pass2(j)))
        if j == 0:
            stamp()
            if prefetch and pl:
                e('s_waitcnt vmcnt(0)')
                e('\n'.join(pl))
    e('\n'.join(final(3)))
    e('\n'.join(stores()))
    if stamps:
        stamp()
        e('s_waitcnt vmcnt(0)')
        stamp()
        emit_stamp_dump(k, e, sStamp, nst, srdW, s_wg, sT, sW, tmp, int(stamps) - 1)
    e('s_endpgm')

    k.label(f'L_{name}_cs')
    if not colsum:
        e('s_endpgm')
        return k
    ld = 4
    e(f'''
    s_sub_u32 {S(sT)}, s2, 256
    s_cmp_ge_u32 {S(sT)}, 144
    s_cbranch_scc1 L_{name}_end
    s_load_dwordx2 {S(s_ws,2)}, s[0:1], {KA_WS}
    s_load_dwordx4 {S(s_wg,4)}, s[0:1], {KA_WG}
    v_lshrrev_b32 v1, 6, v0
    v_and_b32 v0, 63, v0
    v_readfirstlane_b32 {S(sW)}, v1
    s_and_b32 {S(sT2)}, {S(sT)}, 3
    s_mul_i32 {S(sT2)}, {S(sT2)}, 18
    s_lshr_b32 {S(sH)}, {S(sT)}, 3
    s_add_u32 {S(sT2)}, {S(sT2)}, {S(sH)}
    s_bfe_u32 {S(sH)}, {S(sT)}, 0x10002
    v_lshrrev_b32 v1, 3, v0
    v_mul_u32_u24 v1, 9216, v1
    v_and_b32 v2, 7, v0
    v_lshl_add_u32 v1, v2, 4, v1
    s_mul_i32 {S(sQ)}, {S(sW)}, {144*9216}
    s_lshl_b32 {S(sT)}, {S(sT2)}, 7
    s_add_u32 {S(sQ)}, {S(sQ)}, {S(sT)}
    s_waitcnt lgkmcnt(0)
    s_cmp_eq_u32 {S(sH)}, 0
    s_cselect_b32 {S(srdW)}, {S(s_wg)}, {S(s_wg+2)}
    s_cselect_b32 {S(srdW+1)}, {S(s_wg+1)}, {S(s_wg+3)}
    s_mov_b32 {S(srdW+2)}, {576*9216}
    s_mov_b32 {S(srdW+3)}, 0x00020000
    s_mov_b32 {S(srdS)}, {S(s_ws)}
    s_mov_b32 {S(srdS+1)}, {S(s_ws+1)}
    s_mov_b32 {S(srdS+2)}, {WS_USED}
    s_mov_b32 {S(srdS+3)}, 0x00020000
    ''')
    for i in range(18):
        e(f'buffer_load_dwordx4 {A(4*i,4)}, v1, {S(srdW,4)}, {S(sQ)} offen')
        if i < 17:
            e(f's_add_u32 {S(sQ)}, {S(sQ)}, {8*9216}')
    ac = 8
    for q in range(8):
        e(f'v_mov_b32 {V(ac+q)}, 0')
    for i in range(18):
        for q in range(4):
            e(f'v_accvgpr_read_b32 {V(16+q)}, {A(4*i+q)}')
        for q in range(4):
            e(f'v_lshlrev_b32 {V(20+q)}, 16, {V(16+q)}')
            e(f'v_and_b32 {V(16+q)}, 0xffff0000, {V(16+q)}')
        for q in range(4):
            e(f'v_add_f32 {V(ac+2*q)}, {V(ac+2*q)}, {V(20+q)}')
            e(f'v_add_f32 {V(ac+2*q+1)}, {V(ac+2*q+1)}, {V(16+q)}')
    for q in range(8):
        e(f'v_add_f32_dpp {V(16+q)}, {V(ac+q)}, {V(ac+q)} row_ror:8 row_mask:0xf bank_mask:0xf')
    for q in range(8):
        x, t = 16 + q, 24 + q
        e(f'''
        v_mov_b32 {V(t)}, {V(x)}
        v_permlane16_swap_b32 {V(x)}, {V(t)}
        v_add_f32 {V(x)}, {V(x)}, {V(t)}
        v_mov_b32 {V(t)}, {V(x)}
        v_permlane32_swap_b32 {V(x)}, {V(t)}
        v_add_f32 {V(x)}, {V(x)}, {V(t)}
        ''')
    e(f'''
    v_lshlrev_b32 v1, 5, v2
    s_lshl_b32 {S(sT)}, {S(sW)}, 8
    v_add_u32 v1, {S(sT)}, v1
    s_mov_b64 exec, 0xff
    ds_write_b128 v1, v[16:19]
    ds_write_b128 v1, v[20:23] offset:16
    s_mov_b64 exec, -1
    s_waitcnt lgkmcnt(0)
    s_barrier
    s_cmp_lg_u32 {S(sW)}, 0
    s_cbranch_scc1 L_{name}_end
    v_lshlrev_b32 v1, 2, v0
    ds_read_b32 v4, v1
    ds_read_b32 v5, v1 offset:256
    ds_read_b32 v6, v1 offset:512
    ds_read_b32 v7, v1 offset:768
    s_mul_i32 {S(sT)}, {S(sH)}, {4608*4}
    s_lshl_b32 {S(sT2)}, {S(sT2)}, 8
    s_add_u32 {S(sT)}, {S(sT)}, {S(sT2)}
    s_add_u32 {S(sT)}, {S(sT)}, {CS}
    v_add_f32 v4, v4, v5
    v_add_f32 v6, v6, v7
    v_add_f32 v4, v4, v6
    buffer_store_dword v4, v1, {S(srdS,4)}, {S(sT)} offen
    ''')
    k.label(f'L_{name}_end')
    e('s_endpgm')
    return k
```

```python
from asmb import *
from layout import *
from k4 import F, bf16_round
from k4 import emit_stamp_dump


def row_reduce(x, t):
    return [f'v_mov_b32 {V(t)}, {V(x)}',
            f'v_permlane16_swap_b32 {V(x)}, {V(t)}',
            f'v_add_f32 {V(x)}, {V(x)}, {V(t)}',
            f'v_mov_b32 {V(t)}, {V(x)}',
            f'v_permlane32_swap_b32 {V(x)}, {V(t)}',
            f'v_add_f32 {V(x)}, {V(x)}, {V(t)}']


def build_k3(name='k3_kernel', stamps=False, extra=None):
    k = Kernel(name)
    XL = 75 * 1024
    WBL = XL + 10 * 1024
    k.lds = WBL + 3 * 1024
    k.ns = 3
    s_x = k.s(2, 2); s_wo = k.s(2, 2); s_ws = k.s(2, 2)
    srdW = k.s(4, 4); srdS = k.s(4, 4); srdX = k.s(4, 4); srdH = k.s(4, 4)
    sW = k.s(); sM = k.s(); sN = k.s(); sT = k.s(); sT2 = k.s(); sTb = k.s()
    sM0 = k.s(); sRow = k.s(); sTok = k.s()
    k.nv = 1
    vL16 = k.v(); vDma = k.v(); vX = k.v()
    vA = k.v(4)
    acc = k.v(16, 4)
    accm = k.v(4, 4)
    wb = k.v(8, 4)
    vWb = k.v(); vMx = k.v()
    wf = k.v(32, 4)
    tmp = k.v(24, 4)
    tok = k.v(72, 4)
    e = k.e
    sStamp = k.s(24, 2) if stamps else None
    nst = [0]

    def stamp():
        if stamps:
            e(f's_memtime {S(sStamp + 2*nst[0], 2)}'); e('s_waitcnt lgkmcnt(0)'); nst[0] += 1
    e(f'''
    s_and_b32 {S(sT)}, s2, 7
    s_lshr_b32 {S(sT2)}, s2, 3
    s_mul_i32 {S(sT)}, {S(sT)}, 30
    s_add_u32 {S(sT)}, {S(sT)}, {S(sT2)}
    s_cmp_ge_u32 s2, 240
    s_cbranch_scc1 L_{name}_x
    s_cmp_ge_u32 {S(sT)}, 234
    s_cbranch_scc1 L_{name}_end
    s_load_dwordx2 {S(s_x,2)}, s[0:1], {KA_X}
    s_load_dwordx2 {S(s_wo,2)}, s[0:1], {KA_WO}
    s_load_dwordx2 {S(s_ws,2)}, s[0:1], {KA_WS}
    v_lshrrev_b32 {V(tmp)}, 6, v0
    v_and_b32 v0, 63, v0
    v_readfirstlane_b32 {S(sW)}, {V(tmp)}
    v_lshlrev_b32 {V(vL16)}, 4, v0
    s_mul_i32 {S(sM)}, {S(sT)}, 7282
    s_lshr_b32 {S(sM)}, {S(sM)}, 16
    s_mul_i32 {S(sT2)}, {S(sM)}, 9
    s_sub_u32 {S(sN)}, {S(sT)}, {S(sT2)}
    ''')
    stamp()
    if stamps:
        e(f's_memrealtime {S(sStamp+20,2)}')
    e(f'''
    v_lshrrev_b32 {V(tmp)}, 3, v0
    v_mul_u32_u24 {V(vDma)}, 1152, {V(tmp)}
    v_lshrrev_b32 {V(tmp)}, 4, v0
    v_lshlrev_b32 {V(tmp)}, 1, {V(tmp)}
    v_and_b32 {V(tmp+1)}, 7, v0
    v_xor_b32 {V(tmp)}, {V(tmp)}, {V(tmp+1)}
    v_lshl_add_u32 {V(vDma)}, {V(tmp)}, 4, {V(vDma)}
    s_lshl_b32 {S(sM0)}, {S(sW)}, 10
    s_mul_i32 {S(sRow)}, {S(sW)}, {8*1152}
    s_lshl_b32 {S(sT)}, {S(sN)}, 7
    s_add_u32 {S(sRow)}, {S(sRow)}, {S(sT)}
    s_mul_i32 {S(sTb)}, {S(sM)}, 5
    s_add_u32 {S(sTb)}, {S(sTb)}, {S(sW)}
    s_mul_i32 {S(sTok)}, {S(sTb)}, {18*1024}
    s_waitcnt lgkmcnt(0)
    s_mov_b32 {S(srdW)}, {S(s_wo)}
    s_mov_b32 {S(srdW+1)}, {S(s_wo+1)}
    s_mov_b32 {S(srdW+2)}, {576*1152}
    s_mov_b32 {S(srdW+3)}, 0x00020000
    s_add_u32 {S(srdS)}, {S(s_ws)}, {OF}
    s_addc_u32 {S(srdS+1)}, {S(s_ws+1)}, 0
    s_mov_b32 {S(srdS+2)}, {128*18*1024}
    s_mov_b32 {S(srdS+3)}, 0x00020000
    s_mov_b32 {S(srdX)}, {S(s_x)}
    s_mov_b32 {S(srdX+1)}, {S(s_x+1)}
    s_mov_b32 {S(srdX+2)}, {2048*1152}
    s_mov_b32 {S(srdX+3)}, 0x00020000
    s_mov_b32 {S(srdH)}, {S(s_ws)}
    s_mov_b32 {S(srdH+1)}, {S(s_ws+1)}
    s_mov_b32 {S(srdH+2)}, {WS_USED}
    s_mov_b32 {S(srdH+3)}, 0x00020000
    ''')
    def chunk(c):
        out = []
        for i in range(5 * c, 5 * c + 5):
            g = [(f's_add_u32 m0, {S(sM0)}, {i*5*1024}', None)]
            if i:
                g.append((f's_add_u32 {S(sRow)}, {S(sRow)}, {5*8*1152}', None))
            g.append((f'buffer_load_dwordx4 {V(vDma)}, {S(srdW,4)}, {S(sRow)} offen lds', f'c{c}'))
            out.append(g)
        for ks in range(6 * c, 6 * c + 6):
            g = []
            if ks % 4 == 0 and ks:
                g.append((f's_add_u32 {S(sTok)}, {S(sTok)}, 4096', None))
            g.append((f'buffer_load_dwordx4 {V(tok+ks*4,4)}, {V(vL16)}, {S(srdS,4)}, {S(sTok)} offen offset:{(ks%4)*1024}', None))
            out.append(g)
        return out

    def emit_group(g):
        for t, tag in g:
            e(t, tag=tag)
    e(f'''
    s_min_u32 {S(sT)}, {S(sW)}, 2
    s_lshl_b32 {S(sT)}, {S(sT)}, 10
    s_add_u32 m0, {S(sT)}, {WBL}
    s_add_u32 {S(sT)}, {S(sT)}, {WB}
    ''')
    e(f'buffer_load_dwordx4 {V(vL16)}, {S(srdH,4)}, {S(sT)} offen lds', tag='c0')
    for g in chunk(0):
        emit_group(g)
    e(f'''
    v_lshrrev_b32 {V(tmp)}, 2, v0
    v_lshlrev_b32 {V(tmp+1)}, 7, {V(tmp)}
    v_and_b32 {V(tmp+2)}, 3, v0
    v_lshl_add_u32 {V(tmp+1)}, {V(tmp+2)}, 3, {V(tmp+1)}
    v_bfe_u32 {V(tmp+2)}, v0, 3, 2
    ''')
    for fb in range(4):
        e(f'v_xor_b32 {V(tmp+3)}, {fb}, {V(tmp+2)}')
        e(f'v_lshl_add_u32 {V(vA+fb)}, {V(tmp+3)}, 5, {V(tmp+1)}')
    for g in chunk(1):
        emit_group(g)
    late = chunk(2)
    sXa = k.s(); sXb = k.s(); sXm = k.s()
    e(f'''
    s_mul_i32 {S(sXa)}, {S(sTb)}, {16*1152}
    s_lshl_b32 {S(sT2)}, {S(sN)}, 7
    s_add_u32 {S(sXa)}, {S(sXa)}, {S(sT2)}
    s_add_u32 {S(sXb)}, {S(sXa)}, {8*1152}
    s_lshl_b32 {S(sT2)}, {S(sW)}, 11
    s_lshl_b32 {S(sXm)}, {S(sTb)}, 6
    s_add_u32 {S(sXm)}, {S(sXm)}, {MX}
    v_and_b32 {V(tmp)}, 15, v0
    v_lshlrev_b32 {V(vX)}, 7, {V(tmp)}
    v_lshlrev_b32 {V(vMx)}, 2, {V(tmp)}
    v_lshrrev_b32 {V(tmp+1)}, 4, v0
    v_lshl_add_u32 {V(vX)}, {V(tmp+1)}, 3, {V(vX)}
    v_add_u32 {V(vX)}, {S(sT2)}, {V(vX)}
    v_add_u32 {V(vX)}, {XL}, {V(vX)}
    v_and_b32 {V(tmp)}, 1, v0
    v_mul_u32_u24 {V(vWb)}, 1152, {V(tmp)}
    v_lshl_add_u32 {V(vWb)}, {V(tmp+1)}, 4, {V(vWb)}
    v_add_u32 {V(vWb)}, {WBL}, {V(vWb)}
    ''')
    late.append([(f's_add_u32 m0, {S(sT2)}, {XL}', None), ('s_nop 0', None),
                 (f'buffer_load_dwordx4 {V(vDma)}, {S(srdX,4)}, {S(sXa)} offen lds', 'x')])
    late.append([(f's_add_u32 m0, {S(sT2)}, {XL+1024}', None), ('s_nop 0', None),
                 (f'buffer_load_dwordx4 {V(vDma)}, {S(srdX,4)}, {S(sXb)} offen lds', 'x')])
    late.append([(f'buffer_load_dword {V(vMx)}, {V(vMx)}, {S(srdH,4)}, {S(sXm)} offen', None)])
    if extra:
        late += extra(k)

    def reads(ks):
        o = []
        for fb in range(4):
            b = wf + (ks % 2) * 16 + fb * 4
            hi = ks >= 15
            off = (ks - (15 if hi else 0)) * 4096
            va = (tmp + 4 + fb) if hi else (vA + fb)
            o.append(f'ds_read_b64_tr_b16 {V(b,2)}, {V(va)} offset:{off}')
            o.append(f'ds_read_b64_tr_b16 {V(b+2,2)}, {V(va)} offset:{off+2048}')
        o.append(f'ds_read_b128 {V(wb+(ks%2)*4,4)}, {V(vWb)} offset:{ks*64}')
        return o
    for fb in range(4):
        e(f'v_add_u32 {V(tmp+4+fb)}, {15*4096}, {V(vA+fb)}')

    k.wait_vm(['c0'])
    e('s_barrier')
    stamp()
    for o in reads(0):
        e(o)
    for ks in range(18):
        rd = []
        if ks + 1 < 18:
            if (ks + 1) % 6 == 0:
                k.wait_vm([f'c{(ks+1)//6}'])
                e('s_barrier')
            rd = reads(ks + 1)
        for fb in range(4):
            for _ in range(2):
                if rd:
                    e(rd.pop(0))
            c = '0' if ks == 0 else V(acc + fb * 4, 4)
            e(f'v_mfma_f32_16x16x32_bf16 {V(acc+fb*4,4)}, {V(wf+(ks%2)*16+fb*4,4)}, {V(tok+ks*4,4)}, {c}')
            if late:
                emit_group(late.pop(0))
        if rd:
            e(rd.pop(0))
        c = '0' if ks == 0 else V(accm, 4)
        e(f'v_mfma_f32_16x16x32_bf16 {V(accm,4)}, {V(wb+(ks%2)*4,4)}, {V(tok+ks*4,4)}, {c}')
    stamp()
    k.wait_vm(['x'])
    xr = tmp + 8
    e(f'v_bfe_u32 {V(tmp)}, v0, 1, 2')
    for fb in range(4):
        e(f'v_xor_b32 {V(tmp+1)}, {fb}, {V(tmp)}')
        e(f'v_lshl_add_u32 {V(tmp+1)}, {V(tmp+1)}, 5, {V(vX)}')
        e(f'ds_read_b64 {V(xr+2*fb,2)}, {V(tmp+1)}')
    pk = wf
    xf = wf + 8
    for q in range(8):
        e(f'v_cvt_pk_bf16_f32 {V(pk+q)}, {V(acc+2*q)}, {V(acc+2*q+1)}')
    for q in range(8):
        e(f'v_lshlrev_b32 {V(acc+2*q)}, 16, {V(pk+q)}')
        e(f'v_and_b32 {V(acc+2*q+1)}, 0xffff0000, {V(pk+q)}')
        e(f'v_lshlrev_b32 {V(xf+2*q)}, 16, {V(xr+q)}')
        e(f'v_and_b32 {V(xf+2*q+1)}, 0xffff0000, {V(xr+q)}')
    for q in range(16):
        e(f'v_add_f32 {V(acc+q)}, {V(acc+q)}, {V(xf+q)}')
    for q in range(8):
        e(f'v_cvt_pk_bf16_f32 {V(pk+q)}, {V(acc+2*q)}, {V(acc+2*q+1)}')
    e(f'''
    s_cmp_ge_u32 {S(sTb)}, 128
    s_cbranch_scc1 L_{name}_end
    s_mul_i32 {S(sT)}, {S(sTb)}, 18
    s_lshl_b32 {S(sT2)}, {S(sN)}, 1
    s_add_u32 {S(sT)}, {S(sT)}, {S(sT2)}
    s_lshl_b32 {S(sT)}, {S(sT)}, 10
    s_add_u32 {S(sT)}, {S(sT)}, {HF}
    buffer_store_dwordx4 {V(pk,4)}, {V(vL16)}, {S(srdH,4)}, {S(sT)} offen
    buffer_store_dwordx4 {V(pk+4,4)}, {V(vL16)}, {S(srdH,4)}, {S(sT)} offen offset:1024
    ''')
    for q in range(8):
        e(f'v_lshlrev_b32 {V(acc+2*q)}, 16, {V(pk+q)}')
        e(f'v_and_b32 {V(acc+2*q+1)}, 0xffff0000, {V(pk+q)}')
    e(f'v_add_f32 {V(accm)}, {V(accm)}, {V(accm+1)}')
    e(f'v_add_f32 {V(accm)}, {V(accm)}, {V(vMx)}')
    e('\n'.join(bf16_round(accm, accm)))
    for q in range(16):
        e(f'v_sub_f32 {V(xf+q)}, {V(acc+q)}, {V(accm)}')
    hp = tok
    for q in range(8):
        e(f'v_cvt_pk_bf16_f32 {V(hp+q)}, {V(xf+2*q)}, {V(xf+2*q+1)}')
    e(f'''
    s_add_u32 {S(sT)}, {S(sT)}, {HC-HF}
    buffer_store_dwordx4 {V(hp,4)}, {V(vL16)}, {S(srdH,4)}, {S(sT)} offen
    buffer_store_dwordx4 {V(hp+4,4)}, {V(vL16)}, {S(srdH,4)}, {S(sT)} offen offset:1024
    ''')
    sm = tmp + 16
    e(f'v_add_f32 {V(sm)}, {V(acc)}, {V(acc+1)}')
    e(f'v_add_f32 {V(tmp)}, {V(acc+2)}, {V(acc+3)}')
    for q in range(4, 16, 2):
        e(f'v_add_f32 {V(sm)}, {V(sm)}, {V(acc+q)}')
        e(f'v_add_f32 {V(tmp)}, {V(tmp)}, {V(acc+q+1)}')
    e(f'v_add_f32 {V(sm)}, {V(sm)}, {V(tmp)}')
    e('\n'.join(row_reduce(sm, tmp)))
    e(f'v_mul_f32 {V(tmp+1)}, {F(1.0/64)}, {V(sm)}')
    for q in range(16):
        e(f'v_sub_f32 {V(acc+q)}, {V(acc+q)}, {V(tmp+1)}')
    e(f'v_mul_f32 {V(sm+1)}, {V(acc)}, {V(acc)}')
    e(f'v_mul_f32 {V(tmp)}, {V(acc+1)}, {V(acc+1)}')
    for q in range(2, 16, 2):
        e(f'v_fmac_f32 {V(sm+1)}, {V(acc+q)}, {V(acc+q)}')
        e(f'v_fmac_f32 {V(tmp)}, {V(acc+q+1)}, {V(acc+q+1)}')
    e(f'v_add_f32 {V(sm+1)}, {V(sm+1)}, {V(tmp)}')
    e('\n'.join(row_reduce(sm + 1, tmp)))
    e(f'''
    v_lshlrev_b32 {V(tmp)}, 3, v0
    s_lshl_b32 {S(sT)}, {S(sTb)}, 7
    s_lshl_b32 {S(sT2)}, {S(sN)}, 14
    s_add_u32 {S(sT)}, {S(sT)}, {S(sT2)}
    s_add_u32 {S(sT)}, {S(sT)}, {ST}
    s_mov_b64 exec, 0xffff
    buffer_store_dwordx2 {V(sm,2)}, {V(tmp)}, {S(srdH,4)}, {S(sT)} offen
    s_mov_b64 exec, -1
    ''')
    if stamps:
        stamp()
        e('s_waitcnt vmcnt(0)')
        stamp()
        emit_stamp_dump(k, e, sStamp, nst, srdW, s_x, sT, sW, tmp, int(stamps) - 1)
    k.label(f'L_{name}_end')
    e('s_endpgm')
    k.label(f'L_{name}_x')
    k.extra_entry = True
    e('s_endpgm')
    return k
```

```python
from asmb import *
from layout import *
import struct

LOG2E = 1.4426950408889634


def F(x):
    return hex(struct.unpack('<I', struct.pack('<f', x))[0])


def emit_stamp_dump(k, e, sStamp, nst, srd, sp, sT, sW, vt, region=0):
    e(f's_memrealtime {S(sStamp+22,2)}')
    e(f's_load_dwordx2 {S(sp,2)}, s[0:1], {KA_BX}')
    e('s_waitcnt lgkmcnt(0)')
    e(f's_mov_b32 {S(srd)}, {S(sp)}'); e(f's_mov_b32 {S(srd+1)}, {S(sp+1)}'); e(f's_mov_b32 {S(srd+2)}, 0x100000'); e(f's_mov_b32 {S(srd+3)}, 0x00020000')
    e(f's_lshl_b32 {S(sT)}, s2, 3'); e(f's_add_u32 {S(sT)}, {S(sT)}, {S(sW)}'); e(f's_lshl_b32 {S(sT)}, {S(sT)}, 6')
    e(f's_add_u32 {S(sT)}, {S(sT)}, {region*0x20000}')
    e(f'v_mov_b32 {V(vt)}, 0')
    for i in range(12):
        e(f'v_mov_b32 {V(vt+1)}, {S(sStamp+2*i)}')
        e(f'buffer_store_dword {V(vt+1)}, {V(vt)}, {S(srd,4)}, {S(sT)} offen offset:{4*i}')
        e('s_waitcnt vmcnt(0)')


def bf16_round(dst, src):
    return [f'v_cvt_pk_bf16_f32 {V(dst)}, {V(src)}, {V(src)}', f'v_lshlrev_b32 {V(dst)}, 16, {V(dst)}']


def ln_stats_ops(st, nparts, npart_elems, t0, t1, s_inv, s_n):
    o = []
    so = o.append
    so(f'v_add_f32 {V(t0)}, {V(st)}, {V(st+2)}')
    for nt in range(2, nparts):
        so(f'v_add_f32 {V(t0)}, {V(t0)}, {V(st+2*nt)}')
    so(f'v_mul_f32 {V(t0)}, {F(1.0/576)}, {V(t0)}')
    so(f'v_mov_b32 {V(t1)}, 0')
    for nt in range(nparts):
        so(f'v_fma_f32 {V(st+2*nt)}, {V(st+2*nt)}, {S(s_inv)}, -{V(t0)}')
        so(f'v_mul_f32 {V(st+2*nt)}, {V(st+2*nt)}, {V(st+2*nt)}')
        so(f'v_add_f32 {V(t1)}, {V(t1)}, {V(st+2*nt+1)}')
        so(f'v_fma_f32 {V(t1)}, {V(st+2*nt)}, {S(s_n)}, {V(t1)}')
    so(f'v_mul_f32 {V(t1)}, {F(1.0/576)}, {V(t1)}')
    o += bf16_round(t0, t0)
    o += bf16_round(t1, t1)
    so(f'v_add_f32 {V(t1)}, {F(1e-5)}, {V(t1)}')
    o += bf16_round(t1, t1)
    so(f'v_sqrt_f32 {V(t1)}, {V(t1)}')
    o += bf16_round(t1, t1)
    return o


def build_k4(TAIL=6, WF=6, PF=5, use_pk=False, name='k4_kernel', vm_every=2, pre_stages=2, stamps=False,
             no_mfma=False, no_lds=False, no_store=False, no_vm=False, no_bar=False, prefetch_code=None, pf_at=18*13, DIST=6, no_side=False, rgroup=1, prio=False, rd128=False, wf_v=False, half_reads=False):
    assert not use_pk
    k = Kernel(name)
    NKS = 18
    RING = 8
    PART = RING * 9216
    UOFF = PART
    CSL = 2 * PART
    k.lds = CSL
    k.ns = 3
    s_wg = k.s(4, 4)
    s_ws = k.s(2, 2)
    s_wd = k.s(2, 2)
    srdP = k.s(4, 4)
    srdW = k.s(4, 4)
    srdS = k.s(4, 4)
    sW = k.s(); sPart = k.s(); sJ = k.s(); sM = k.s(); sN = k.s(); sT = k.s(); sT2 = k.s()
    sM8 = k.s(); sM0 = k.s(); sTok0 = k.s(); sTok1 = k.s(); sGrp = k.s(); sSt = k.s(); sSt8 = k.s()
    k.nv = 1
    vL16 = k.v()
    vSt = k.v()
    vP = k.v()
    acc = k.v(144, 4)
    vA = k.v(4)
    vAa = k.v(2); vSs = k.v(2)
    vdma = k.v(3)
    tmp = k.v(20, 4)
    wf = k.v(WF * 4, 4) if wf_v else k.a(WF * 4, 4)
    WR = V if wf_v else A
    ntokA = (256 - ((k.nv + 3) // 4 * 4) - k.na) // 8
    tokA = k.a(ntokA * 8, 4)
    TF = ntokA
    assert (k.nv + 3) // 4 * 4 + k.na <= 256, (k.nv, k.na)

    def ACC(fb, part, tb):
        return acc + ((fb * 2 + part) * 2 + tb) * 4

    main_ks = NKS - TAIL
    tokbuf = {}
    extra = [('v', tmp + 4), ('v', tmp + 12)]
    n_extra = 2
    ring_ks = [ks for ks in range(NKS - n_extra)]
    for i, ks in enumerate(ring_ks):
        tokbuf[ks] = ('a', tokA + (i % TF) * 8)
    for i in range(n_extra):
        tokbuf[NKS - n_extra + i] = extra[i]

    def TOK(ks, tb):
        kind, b = tokbuf[ks]
        return R(kind, b + 4 * tb, 4)

    e = k.e
    sStamp = k.s(24, 2) if stamps else None
    nst = [0]

    def stamp():
        if stamps:
            e(f's_memtime {S(sStamp + 2*nst[0], 2)}'); e('s_waitcnt lgkmcnt(0)'); nst[0] += 1
    e(f'''
    s_cmp_ge_u32 s2, 256
    s_cbranch_scc1 L_{name}_end
    s_load_dwordx4 {S(s_wg,4)}, s[0:1], {KA_WG}
    s_load_dwordx2 {S(s_ws,2)}, s[0:1], {KA_WS}
    s_load_dwordx2 {S(s_wd,2)}, s[0:1], {KA_WD}
    v_lshrrev_b32 {V(tmp)}, 6, v0
    v_and_b32 v0, 63, v0
    v_readfirstlane_b32 {S(sW)}, {V(tmp)}
    v_lshlrev_b32 {V(vL16)}, 4, v0
    s_and_b32 {S(sT)}, s2, 7
    s_lshr_b32 {S(sT2)}, s2, 3
    s_lshr_b32 {S(sM)}, {S(sT)}, 2
    s_lshl_b32 {S(sM)}, {S(sM)}, 2
    s_and_b32 {S(sN)}, {S(sT2)}, 3
    s_add_u32 {S(sM)}, {S(sM)}, {S(sN)}
    s_and_b32 {S(sN)}, {S(sT)}, 3
    s_lshl_b32 {S(sN)}, {S(sN)}, 3
    s_lshr_b32 {S(sT2)}, {S(sT2)}, 2
    s_add_u32 {S(sN)}, {S(sN)}, {S(sT2)}
    s_lshr_b32 {S(sPart)}, {S(sW)}, 2
    s_and_b32 {S(sJ)}, {S(sW)}, 3
    ''')
    stamp()
    if stamps:
        e(f's_memrealtime {S(sStamp+20,2)}')
    e(f'''
    s_lshl_b32 {S(sT)}, {S(sJ)}, 6
    v_add_u32 {V(tmp)}, {S(sT)}, v0
    s_lshl_b32 {S(sT)}, {S(sJ)}, 4
    v_add_u32 {V(tmp+3)}, {S(sT)}, v0
    s_mul_i32 {S(sM8)}, {S(sPart)}, {UOFF}
    s_lshl_b32 {S(sT)}, {S(sJ)}, 8
    s_add_u32 {S(sM8)}, {S(sM8)}, {S(sT)}
    s_mul_i32 {S(sGrp)}, {S(sN)}, 288
    s_mul_i32 {S(sM0)}, {S(sPart)}, {UOFF}
    s_lshl_b32 {S(sT)}, {S(sJ)}, 10
    s_add_u32 {S(sM0)}, {S(sM0)}, {S(sT)}
    s_lshl_b32 {S(sT)}, {S(sM)}, 3
    s_add_u32 {S(sT)}, {S(sT)}, {S(sW)}
    s_mul_i32 {S(sTok0)}, {S(sT)}, {36*1024}
    s_add_u32 {S(sTok0)}, {S(sTok0)}, {HC}
    s_add_u32 {S(sTok1)}, {S(sTok0)}, {18*1024}
    s_mul_i32 {S(sSt)}, {S(sT)}, {2*144*1024}
    s_add_u32 {S(sSt)}, {S(sSt)}, {HH}
    s_lshr_b32 {S(sT2)}, {S(sN)}, 1
    s_mul_i32 {S(sT2)}, {S(sT2)}, {9*1024}
    s_add_u32 {S(sSt)}, {S(sSt)}, {S(sT2)}
    s_and_b32 {S(sT2)}, {S(sN)}, 1
    s_lshl_b32 {S(sSt8)}, {S(sT2)}, 3
    s_add_u32 {S(sSt8)}, {S(sSt8)}, {S(sSt)}
    s_add_u32 {S(sSt8)}, {S(sSt8)}, {8*1024}
    s_lshl_b32 {S(sT2)}, {S(sT2)}, 12
    s_add_u32 {S(sSt)}, {S(sSt)}, {S(sT2)}
    ''')

    def dma_voff(i):
        d = vdma + i
        return [f'v_add_u32 {V(tmp+1)}, {256*i}, {V(tmp)}' if i < 2 else f'v_add_u32 {V(tmp+1)}, 512, {V(tmp+3)}',
                f'v_mul_u32_u24 {V(tmp+2)}, 3641, {V(tmp+1)}',
                f'v_lshrrev_b32 {V(tmp+2)}, 16, {V(tmp+2)}',
                f'v_mul_u32_u24 {V(tmp+2)}, {9216-288}, {V(tmp+2)}',
                f'v_lshl_add_u32 {V(d)}, {V(tmp+1)}, 4, {V(tmp+2)}']
    for i in range(3):
        e('\n'.join(dma_voff(i)))
    e(f'''
    s_waitcnt lgkmcnt(0)
    s_cmp_eq_u32 {S(sPart)}, 0
    s_cselect_b32 {S(srdW)}, {S(s_wg)}, {S(s_wg+2)}
    s_cselect_b32 {S(srdW+1)}, {S(s_wg+1)}, {S(s_wg+3)}
    s_mov_b32 {S(srdW+2)}, {576*9216}
    s_mov_b32 {S(srdW+3)}, 0x00020000
    s_mov_b32 {S(srdS)}, {S(s_ws)}
    s_mov_b32 {S(srdS+1)}, {S(s_ws+1)}
    s_mov_b32 {S(srdS+2)}, {WS_USED}
    s_mov_b32 {S(srdS+3)}, 0x00020000
    ''')

    order = [(ks, fb, p) for ks in range(main_ks) for fb in range(9) for p in range(2)]
    groups = [(0, 1), (2, 3), (4, 5), (6, 7), (8,)]
    grp_last = {}
    for gi, g in enumerate(groups):
        for ks in range(main_ks, NKS):
            for fb in g:
                for p in range(2):
                    order.append((ks, fb, p))
        grp_last[gi] = len(order) - 1
    N = len(order)
    first_use, last_use = {}, {}
    for n, (ks, fb, p) in enumerate(order):
        first_use.setdefault(ks, n)
        last_use[ks] = n
    dmas = [dict(G=G, i=i, smin=G, smax=G) for G in range(18) for i in range(3)]
    pend = []
    for d in dmas:
        pend.append((first_use[d['smin']] - PF, 0, 'dma', d))
    for ks in range(NKS):
        for tb in range(2):
            pend.append((first_use[ks], 1 + tb, 'tok', (ks, tb)))
    pend.sort(key=lambda x: (x[0], x[1]))
    barrier_passed = [-1]
    tok_sbase = [0, 0]
    grp_cur = [0]
    voff_done = set(range(3))
    corr_end = [10 ** 9]

    def eligible(p, n):
        if p[0] > max(n, 0) + DIST * 18:
            return False
        if p[2] == 'dma':
            d = p[3]
            return d['smax'] < RING or barrier_passed[0] >= d['smax'] - 6
        ks, tb = p[3]
        if tokbuf[ks][0] == 'v':
            return n > corr_end[0]
        return ks < TF or last_use[ks - TF] < n

    def issue(p):
        if no_vm and not ((p[2] == 'dma' and p[3]['smin'] < 1) or (p[2] == 'tok' and p[3][0] < TF)):
            return
        if p[2] == 'dma':
            d = p[3]
            slot = d['G'] % RING
            if d['i'] < 2:
                e(f's_add_u32 m0, {S(sM0)}, {slot * 9216 + d["i"] * 4096}')
            else:
                e(f's_add_u32 m0, {S(sM8)}, {slot * 9216 + 8192}')
            while grp_cur[0] < d['G']:
                e(f's_add_u32 {S(sGrp)}, {S(sGrp)}, {32*9216}'); grp_cur[0] += 1
            if d['i'] == 2:
                e('s_mov_b64 exec, 0xffff')
            e(f'buffer_load_dwordx4 {V(vdma+d["i"])}, {S(srdW,4)}, {S(sGrp)} offen lds', tag=f'st{d["smin"]}')
            if d['i'] == 2:
                e('s_mov_b64 exec, -1')
        else:
            ks, tb = p[3]
            sT_ = sTok1 if tb else sTok0
            while ks - tok_sbase[tb] >= 4:
                e(f's_add_u32 {S(sT_)}, {S(sT_)}, 4096'); tok_sbase[tb] += 4
            off = (ks - tok_sbase[tb]) * 1024
            e(f'buffer_load_dwordx4 {TOK(ks, tb)}, {V(vL16)}, {S(srdS,4)}, {S(sT_)} offen offset:{off}')

    def pop_issue(n, maxn=1):
        c = 0
        while pend and c < maxn:
            for q, p in enumerate(pend):
                if eligible(p, n):
                    if any(pp[2] == p[2] for pp in pend[:q]):
                        continue
                    issue(p); pend.pop(q); c += 1
                    break
            else:
                break

    npre = sum(1 for p in pend if (p[2] == 'dma' and p[3]['smin'] < pre_stages) or (p[2] == 'tok' and p[3][0] < pre_stages))
    pop_issue(-1, npre)
    e(f'''
    v_lshrrev_b32 {V(tmp+4)}, 2, v0
    v_mul_u32_u24 {V(vA)}, 288, {V(tmp+4)}
    v_and_b32 {V(tmp+5)}, 3, v0
    v_lshl_add_u32 {V(vA)}, {V(tmp+5)}, 3, {V(vA)}
    v_add_u32 {V(vA+1)}, {4*9216}, {V(vA)}
    v_add_u32 {V(vA+2)}, {UOFF}, {V(vA)}
    v_add_u32 {V(vA+3)}, {UOFF+4*9216}, {V(vA)}
    v_add_u32 {V(vSt)}, {144*1024}, {V(vL16)}
    ''')
    e(f'''
    v_and_b32 {V(tmp)}, 31, v0
    v_lshlrev_b32 {V(tmp)}, 3, {V(tmp)}
    s_lshl_b32 {S(sT)}, {S(sT)}, 8
    s_add_u32 {S(sT)}, {S(sT)}, {ST}
    ''')
    for nt in range(9):
        e(f'buffer_load_dwordx2 {V(tmp+2+2*nt,2)}, {V(tmp)}, {S(srdS,4)}, {S(sT)} offen')
        if nt < 8:
            e(f's_add_u32 {S(sT)}, {S(sT)}, 16384')
    e(f's_lshl_b32 {S(sT)}, s2, 3')
    e(f's_add_u32 {S(sT)}, {S(sT)}, {S(sW)}')
    e(f's_cmp_ge_u32 {S(sT)}, 8')
    e(f's_cbranch_scc1 L_{name}_nofl')
    k.opt(True)
    e(f's_lshl_b32 {S(sT)}, {S(sT)}, 10')
    e(f's_add_u32 {S(sT)}, {S(sT)}, {FL}')
    for q in range(4):
        e(f'v_mov_b32 {V(acc+q)}, 0')
    e(f'buffer_store_dwordx4 {V(acc,4)}, {V(vL16)}, {S(srdS,4)}, {S(sT)} offen')
    e('s_nop 1')
    k.opt(False)
    k.label(f'L_{name}_nofl')
    from pf import pf_down
    su, pf_loads = pf_down(k, sW, s_wd, srdP, sT, sT2, vP)
    e(su)

    stats_ops = ln_stats_ops(tmp + 2, 9, 64, tmp, tmp + 1, sJ, sT2)
    so = stats_ops.append
    so(f'v_mov_b32 {V(vSs)}, {V(tmp+1)}')
    so(f'v_mov_b32 {V(vSs+1)}, {V(tmp+1)}')
    so(f'v_rcp_f32 {V(vAa)}, {V(tmp+1)}')
    so(f'v_mul_f32 {V(vAa)}, {F(-LOG2E)}, {V(vAa)}')
    so(f'v_mov_b32 {V(vAa+1)}, {V(vAa)}')
    for r in (vSs, vAa):
        so(f'v_permlane16_swap_b32 {V(r)}, {V(r+1)}')

    def corr_read(fb, p, t):
        return [f'ds_read_b128 {V(t,4)}, {V(vCs)} offset:{fb*64+p*1024}']

    def corr_ops(fb, p, t):
        o = []
        for tb in range(2):
            a0 = ACC(fb, p, tb)
            if use_pk:
                o += [f'v_pk_fma_f32 {V(a0+2*q,2)}, {V(t+2*q,2)}, {V(vNegM+2*tb,2)}, {V(a0+2*q,2)}' for q in range(2)]
            else:
                o += [f'v_fma_f32 {V(a0+q)}, {V(t+q)}, {V(vNegM+tb)}, {V(a0+q)}' for q in range(4)]
        return o

    def epi_ops(gi, tb):
        g = groups[gi]
        o = []
        Gs = [ACC(fb, 0, tb) for fb in g]
        Us = [ACC(fb, 1, tb) for fb in g]
        aa, ss = vAa + tb, vSs + tb
        for G in Gs:
            if use_pk:
                o += [f'v_pk_mul_f32 {V(G+2*q,2)}, {V(G+2*q,2)}, {V(aa,2)}' for q in range(2)]
            else:
                o += [f'v_mul_f32 {V(G+q)}, {V(G+q)}, {V(aa)}' for q in range(4)]
        for G in Gs:
            o += [f'v_exp_f32 {V(G+q)}, {V(G+q)}' for q in range(4)]
        for G in Gs:
            if use_pk:
                o += [f'v_pk_fma_f32 {V(G+2*q,2)}, {V(G+2*q,2)}, {V(ss,2)}, {V(ss,2)}' for q in range(2)]
            else:
                o += [f'v_fma_f32 {V(G+q)}, {V(G+q)}, {V(ss)}, {V(ss)}' for q in range(4)]
        for G in Gs:
            o += [f'v_rcp_f32 {V(G+q)}, {V(G+q)}' for q in range(4)]
        for G, U in zip(Gs, Us):
            if use_pk:
                o += [f'v_pk_mul_f32 {V(U+2*q,2)}, {V(U+2*q,2)}, {V(G+2*q,2)}' for q in range(2)]
            else:
                o += [f'v_mul_f32 {V(U+q)}, {V(U+q)}, {V(G+q)}' for q in range(4)]
        D = Gs[0]
        for bi, U in enumerate(Us):
            o += [f'v_cvt_pk_bf16_f32 {V(D+2*bi+q)}, {V(U+2*q)}, {V(U+2*q+1)}' for q in range(2)]
        va = vSt if tb else vL16
        if not no_store:
            if len(g) == 2:
                o += [f'buffer_store_dwordx4 {V(D,4)}, {V(va)}, {S(srdS,4)}, {S(sSt)} offen offset:{gi*1024}']
            else:
                o += [f'buffer_store_dwordx2 {V(D,2)}, {V(va)}, {S(srdS,4)}, {S(sSt8)} offen']
        return o

    e(f's_mov_b32 {S(sJ)}, {F(1.0/64)}')
    e(f's_mov_b32 {S(sT2)}, {F(64.0)}')

    side = {}

    def spread(ops, n0, n1):
        cnt = n1 - n0
        for i, o in enumerate(ops):
            side.setdefault(n0 + i * cnt // len(ops), []).append(o)
    spread(stats_ops, 18 * 2, 18 * 4)
    corr_end[0] = 18 * 4
    for gi in range(4):
        nd = grp_last[gi]
        span = grp_last[gi + 1] - nd
        ops = epi_ops(gi, 0) + epi_ops(gi, 1)
        spread(ops, nd + 2, nd + max(span, 8))

    def reads(n):
        ks, fb, p = order[n]
        if ks > barrier_passed[0]:
            assert not any(q[2] == 'dma' and q[3]['smin'] <= ks for q in pend), ('dma late', ks)
            k.wait_vm([f'st{s}' for s in range(ks + 1)])
            if not no_bar or ks == 0:
                e('s_barrier')
            barrier_passed[0] = ks
            if ks in (0, 1, 4, 8, main_ks):
                stamp()
        slot = ks % RING
        va = vA + 2 * p + (slot >> 2)
        off = (slot & 3) * 9216 + fb * 32
        b = wf + (n % WF) * 4
        if half_reads and n >= WF and n % 2:
            return
        if not no_lds or n < WF:
            if rd128:
                e(f'ds_read_b128 {WR(b,4)}, {V(vL16)} offset:{(off//1024)*1024}')
            else:
                e(f'ds_read_b64_tr_b16 {WR(b,2)}, {V(va)} offset:{off}')
                e(f'ds_read_b64_tr_b16 {WR(b+2,2)}, {V(va)} offset:{off+4608}')

    for n in range(PF):
        reads(n)
    if prio:
        e(f's_cmp_ge_u32 {S(sW)}, 4')
        e(f's_cbranch_scc0 L_{name}_np')
        e('s_setprio 1')
        k.label(f'L_{name}_np')
    for n in range(N):
        ks, fb, p = order[n]
        if n % rgroup == 0:
            for q in range(rgroup):
                if n + PF + q < N:
                    reads(n + PF + q)
        assert not any(q[2] == 'tok' and q[3][0] <= ks for q in pend), ('tok late', ks)
        ops = side.get(n, []) if not no_side else []
        h = (len(ops) + 1) // 2
        for tb in range(2):
            a0 = ACC(fb, p, tb)
            c = '0' if ks == 0 else V(a0, 4)
            e(f'v_mfma_f32_16x16x32_bf16 {V(a0,4)}, {WR(wf+(n%WF)*4,4)}, {TOK(ks,tb)}, {c}')
            for o in (ops[:h] if tb == 0 else ops[h:]):
                e(o)
        if n % vm_every == 0:
            pop_issue(n + 1, 1)
        if pf_loads and not pend and pf_at is not None and n >= pf_at:
            e('\n'.join(pf_loads)); pf_loads = []
    for n in sorted(side):
        if n >= N:
            for o in side[n]:
                e(o)
    assert not pend, pend
    stamp()
    for o in interleave(epi_ops(4, 0), epi_ops(4, 1)):
        e(o)
    if stamps:
        stamp()
        e('s_waitcnt vmcnt(0)')
        stamp()
        emit_stamp_dump(k, e, sStamp, nst, srdW, s_wg, sT, sW, tmp, int(stamps) - 1)
    k.label(f'L_{name}_end')
    e('s_endpgm')
    return k
```

```python
from asmb import *
from layout import *
from k4 import F, emit_stamp_dump


def build_k5(name='k5_kernel', PD=6, RING=8, stamps=False, prefetch_code=None, no_mfma=False):
    k = Kernel(name)
    NKS = 36
    WAVE_LDS = RING * 4096
    assert WAVE_LDS >= 20 * 1088
    HL = 4 * WAVE_LDS
    k.lds = HL + 10 * 1024
    k.ns = 3
    s_wd = k.s(4, 4)
    s_ws = k.s(2, 2)
    srdW = k.s(4, 4); srdS = k.s(4, 4); srdO = k.s(4, 4)
    sW = k.s(); sM = k.s(); sN = k.s(); sT = k.s(); sT2 = k.s()
    sM0 = k.s(); sRow = k.s(); sRow2 = k.s()
    sTok = k.s(5)
    k.nv = 1
    vL16 = k.v(); vDma = k.v()
    vA = k.v(4)
    acc = k.v(80, 4)
    wf = k.v(32, 4)
    tmp = k.v(40, 4)
    tok = k.a(RING * 20, 4)
    e = k.e
    sStamp = k.s(24, 2) if stamps else None
    nst = [0]

    def stamp():
        if stamps:
            e(f's_memtime {S(sStamp + 2*nst[0], 2)}'); e('s_waitcnt lgkmcnt(0)'); nst[0] += 1
    e(f'''
    s_and_b32 {S(sT)}, s2, 7
    s_lshr_b32 {S(sT2)}, s2, 3
    s_mul_i32 {S(sT)}, {S(sT)}, 30
    s_add_u32 {S(sT)}, {S(sT)}, {S(sT2)}
    s_cmp_ge_u32 s2, 240
    s_cbranch_scc1 L_{name}_end
    s_cmp_ge_u32 {S(sT)}, 234
    s_cbranch_scc1 L_{name}_end
    s_load_dwordx4 {S(s_wd,4)}, s[0:1], {KA_WD}
    s_load_dwordx2 {S(s_ws,2)}, s[0:1], {KA_WS}
    v_lshrrev_b32 {V(tmp)}, 6, v0
    v_and_b32 v0, 63, v0
    v_readfirstlane_b32 {S(sW)}, {V(tmp)}
    v_lshlrev_b32 {V(vL16)}, 4, v0
    s_mul_i32 {S(sM)}, {S(sT)}, 7282
    s_lshr_b32 {S(sM)}, {S(sM)}, 16
    s_mul_i32 {S(sT2)}, {S(sM)}, 9
    s_sub_u32 {S(sN)}, {S(sT)}, {S(sT2)}
    ''')
    stamp()
    if stamps:
        e(f's_memrealtime {S(sStamp+20,2)}')
    e(f'''
    v_lshrrev_b32 {V(tmp)}, 3, v0
    v_mul_u32_u24 {V(vDma)}, 1152, {V(tmp)}
    v_lshrrev_b32 {V(tmp)}, 4, v0
    v_lshlrev_b32 {V(tmp)}, 1, {V(tmp)}
    v_and_b32 {V(tmp+1)}, 7, v0
    v_xor_b32 {V(tmp)}, {V(tmp)}, {V(tmp+1)}
    v_lshl_add_u32 {V(vDma)}, {V(tmp)}, 4, {V(vDma)}
    s_mul_i32 {S(sM0)}, {S(sW)}, {WAVE_LDS}
    s_mul_i32 {S(sRow)}, {S(sW)}, {4*288*1152}
    s_lshl_b32 {S(sT)}, {S(sN)}, 7
    s_add_u32 {S(sRow)}, {S(sRow)}, {S(sT)}
    s_mul_i32 {S(sTok)}, {S(sM)}, {5*144*1024}
    s_mul_i32 {S(sT)}, {S(sW)}, {36*1024}
    s_add_u32 {S(sTok)}, {S(sTok)}, {S(sT)}
    ''')
    for tb in range(1, 5):
        e(f's_add_u32 {S(sTok+tb)}, {S(sTok)}, {tb*144*1024}')
    e(f'''
    s_waitcnt lgkmcnt(0)
    s_mov_b32 {S(srdW)}, {S(s_wd)}
    s_mov_b32 {S(srdW+1)}, {S(s_wd+1)}
    s_mov_b32 {S(srdW+2)}, {4608*1152}
    s_mov_b32 {S(srdW+3)}, 0x00020000
    s_add_u32 {S(srdS)}, {S(s_ws)}, {HH}
    s_addc_u32 {S(srdS+1)}, {S(s_ws+1)}, 0
    s_mov_b32 {S(srdS+2)}, {128*144*1024}
    s_mov_b32 {S(srdS+3)}, 0x00020000
    s_add_u32 {S(srdO)}, {S(s_ws)}, {HF}
    s_addc_u32 {S(srdO+1)}, {S(s_ws+1)}, 0
    s_mov_b32 {S(srdO+2)}, {128*18*1024}
    s_mov_b32 {S(srdO+3)}, 0x00020000
    ''')

    def rows_of(ks):
        P, i = divmod(ks, 9)
        b = 288 * P
        if i < 4:
            r0 = b + 32 * i
            return [r0, r0 + 8, r0 + 16, r0 + 24]
        if i < 8:
            r0 = b + 144 + 32 * (i - 4)
            return [r0, r0 + 8, r0 + 16, r0 + 24]
        return [b + 128, b + 136, b + 272, b + 280]

    tok_base = [0]

    def loads(ks):
        slot = ks % RING
        out = []
        for q, r in enumerate(rows_of(ks)):
            out.append([(f's_add_u32 m0, {S(sM0)}, {slot*4096 + q*1024}', None),
                        (f's_add_u32 {S(sRow2)}, {S(sRow)}, {r*1152}', None),
                        (f'buffer_load_dwordx4 {V(vDma)}, {S(srdW,4)}, {S(sRow2)} offen lds', f'w{ks}')])
        for tb in range(5):
            g = []
            if ks % 4 == 0 and ks > 0:
                g.append((f's_add_u32 {S(sTok+tb)}, {S(sTok+tb)}, 4096', None))
            g.append((f'buffer_load_dwordx4 {A(tok + slot*20 + tb*4, 4)}, {V(vL16)}, {S(srdS,4)}, {S(sTok+tb)} offen offset:{(ks%4)*1024}', None))
            out.append(g)
        return out

    def emit_group(g):
        for t, tag in g:
            e(t, tag=tag)

    for ks in range(2):
        for g in loads(ks):
            emit_group(g)
    e(f'''
    v_lshrrev_b32 {V(tmp)}, 2, v0
    v_lshlrev_b32 {V(tmp+1)}, 7, {V(tmp)}
    v_and_b32 {V(tmp+2)}, 3, v0
    v_lshl_add_u32 {V(tmp+1)}, {V(tmp+2)}, 3, {V(tmp+1)}
    v_add_u32 {V(tmp+1)}, {S(sM0)}, {V(tmp+1)}
    v_bfe_u32 {V(tmp+2)}, v0, 3, 2
    ''')
    for fb in range(4):
        e(f'v_xor_b32 {V(tmp+3)}, {fb}, {V(tmp+2)}')
        e(f'v_lshl_add_u32 {V(vA+fb)}, {V(tmp+3)}, 5, {V(tmp+1)}')
    for ks in range(2, PD):
        for g in loads(ks):
            emit_group(g)
    for i in range(3):
        e(f'''
        s_add_u32 {S(sT)}, {S(sW)}, {4*i}
        s_lshr_b32 {S(sT2)}, {S(sT)}, 1
        s_mul_i32 {S(sRow2)}, {S(sM)}, 5
        s_add_u32 {S(sT2)}, {S(sT2)}, {S(sRow2)}
        s_mul_i32 {S(sT2)}, {S(sT2)}, 18
        s_and_b32 {S(sRow2)}, {S(sT)}, 1
        s_add_u32 {S(sT2)}, {S(sT2)}, {S(sRow2)}
        s_lshl_b32 {S(sRow2)}, {S(sN)}, 1
        s_add_u32 {S(sT2)}, {S(sT2)}, {S(sRow2)}
        s_lshl_b32 {S(sT2)}, {S(sT2)}, 10
        s_lshl_b32 {S(sRow2)}, {S(sT)}, 10
        s_add_u32 m0, {S(sRow2)}, {HL}
        ''')
        if i == 2:
            e(f's_cmp_ge_u32 {S(sT)}, 10')
            e(f's_cbranch_scc1 L_{name}_skiph')
            k.opt(True)
        e(f'buffer_load_dwordx4 {V(vL16)}, {S(srdO,4)}, {S(sT2)} offen lds', tag='hres')
        if i == 2:
            k.opt(False)
            k.label(f'L_{name}_skiph')
    if prefetch_code:
        prefetch_code(k, tmp)

    def reads(ks):
        slot = ks % RING
        k.wait_vm([f'w{ks}'])
        o = []
        for fb in range(4):
            b = wf + (ks % 2) * 16 + fb * 4
            o.append(f'ds_read_b64_tr_b16 {V(b,2)}, {V(vA+fb)} offset:{slot*4096}')
            o.append(f'ds_read_b64_tr_b16 {V(b+2,2)}, {V(vA+fb)} offset:{slot*4096+2048}')
        return o

    for o in reads(0):
        e(o)
    stamp()
    for ks in range(NKS):
        slot = ks % RING
        if ks in (9, 18, 27):
            stamp()
        lg = loads(ks + PD) if ks + PD < NKS else []
        n = 0
        for fb in range(4):
            for tb in range(5):
                a0 = acc + (tb * 4 + fb) * 4
                c = '0' if ks == 0 else V(a0, 4)
                if not no_mfma or ks == 0:
                    e(f'v_mfma_f32_16x16x32_bf16 {V(a0,4)}, {V(wf+(ks%2)*16+fb*4,4)}, {A(tok+slot*20+tb*4,4)}, {c}')
                elif fb == 0:
                    e(f'v_accvgpr_mov_b32 {A(tok+slot*20+tb*4)}, {A(tok+slot*20+tb*4)}')
                n += 1
                if n == 4 and ks + 1 < NKS:
                    rd = reads(ks + 1)
                if n >= 4 and ks + 1 < NKS and rd:
                    e(rd.pop(0))
                if n % 2 == 0 and lg:
                    emit_group(lg.pop(0))
        while lg:
            emit_group(lg.pop(0))
    stamp()
    e(f'''
    v_lshrrev_b32 {V(tmp)}, 4, v0
    v_mul_u32_u24 {V(tmp)}, 272, {V(tmp)}
    v_and_b32 {V(tmp+1)}, 15, v0
    v_lshl_add_u32 {V(tmp)}, {V(tmp+1)}, 4, {V(tmp)}
    v_add_u32 {V(tmp)}, {S(sM0)}, {V(tmp)}
    ''')
    for blk in range(20):
        e(f'ds_write_b128 {V(tmp)}, {V(acc+blk*4,4)} offset:{blk*1088}')
    e(f'''
    s_mov_b32 {S(srdO)}, {S(s_wd+2)}
    s_mov_b32 {S(srdO+1)}, {S(s_wd+3)}
    s_mov_b32 {S(srdO+2)}, {2048*1152}
    v_lshrrev_b32 {V(tmp+2)}, 3, v0
    s_lshl_b32 {S(sT)}, {S(sW)}, 3
    v_add_u32 {V(tmp+2)}, {S(sT)}, {V(tmp+2)}
    v_and_b32 {V(tmp+3)}, 7, v0
    ''')
    e(f'''
    v_lshrrev_b32 {V(tmp+4)}, 4, {V(tmp+2)}
    v_lshlrev_b32 {V(tmp+4)}, 2, {V(tmp+4)}
    v_lshrrev_b32 {V(tmp+5)}, 1, {V(tmp+3)}
    v_add_u32 {V(tmp+4)}, {V(tmp+4)}, {V(tmp+5)}
    v_mul_u32_u24 {V(tmp+4)}, 1088, {V(tmp+4)}
    v_and_b32 {V(tmp+5)}, 1, {V(tmp+3)}
    v_mul_u32_u24 {V(tmp+6)}, 544, {V(tmp+5)}
    v_and_b32 {V(tmp+7)}, 15, {V(tmp+2)}
    v_lshlrev_b32 {V(tmp+7)}, 4, {V(tmp+7)}
    v_add3_u32 {V(tmp+4)}, {V(tmp+4)}, {V(tmp+6)}, {V(tmp+7)}
    v_add_u32 {V(tmp+8)}, {2*WAVE_LDS}, {V(tmp+4)}
    ''')
    e(f'''
    v_lshrrev_b32 {V(tmp+6)}, 4, {V(tmp+2)}
    v_lshlrev_b32 {V(tmp+6)}, 1, {V(tmp+6)}
    v_lshrrev_b32 {V(tmp+9)}, 2, {V(tmp+3)}
    v_add_u32 {V(tmp+6)}, {V(tmp+6)}, {V(tmp+9)}
    v_lshlrev_b32 {V(tmp+6)}, 10, {V(tmp+6)}
    v_lshl_add_u32 {V(tmp+6)}, {V(tmp+5)}, 9, {V(tmp+6)}
    v_bfe_u32 {V(tmp+9)}, {V(tmp+3)}, 1, 1
    v_lshl_add_u32 {V(tmp+6)}, {V(tmp+9)}, 3, {V(tmp+6)}
    v_add3_u32 {V(tmp+6)}, {V(tmp+6)}, {V(tmp+7)}, {S(sRow2)}
    ''' .replace(f'{S(sRow2)}\n', f'{V(tmp+10)}\n'))
    k.items.insert(len(k.items) - 1, Ins(f'v_mov_b32 {V(tmp+10)}, {HL}'))
    e(f'''
    v_mul_u32_u24 {V(tmp+9)}, 1152, {V(tmp+2)}
    v_lshl_add_u32 {V(tmp+9)}, {V(tmp+3)}, 4, {V(tmp+9)}
    s_mul_i32 {S(sT)}, {S(sM)}, {80*1152}
    s_lshl_b32 {S(sT2)}, {S(sN)}, 7
    s_add_u32 {S(sT)}, {S(sT)}, {S(sT2)}
    ''')
    k.wait_vm(['hres'])
    e('s_waitcnt lgkmcnt(0)')
    e('s_barrier')
    P = acc
    assert wf == acc + 80
    for r in range(3):
        base = P + r * 36
        if r == 2:
            e(f's_cmp_ge_u32 {S(sW)}, 2')
            e(f's_cbranch_scc1 L_{name}_r2a')
            k.opt(True)
        for w in range(4):
            va = tmp + 4 if w < 2 else tmp + 8
            off = (w & 1) * WAVE_LDS + r * 8 * 1088
            e(f'ds_read_b128 {V(base+w*8,4)}, {V(va)} offset:{off}')
            e(f'ds_read_b128 {V(base+w*8+4,4)}, {V(va)} offset:{off+272}')
        e(f'ds_read_b64 {V(base+32,2)}, {V(tmp+6)} offset:{r*4096}')
        e(f'ds_read_b64 {V(base+34,2)}, {V(tmp+6)} offset:{r*4096+256}')
        if r == 2:
            k.opt(False)
            k.label(f'L_{name}_r2a')
    for r in range(3):
        base = P + r * 36
        if r == 2:
            e(f's_cmp_ge_u32 {S(sW)}, 2')
            e(f's_cbranch_scc1 L_{name}_r2b')
            k.opt(True)
            e('s_waitcnt lgkmcnt(0)')
        for q in range(8):
            e(f'v_add_f32 {V(base+q)}, {V(base+q)}, {V(base+8+q)}')
            e(f'v_add_f32 {V(base+16+q)}, {V(base+16+q)}, {V(base+24+q)}')
        for q in range(8):
            e(f'v_add_f32 {V(base+q)}, {V(base+q)}, {V(base+16+q)}')
        for q in range(4):
            e(f'v_cvt_pk_bf16_f32 {V(base+8+q)}, {V(base+2*q)}, {V(base+2*q+1)}')
        for q in range(4):
            e(f'v_lshlrev_b32 {V(base+2*q)}, 16, {V(base+8+q)}')
            e(f'v_and_b32 {V(base+2*q+1)}, 0xffff0000, {V(base+8+q)}')
            e(f'v_lshlrev_b32 {V(base+16+2*q)}, 16, {V(base+32+q)}')
            e(f'v_and_b32 {V(base+16+2*q+1)}, 0xffff0000, {V(base+32+q)}')
        for q in range(8):
            e(f'v_add_f32 {V(base+q)}, {V(base+q)}, {V(base+16+q)}')
        for q in range(4):
            e(f'v_cvt_pk_bf16_f32 {V(base+8+q)}, {V(base+2*q)}, {V(base+2*q+1)}')
        e(f'buffer_store_dwordx4 {V(base+8,4)}, {V(tmp+9)}, {S(srdO,4)}, {S(sT)} offen')
        e(f's_add_u32 {S(sT)}, {S(sT)}, {32*1152}')
        if r == 2:
            k.opt(False)
            k.label(f'L_{name}_r2b')
    if stamps:
        stamp()
        e('s_waitcnt vmcnt(0)')
        stamp()
        emit_stamp_dump(k, e, sStamp, nst, srdW, s_wd, sT, sW, tmp, int(stamps) - 1)
    k.label(f'L_{name}_end')
    e('s_endpgm')
    return k
```

```python
from asmb import *
from layout import *
from k4 import F, emit_stamp_dump


def build_k5s(name='k5_kernel', WF=6, PF=5, TF=8, stamps=False, vm_every=1, pre_stages=2, no_xchg=False, DIST=3):
    k = Kernel(name)
    NS = 18
    RING = 8
    PART = RING * 9216
    k.lds = 2 * PART
    k.ns = 3
    s_wd = k.s(4, 4)
    s_ws = k.s(2, 2)
    srdW = k.s(4, 4); srdS = k.s(4, 4); srdO = k.s(4, 4)
    sW = k.s(); sPart = k.s(); sJ = k.s(); sM = k.s(); sN = k.s(); sS = k.s(); sT = k.s(); sT2 = k.s()
    sM0 = k.s(); sM8 = k.s(); sTok0 = k.s(); sTok1 = k.s(); sRow = k.s(); sRow2 = k.s(); sTile = k.s(); sTbl = k.s()
    sPub = k.s(); sFl = k.s(); sH = k.s()
    k.nv = 1
    vL16 = k.v(); vL8 = k.v()
    vA = k.v(2)
    vdma = k.v(6)
    acc = k.v(72, 4)
    hres = k.v(18, 2)
    tmp = k.v(60, 4)
    wf = k.a(WF * 4, 4)
    tok = k.a(TF * 8, 4)
    assert (k.nv + 3) // 4 * 4 + k.na <= 256, (k.nv, k.na)
    e = k.e
    sStamp = k.s(24, 2) if stamps else None
    nst = [0]

    def stamp():
        if stamps:
            e(f's_memtime {S(sStamp + 2*nst[0], 2)}'); e('s_waitcnt lgkmcnt(0)'); nst[0] += 1

    def ACC(tb, fb):
        return acc + (tb * 9 + fb) * 4
    e(f'''
    s_cmp_ge_u32 s2, 256
    s_cbranch_scc1 L_{name}_end
    s_load_dwordx4 {S(s_wd,4)}, s[0:1], {KA_WD}
    s_load_dwordx2 {S(s_ws,2)}, s[0:1], {KA_WS}
    v_lshrrev_b32 {V(tmp)}, 6, v0
    v_and_b32 v0, 63, v0
    v_readfirstlane_b32 {S(sW)}, {V(tmp)}
    v_lshlrev_b32 {V(vL16)}, 4, v0
    v_lshlrev_b32 {V(vL8)}, 3, v0
    s_and_b32 {S(sS)}, s2, 3
    s_bfe_u32 {S(sT)}, s2, 0x10002
    s_lshl_b32 {S(sM)}, {S(sT)}, 3
    s_bfe_u32 {S(sT)}, s2, 0x30003
    s_add_u32 {S(sM)}, {S(sM)}, {S(sT)}
    s_lshr_b32 {S(sN)}, s2, 6
    s_lshr_b32 {S(sPart)}, {S(sW)}, 2
    s_and_b32 {S(sJ)}, {S(sW)}, 3
    ''')
    stamp()
    if stamps:
        e(f's_memrealtime {S(sStamp+20,2)}')
    e(f'''
    s_lshl_b32 {S(sT)}, {S(sJ)}, 6
    v_add_u32 {V(tmp)}, {S(sT)}, v0
    s_lshl_b32 {S(sT)}, {S(sJ)}, 4
    v_add_u32 {V(tmp+3)}, {S(sT)}, v0
    s_mul_i32 {S(sM0)}, {S(sPart)}, {PART}
    s_lshl_b32 {S(sT)}, {S(sJ)}, 8
    s_add_u32 {S(sM8)}, {S(sM0)}, {S(sT)}
    s_lshl_b32 {S(sT)}, {S(sJ)}, 10
    s_add_u32 {S(sM0)}, {S(sM0)}, {S(sT)}
    s_lshl_b32 {S(sT)}, {S(sS)}, 1
    s_add_u32 {S(sT)}, {S(sT)}, {S(sPart)}
    s_mul_i32 {S(sRow)}, {S(sT)}, {576*1152}
    s_mul_i32 {S(sT2)}, {S(sN)}, 288
    s_add_u32 {S(sRow)}, {S(sRow)}, {S(sT2)}
    s_mul_i32 {S(sTok0)}, {S(sT)}, {18*1024}
    s_lshl_b32 {S(sT)}, {S(sM)}, 2
    s_add_u32 {S(sT)}, {S(sT)}, {S(sJ)}
    s_mul_i32 {S(sT)}, {S(sT)}, {2*144*1024}
    s_add_u32 {S(sTok0)}, {S(sTok0)}, {S(sT)}
    s_add_u32 {S(sTok0)}, {S(sTok0)}, {HH}
    s_add_u32 {S(sTok1)}, {S(sTok0)}, {144*1024}
    ''')

    def dma_voff(i):
        d = vdma + i
        return [f'v_add_u32 {V(tmp+1)}, {256*i}, {V(tmp)}' if i < 2 else f'v_add_u32 {V(tmp+1)}, 512, {V(tmp+3)}',
                f'v_mul_u32_u24 {V(tmp+2)}, 3641, {V(tmp+1)}',
                f'v_lshrrev_b32 {V(tmp+2)}, 16, {V(tmp+2)}',
                f'v_lshrrev_b32 {V(tmp+4)}, 4, {V(tmp+2)}',
                f'v_mul_u32_u24 {V(tmp+2)}, {1152-288}, {V(tmp+2)}',
                f'v_lshl_add_u32 {V(d)}, {V(tmp+1)}, 4, {V(tmp+2)}',
                f'v_mul_u32_u24 {V(tmp+4)}, {128*1152}, {V(tmp+4)}',
                f'v_add_u32 {V(d+3)}, {V(d)}, {V(tmp+4)}']
    for i in range(3):
        e('\n'.join(dma_voff(i)))
    e(f'''
    s_waitcnt lgkmcnt(0)
    s_mov_b32 {S(srdW)}, {S(s_wd)}
    s_mov_b32 {S(srdW+1)}, {S(s_wd+1)}
    s_mov_b32 {S(srdW+2)}, {4608*1152}
    s_mov_b32 {S(srdW+3)}, 0x00020000
    s_mov_b32 {S(srdS)}, {S(s_ws)}
    s_mov_b32 {S(srdS+1)}, {S(s_ws+1)}
    s_mov_b32 {S(srdS+2)}, {WS_USED}
    s_mov_b32 {S(srdS+3)}, 0x00020000
    s_mov_b32 {S(srdO)}, {S(s_wd+2)}
    s_mov_b32 {S(srdO+1)}, {S(s_wd+3)}
    s_mov_b32 {S(srdO+2)}, {2048*1152}
    s_mov_b32 {S(srdO+3)}, 0x00020000
    ''')
    order = [(St, fb) for St in range(NS) for fb in range(9)]
    N = len(order)
    pend = []
    for St in range(NS):
        for i in range(3):
            pend.append((St * 9 - PF, 0, 'dma', (St, i)))
        for tb in range(2):
            pend.append((St * 9, 1 + tb, 'tok', (St, tb)))
    pend.sort(key=lambda x: (x[0], x[1]))
    barrier_passed = [-1]
    tok_sbase = [0, 0]

    def row0(St):
        P, i = divmod(St, 9)
        return 288 * P + (32 * i if i < 4 else 144 + 32 * (i - 4) if i < 8 else 128)

    def eligible(p, n):
        St = p[3][0]
        if St * 9 > max(n, 0) + DIST * 9:
            return False
        if p[2] == 'dma':
            return St < RING or barrier_passed[0] >= St - 6
        return St < TF or (St - TF) * 9 + 8 < n

    def issue(p):
        if p[2] == 'dma':
            St, i = p[3]
            slot = St % RING
            if i < 2:
                e(f's_add_u32 m0, {S(sM0)}, {slot * 9216 + i * 4096}')
            else:
                e(f's_add_u32 m0, {S(sM8)}, {slot * 9216 + 8192}')
            if i == 0:
                e(f's_add_u32 {S(sRow2)}, {S(sRow)}, {row0(St)*1152}')
            if i == 2:
                e('s_mov_b64 exec, 0xffff')
            vv = vdma + i + (3 if St % 9 == 8 else 0)
            e(f'buffer_load_dwordx4 {V(vv)}, {S(srdW,4)}, {S(sRow2)} offen lds', tag=f'st{St}')
            if i == 2:
                e('s_mov_b64 exec, -1')
        else:
            St, tb = p[3]
            sT_ = sTok1 if tb else sTok0
            while St - tok_sbase[tb] >= 4:
                e(f's_add_u32 {S(sT_)}, {S(sT_)}, 4096'); tok_sbase[tb] += 4
            e(f'buffer_load_dwordx4 {A(tok + (St % TF) * 8 + 4 * tb, 4)}, {V(vL16)}, {S(srdS,4)}, {S(sT_)} offen offset:{(St - tok_sbase[tb]) * 1024}')

    def pop_issue(n, maxn=1):
        c = 0
        while pend and c < maxn:
            for q, p in enumerate(pend):
                if eligible(p, n):
                    if any(pp[2] == p[2] for pp in pend[:q]):
                        continue
                    issue(p); pend.pop(q); c += 1
                    break
            else:
                break
    pop_issue(-1, 5 * pre_stages)
    e(f'''
    v_lshrrev_b32 {V(tmp+4)}, 2, v0
    v_mul_u32_u24 {V(vA)}, 288, {V(tmp+4)}
    v_and_b32 {V(tmp+5)}, 3, v0
    v_lshl_add_u32 {V(vA)}, {V(tmp+5)}, 3, {V(vA)}
    s_mul_i32 {S(sT)}, {S(sPart)}, {PART}
    v_add_u32 {V(vA)}, {S(sT)}, {V(vA)}
    v_add_u32 {V(vA+1)}, {4*9216}, {V(vA)}
    s_lshl_b32 {S(sTile)}, {S(sM)}, 2
    s_add_u32 {S(sTile)}, {S(sTile)}, {S(sN)}
    s_lshl_b32 {S(sTbl)}, {S(sJ)}, 1
    s_add_u32 {S(sTbl)}, {S(sTbl)}, {S(sPart)}
    s_lshl_b32 {S(sFl)}, {S(sTile)}, 7
    s_add_u32 {S(sFl)}, {S(sFl)}, {FL}
    s_lshl_b32 {S(sT)}, {S(sTile)}, 5
    s_add_u32 {S(sT)}, {S(sT)}, {S(sTbl)}
    s_mul_i32 {S(sPub)}, {S(sT)}, 4608
    s_add_u32 {S(sPub)}, {S(sPub)}, {PP}
    s_lshl_b32 {S(sT)}, {S(sM)}, 3
    s_add_u32 {S(sT)}, {S(sT)}, {S(sTbl)}
    s_mul_i32 {S(sH)}, {S(sT)}, {18*1024}
    s_add_u32 {S(sH)}, {S(sH)}, {HF}
    ''')

    def reads(n):
        St, fb = order[n]
        if St > barrier_passed[0]:
            assert not any(q[2] == 'dma' and q[3][0] <= St for q in pend), ('dma late', St)
            k.wait_vm([f'st{s}' for s in range(St + 1)])
            e('s_barrier')
            barrier_passed[0] = St
            if St in (0, 1, 6, 12):
                stamp()
        slot = St % RING
        off = (slot & 3) * 9216 + fb * 32
        b = wf + (n % WF) * 4
        e(f'ds_read_b64_tr_b16 {A(b,2)}, {V(vA + (slot >> 2))} offset:{off}')
        e(f'ds_read_b64_tr_b16 {A(b+2,2)}, {V(vA + (slot >> 2))} offset:{off+4608}')

    hl_done = [False]

    def h_loads():
        e(f's_cmp_lg_u32 {S(sJ)}, {S(sS)}')
        e(f's_cbranch_scc1 L_{name}_noh')
        k.opt(True)
        for fb in range(9):
            e(f's_mul_i32 {S(sT)}, {S(sN)}, 9')
            e(f's_add_u32 {S(sT)}, {S(sT)}, {fb}')
            e(f's_lshr_b32 {S(sT2)}, {S(sT)}, 1')
            e(f's_lshl_b32 {S(sT2)}, {S(sT2)}, 10')
            e(f's_and_b32 {S(sT)}, {S(sT)}, 1')
            e(f's_lshl_b32 {S(sT)}, {S(sT)}, 3')
            e(f's_add_u32 {S(sT)}, {S(sT)}, {S(sT2)}')
            e(f's_add_u32 {S(sT)}, {S(sT)}, {S(sH)}')
            e(f'buffer_load_dwordx2 {V(hres+2*fb,2)}, {V(vL16)}, {S(srdS,4)}, {S(sT)} offen')
        k.opt(False)
        k.label(f'L_{name}_noh')

    for n in range(PF):
        reads(n)
    for n in range(N):
        St, fb = order[n]
        if n + PF < N:
            reads(n + PF)
        assert not any(q[2] == 'tok' and q[3][0] <= St for q in pend), ('tok late', St)
        for tb in range(2):
            a0 = ACC(tb, fb)
            c = '0' if St == 0 else V(a0, 4)
            e(f'v_mfma_f32_16x16x32_bf16 {V(a0,4)}, {A(wf+(n%WF)*4,4)}, {A(tok+(St%TF)*8+4*tb,4)}, {c}')
        if n % vm_every == 0:
            pop_issue(n + 1, 1)
        if not pend and not hl_done[0]:
            h_loads(); hl_done[0] = True
    assert not pend
    stamp()
    e('s_barrier')
    e(f'''
    s_mul_i32 {S(sT)}, {S(sW)}, 9216
    v_add_u32 {V(tmp)}, {S(sT)}, {V(vL16)}
    s_xor_b32 {S(sT2)}, {S(sW)}, 4
    s_mul_i32 {S(sT2)}, {S(sT2)}, 9216
    v_add_u32 {V(tmp+1)}, {S(sT2)}, {V(vL16)}
    s_cmp_eq_u32 {S(sPart)}, 0
    s_cbranch_scc1 L_{name}_p0
    ''')
    k.save_state()
    for fb in range(9):
        e(f'ds_write_b128 {V(tmp)}, {V(ACC(0,fb),4)} offset:{fb*1024}')
    e('s_waitcnt lgkmcnt(0)')
    for q in range(36):
        e(f'v_mov_b32 {V(acc+q)}, {V(acc+36+q)}')
    e(f's_branch L_{name}_pj')
    k.label(f'L_{name}_p0')
    k.reset_state()
    for fb in range(9):
        e(f'ds_write_b128 {V(tmp)}, {V(ACC(1,fb),4)} offset:{fb*1024}')
    e('s_waitcnt lgkmcnt(0)')
    k.label(f'L_{name}_pj')
    e('s_nop 1')
    e('s_barrier')
    rb = acc + 36
    for fb in range(9):
        e(f'ds_read_b128 {V(rb+4*fb,4)}, {V(tmp+1)} offset:{fb*1024}')
    for q in range(36):
        e(f'v_add_f32 {V(acc+q)}, {V(acc+q)}, {V(rb+q)}')
    stamp()
    e(f's_cmp_eq_u32 {S(sJ)}, {S(sS)}')
    e(f's_cbranch_scc1 L_{name}_fin')
    k.save_state()
    pk = tmp + 4
    for q in range(18):
        e(f'v_cvt_pk_bf16_f32 {V(pk+q)}, {V(acc+2*q)}, {V(acc+2*q+1)}')
    e(f's_mul_i32 {S(sT)}, {S(sS)}, {8*4608}')
    e(f's_add_u32 {S(sT)}, {S(sT)}, {S(sPub)}')
    e(f's_add_u32 {S(sT2)}, {S(sT)}, 4096')
    for p in range(4):
        e(f'buffer_store_dwordx4 {V(pk+4*p,4)}, {V(vL16)}, {S(srdS,4)}, {S(sT)} offen offset:{p*1024} sc1')
    e(f'buffer_store_dwordx2 {V(pk+16,2)}, {V(vL8)}, {S(srdS,4)}, {S(sT2)} offen sc1')
    e('s_waitcnt vmcnt(0)')
    e('s_barrier')
    e('s_endpgm')
    k.label(f'L_{name}_fin')
    k.reset_state()
    e('s_barrier')
    e(f'''
    s_cmp_lg_u32 {S(sPart)}, 0
    s_cbranch_scc1 L_{name}_poll
    v_mov_b32 {V(tmp+2)}, 1
    v_mov_b32 {V(tmp+3)}, 0
    s_lshl_b32 {S(sT)}, {S(sS)}, 2
    s_add_u32 {S(sT)}, {S(sT)}, {S(sFl)}
    s_mov_b64 exec, 1
    ''')
    k.opt(True)
    e(f'buffer_store_dword {V(tmp+2)}, {V(tmp+3)}, {S(srdS,4)}, {S(sT)} offen sc1')
    k.opt(False)
    e('s_mov_b64 exec, -1')
    k.label(f'L_{name}_poll')
    e(f'v_mov_b32 {V(tmp+3)}, 0')
    k.label(f'L_{name}_spin')
    e(f'''
    buffer_load_dwordx4 {V(tmp+4,4)}, {V(tmp+3)}, {S(srdS,4)}, {S(sFl)} offen sc1
    s_waitcnt vmcnt(0)
    v_and_b32 {V(tmp+4)}, {V(tmp+4)}, {V(tmp+5)}
    v_and_b32 {V(tmp+6)}, {V(tmp+6)}, {V(tmp+7)}
    v_and_b32 {V(tmp+4)}, {V(tmp+4)}, {V(tmp+6)}
    v_readfirstlane_b32 {S(sT)}, {V(tmp+4)}
    s_cmp_eq_u32 {S(sT)}, 1
    s_cbranch_scc0 L_{name}_spin
    ''')
    stamp()
    ld = tmp + 4
    for d in range(1, 4):
        base = (ld + (d - 1) * 20) if d < 3 else rb
        e(f'''
        s_add_u32 {S(sT)}, {S(sS)}, {d}
        s_and_b32 {S(sT)}, {S(sT)}, 3
        s_mul_i32 {S(sT)}, {S(sT)}, {8*4608}
        s_add_u32 {S(sT)}, {S(sT)}, {S(sPub)}
        s_add_u32 {S(sT2)}, {S(sT)}, 4096
        ''')
        for p in range(4):
            e(f'buffer_load_dwordx4 {V(base+4*p,4)}, {V(vL16)}, {S(srdS,4)}, {S(sT)} offen offset:{p*1024} sc1')
        e(f'buffer_load_dwordx2 {V(base+16,2)}, {V(vL8)}, {S(srdS,4)}, {S(sT2)} offen sc1')
    t2 = tmp + 44
    RS = 304
    e(f'''
    v_and_b32 {V(t2)}, 15, v0
    v_mul_u32_u24 {V(t2)}, {RS}, {V(t2)}
    v_lshrrev_b32 {V(t2+1)}, 4, v0
    v_lshl_add_u32 {V(t2)}, {V(t2+1)}, 3, {V(t2)}
    s_mul_i32 {S(sT)}, {S(sW)}, 9216
    v_add_u32 {V(t2)}, {S(sT)}, {V(t2)}
    ''')
    for i in range(5):
        e(f'''
        v_add_u32 {V(t2+1)}, {64*i}, v0
        v_mul_u32_u24 {V(t2+2)}, 3641, {V(t2+1)}
        v_lshrrev_b32 {V(t2+2)}, 16, {V(t2+2)}
        v_mul_u32_u24 {V(t2+3)}, {RS-288}, {V(t2+2)}
        v_lshl_add_u32 {V(t2+3)}, {V(t2+1)}, 4, {V(t2+3)}
        v_add_u32 {V(t2+4+i)}, {S(sT)}, {V(t2+3)}
        v_mul_u32_u24 {V(t2+3)}, {1152-288}, {V(t2+2)}
        v_lshl_add_u32 {V(t2+9+i)}, {V(t2+1)}, 4, {V(t2+3)}
        ''')
    e(f'''
    s_lshl_b32 {S(sT)}, {S(sM)}, 3
    s_add_u32 {S(sT)}, {S(sT)}, {S(sTbl)}
    s_mul_i32 {S(sT)}, {S(sT)}, {16*1152}
    s_mul_i32 {S(sT2)}, {S(sN)}, 288
    s_add_u32 {S(sT)}, {S(sT)}, {S(sT2)}
    ''')
    u0, u1 = tmp, tmp + 1
    for d in range(1, 4):
        base = (ld + (d - 1) * 20) if d < 3 else rb
        for q in range(18):
            e(f'v_lshlrev_b32 {V(u0)}, 16, {V(base+q)}')
            e(f'v_and_b32 {V(u1)}, 0xffff0000, {V(base+q)}')
            e(f'v_add_f32 {V(acc+2*q)}, {V(acc+2*q)}, {V(u0)}')
            e(f'v_add_f32 {V(acc+2*q+1)}, {V(acc+2*q+1)}, {V(u1)}')
    e('s_waitcnt vmcnt(0)')
    pk = ld
    for q in range(18):
        e(f'v_cvt_pk_bf16_f32 {V(pk+q)}, {V(acc+2*q)}, {V(acc+2*q+1)}')
        e(f'v_lshlrev_b32 {V(acc+2*q)}, 16, {V(pk+q)}')
        e(f'v_and_b32 {V(acc+2*q+1)}, 0xffff0000, {V(pk+q)}')
        e(f'v_lshlrev_b32 {V(u0)}, 16, {V(hres+q)}')
        e(f'v_and_b32 {V(u1)}, 0xffff0000, {V(hres+q)}')
        e(f'v_add_f32 {V(acc+2*q)}, {V(acc+2*q)}, {V(u0)}')
        e(f'v_add_f32 {V(acc+2*q+1)}, {V(acc+2*q+1)}, {V(u1)}')
        e(f'v_cvt_pk_bf16_f32 {V(pk+q)}, {V(acc+2*q)}, {V(acc+2*q+1)}')
    for fb in range(9):
        e(f'ds_write_b64 {V(t2)}, {V(pk+2*fb,2)} offset:{fb*32}')
    e('s_waitcnt lgkmcnt(0)')
    for i in range(5):
        e(f'ds_read_b128 {V(acc+4*i,4)}, {V(t2+4+i)}')
    for i in range(5):
        if i == 4:
            e('s_mov_b64 exec, 0xffffffff')
        e(f'buffer_store_dwordx4 {V(acc+4*i,4)}, {V(t2+9+i)}, {S(srdO,4)}, {S(sT)} offen')
    e('s_mov_b64 exec, -1')
    if stamps:
        stamp()
        e('s_waitcnt vmcnt(0)')
        stamp()
        emit_stamp_dump(k, e, sStamp, nst, srdW, s_wd, sT, sW, tmp, int(stamps) - 1)
    k.label(f'L_{name}_end')
    e('s_endpgm')
    return k
```

```python
S_, D_, F_, H_, DH = 2048, 576, 4608, 32, 18
QF = 0x000000
KF = 0x240000
VF = 0x480000
VT = 0x680000
OF = 0x6C0000
HF = 0x900000
ST = 0xB40000
CS = 0xB70000
MX = 0xB70000
WB = 0xB74000
FL = 0xB78000
HH = 0xC00000
HC = 0x1E00000
PP = 0x2040000
WS_USED = 0x2A00000
KA_X, KA_WQKV, KA_WO, KA_BX, KA_WG, KA_WU, KA_WD, KA_OUT, KA_DBG, KA_WS = [8 * i for i in range(10)]


def hh_block_order():
    out = []
    for P in range(16):
        e, o = 18 * P, 18 * P + 9
        for i in range(4):
            out += [e + 2 * i, e + 2 * i + 1]
        for i in range(4):
            out += [o + 2 * i, o + 2 * i + 1]
        out += [e + 8, o + 8]
    return out


import numpy as np


def to_frag(u16, nks):
    return u16.reshape(128, 16, nks, 2, 4, 4).transpose(0, 2, 4, 1, 3, 5).copy()


def from_frag(u16, nks):
    return u16.reshape(128, nks, 4, 16, 2, 4).transpose(0, 3, 1, 4, 2, 5).reshape(2048, nks * 32)


def head_slots(h):
    return list(range(18)) if h % 2 == 0 else list(range(2, 18)) + [0, 1]


def pack_qk(u16):
    out = np.zeros((32, 128, 288), dtype=np.uint16)
    for h in range(32):
        a = u16[:, 18 * h:18 * h + 18][:, head_slots(h)].reshape(128, 16, 18)
        out[h, :, :256] = a[:, :, :16].reshape(128, 16, 2, 8).transpose(0, 2, 1, 3).reshape(128, 256)
        out[h, :, 256:] = a[:, :, 16:].reshape(128, 32)
    return out


def unpack_qk(arr):
    arr = arr.reshape(32, 128, 288)
    out = np.zeros((2048, 576), dtype=np.uint16)
    for h in range(32):
        a = np.zeros((128, 16, 18), dtype=np.uint16)
        a[:, :, :16] = arr[h, :, :256].reshape(128, 2, 16, 8).transpose(0, 2, 1, 3).reshape(128, 16, 16)
        a[:, :, 16:] = arr[h, :, 256:].reshape(128, 16, 2)
        out[:, [18 * h + d for d in head_slots(h)]] = a.reshape(2048, 18)
    return out


def pack_v(u16):
    v = u16.reshape(64, 2, 4, 4, 32, 18)
    a = v.transpose(4, 0, 2, 5, 1, 3)
    vf = a[:, :, :, :16].copy()
    vt = a[:, :, :, 16:].copy()
    return vf, vt


def unpack_v(vf, vt):
    a = np.concatenate([vf.reshape(32, 64, 4, 16, 2, 4), vt.reshape(32, 64, 4, 2, 2, 4)], axis=3)
    return a.transpose(1, 4, 2, 5, 0, 3).reshape(2048, 576)
```

```python
from asmb import *
from layout import *


def pf_gate_up(k, sW, s_ptr8, srdP, sT, sT2, vP, nload=3, lanes=54):
    def lines(dst, first):
        return (f'' if first else f'v_add_u32 {V(vP+5)}, {lanes}, {V(vP+5)}\n') + f'''
        v_mul_u32_u24 {V(vP+6)}, 3641, {V(vP+5)}
        v_lshrrev_b32 {V(vP+6)}, 16, {V(vP+6)}
        v_mul_u32_u24 {V(vP+6)}, {9216-18*128}, {V(vP+6)}
        v_lshl_add_u32 {V(dst)}, {V(vP+5)}, 7, {V(vP+6)}
        v_add_u32 {V(dst)}, {S(sT)}, {V(dst)}
        '''
    setup = f'''
        s_lshr_b32 {S(sT)}, s2, 3
        s_lshl_b32 {S(sT)}, {S(sT)}, 2
        s_add_u32 {S(sT)}, {S(sT)}, {S(sW)}
        s_cmp_lt_u32 {S(sT)}, 64
        s_cselect_b32 {S(srdP)}, {S(s_ptr8+4)}, {S(s_ptr8+6)}
        s_cselect_b32 {S(srdP+1)}, {S(s_ptr8+5)}, {S(s_ptr8+7)}
        s_mov_b32 {S(srdP+2)}, {576*9216}
        s_mov_b32 {S(srdP+3)}, 0x00020000
        s_mov_b32 {S(srdP+4)}, {S(s_ptr8)}
        s_mov_b32 {S(srdP+5)}, {S(s_ptr8+1)}
        s_mov_b32 {S(srdP+6)}, {576*1152}
        s_mov_b32 {S(srdP+7)}, 0x00020000
        s_lshl_b32 {S(sT2)}, {S(sT)}, 6
        v_add_u32 {V(vP+4)}, {S(sT2)}, v0
        v_lshlrev_b32 {V(vP+4)}, 7, {V(vP+4)}
        s_and_b32 {S(sT)}, {S(sT)}, 63
        s_mul_i32 {S(sT)}, {S(sT)}, {nload*lanes}
        v_add_u32 {V(vP+5)}, {S(sT)}, v0
        s_and_b32 {S(sT)}, s2, 3
        s_mul_i32 {S(sT)}, {S(sT)}, 2304
        ''' + ''.join(lines(vP + i, i == 0) for i in range(nload))
    loads = [f'buffer_load_dword {V(vP+4)}, {V(vP+4)}, {S(srdP+4,4)}, 0 offen', f's_bfm_b64 exec, {lanes}, 0' if lanes < 64 else 's_nop 0']
    loads += [f'buffer_load_dword {V(vP+i)}, {V(vP+i)}, {S(srdP,4)}, 0 offen' for i in range(nload)]
    loads += ['s_mov_b64 exec, -1']
    return setup, loads


def pf_down(k, sW, s_wd, srdP, sT, sT2, vP):
    setup = f'''
        s_lshr_b32 {S(sT)}, s2, 3
        s_lshl_b32 {S(sT)}, {S(sT)}, 3
        s_add_u32 {S(sT)}, {S(sT)}, {S(sW)}
        s_mul_i32 {S(sT)}, {S(sT)}, 41
        s_and_b32 {S(sT2)}, s2, 3
        s_mul_i32 {S(sT2)}, {S(sT2)}, 10368
        s_add_u32 {S(sT)}, {S(sT)}, {S(sT2)}
        v_add_u32 {V(vP)}, {S(sT)}, v0
        v_lshlrev_b32 {V(vP)}, 7, {V(vP)}
        s_mov_b32 {S(srdP)}, {S(s_wd)}
        s_mov_b32 {S(srdP+1)}, {S(s_wd+1)}
        s_mov_b32 {S(srdP+2)}, {4608*1152}
        s_mov_b32 {S(srdP+3)}, 0x00020000
        '''
    loads = ['s_bfm_b64 exec, 41, 0', f'buffer_load_dword {V(vP)}, {V(vP)}, {S(srdP,4)}, 0 offen', 's_mov_b64 exec, -1']
    return setup, loads
```

```python
import sys, os; sys.path.insert(0,'dev')
from asmb import *; from layout import *
import k1, k2, k3, k4, k5, k5s
NAME = 'sequential_preLN__sliding_block__glu_gated_glu__prompt'
def build(path, stamps=False, **opt):
    ref = open(f'cdna_kernels/{NAME}.s.ref').read().split('\n')
    hdr = [l for l in ref if l.startswith(';') and '@launch' not in l and 'Override launch' not in l and 'grid=ceil' not in l]
    st = (lambda i: i if stamps else False)
    K1 = k1.build_k1(name=NAME+'_kernel', stamps=st(1), code_pf=(('k2_kernel', 'L_code_end') if opt.get('code_pf', True) else None)); K2 = k2.build_k2(stamps=st(2), colsum=False, code_pf=('k3_kernel', 'k5_kernel'), **opt.get('k2', {})); K3 = k3.build_k3(stamps=st(3)); K4 = k4.build_k4(stamps=st(4), code_pf=('k5_kernel', 'L_code_end'), **opt.get('k4', {})); K5 = k5s.build_k5s(stamps=st(5), **opt.get('k5', {}))
    K5.label('L_code_end')
    launches = [(K1.name, 256, 256, K1.lds), (K2.name, 256, 256, K2.lds), (K3.name, 240, 320, K3.lds), (K4.name, 256, 512, K4.lds), (K5.name, 256, 512, K5.lds)]
    assemble_file(hdr, launches, [K1, K2, K3, K4, K5], path)
if __name__ == '__main__':
    build(sys.argv[1] if len(sys.argv) > 1 else f'cdna_kernels/{NAME}.s')
```

```python
from asmb import *
from layout import *
from k4 import F, bf16_round, LOG2E
from k4 import emit_stamp_dump
from k3 import row_reduce

QSCALE = 18 ** -0.5 * LOG2E


def build_k1(name='k1_kernel', stamps=False, extra=None, code_pf=None):
    k = Kernel(name)
    SLOT = 32768
    STL = 4 * SLOT
    k.lds = STL + 2048
    k.ns = 3
    s_x = k.s(4, 4)
    s_ws = k.s(2, 2)
    srdX = k.s(4, 4); srdW = k.s(4, 4); srdS = k.s(4, 4)
    sW = k.s(); sM = k.s(); sN = k.s(); sT = k.s(); sT2 = k.s(); sTW = k.s(); sCW = k.s(); sC64 = k.s()
    sM0 = k.s(); sXo = k.s(); sWo = k.s(); sTmpO = k.s(); sOne = k.s(); sSt = k.s(); sSec = k.s()
    sMask = k.s(8, 2)
    sO0 = k.s(); sO1 = k.s()
    k.nv = 1
    vDx = k.v(); vDw = k.v()
    vT = k.v(4)
    vWa = k.v(8)
    acc = k.v(64, 4)
    tf = k.v(32, 4)
    wf = k.v(32, 4)
    ssum = k.v(8, 4); ssq = k.v(8, 4); csum = k.v(8, 4); ones = k.v(4, 4)
    adr = k.v(8)
    sDiag = k.s(8, 4)
    tmp = k.v(56, 4)
    e = k.e
    sStamp = k.s(24, 2) if stamps else None
    nst = [0]

    def stamp():
        if stamps:
            e(f's_memtime {S(sStamp + 2*nst[0], 2)}'); e('s_waitcnt lgkmcnt(0)'); nst[0] += 1
    e(f'''
    s_cmp_ge_u32 s2, 256
    s_cbranch_scc1 L_{name}_x
    v_lshrrev_b32 {V(tmp)}, 6, v0
    v_and_b32 v0, 63, v0
    v_readfirstlane_b32 {S(sW)}, {V(tmp)}
    s_cmp_ge_u32 s2, 224
    s_cbranch_scc1 L_{name}_pf
    s_load_dwordx4 {S(s_x,4)}, s[0:1], {KA_X}
    s_load_dwordx2 {S(s_ws,2)}, s[0:1], {KA_WS}
    s_and_b32 {S(sT)}, s2, 7
    s_lshr_b32 {S(sT2)}, s2, 3
    s_lshl_b32 {S(sM)}, {S(sT)}, 1
    s_and_b32 {S(sT)}, {S(sT2)}, 1
    s_add_u32 {S(sM)}, {S(sM)}, {S(sT)}
    s_lshr_b32 {S(sN)}, {S(sT2)}, 1
    s_lshr_b32 {S(sTW)}, {S(sW)}, 1
    s_and_b32 {S(sCW)}, {S(sW)}, 1
    s_lshl_b32 {S(sC64)}, {S(sN)}, 1
    s_add_u32 {S(sC64)}, {S(sC64)}, {S(sCW)}
    ''')
    stamp()
    if stamps:
        e(f's_memrealtime {S(sStamp+20,2)}')
    e(f'''
    v_lshrrev_b32 {V(tmp)}, 3, v0
    v_mul_u32_u24 {V(vDx)}, 1152, {V(tmp)}
    v_lshrrev_b32 {V(tmp+1)}, 4, v0
    s_lshl_b32 {S(sT)}, {S(sCW)}, 2
    v_add_u32 {V(tmp+2)}, {S(sT)}, {V(tmp+1)}
    v_and_b32 {V(tmp+3)}, 7, v0
    v_xor_b32 {V(tmp+2)}, {V(tmp+2)}, {V(tmp+3)}
    v_lshl_add_u32 {V(vDx)}, {V(tmp+2)}, 4, {V(vDx)}
    v_lshrrev_b32 {V(tmp+2)}, 5, v0
    v_lshlrev_b32 {V(tmp+2)}, 3, {V(tmp+2)}
    v_and_b32 {V(tmp)}, 3, {V(tmp)}
    v_add_u32 {V(tmp+2)}, {V(tmp+2)}, {V(tmp)}
    v_mul_u32_u24 {V(vDw)}, 3456, {V(tmp+2)}
    v_lshlrev_b32 {V(tmp+1)}, 1, {V(tmp+1)}
    v_xor_b32 {V(tmp+1)}, {V(tmp+1)}, {V(tmp+3)}
    v_lshl_add_u32 {V(vDw)}, {V(tmp+1)}, 4, {V(vDw)}
    s_lshl_b32 {S(sM0)}, {S(sW)}, 10
    s_lshl_b32 {S(sT)}, {S(sM)}, 7
    s_lshl_b32 {S(sT2)}, {S(sW)}, 3
    s_add_u32 {S(sT)}, {S(sT)}, {S(sT2)}
    s_mul_i32 {S(sXo)}, {S(sT)}, 1152
    s_lshl_b32 {S(sT)}, {S(sTW)}, 4
    s_lshl_b32 {S(sT2)}, {S(sCW)}, 2
    s_add_u32 {S(sT)}, {S(sT)}, {S(sT2)}
    s_mul_i32 {S(sWo)}, {S(sT)}, 3456
    s_lshl_b32 {S(sT)}, {S(sN)}, 8
    s_add_u32 {S(sWo)}, {S(sWo)}, {S(sT)}
    s_mov_b32 {S(sOne)}, 0x3f803f80
    s_waitcnt lgkmcnt(0)
    s_mov_b32 {S(srdX)}, {S(s_x)}
    s_mov_b32 {S(srdX+1)}, {S(s_x+1)}
    s_mov_b32 {S(srdX+2)}, {2048*1152}
    s_mov_b32 {S(srdX+3)}, 0x00020000
    s_mov_b32 {S(srdW)}, {S(s_x+2)}
    s_mov_b32 {S(srdW+1)}, {S(s_x+3)}
    s_mov_b32 {S(srdW+2)}, {576*3456}
    s_mov_b32 {S(srdW+3)}, 0x00020000
    s_mov_b32 {S(srdS)}, {S(s_ws)}
    s_mov_b32 {S(srdS+1)}, {S(s_ws+1)}
    s_mov_b32 {S(srdS+2)}, {WS_USED}
    s_mov_b32 {S(srdS+3)}, 0x00020000
    ''')

    def dma(St):
        slot = St % 4
        out = []
        for i in range(4):
            out.append([(f's_add_u32 m0, {S(sM0)}, {slot*SLOT + i*4096}', None),
                        (f's_add_u32 {S(sTmpO)}, {S(sXo)}, {i*32*1152 + St*128}', None),
                        (f'buffer_load_dwordx4 {V(vDx)}, {S(srdX,4)}, {S(sTmpO)} offen lds', f'st{St}')])
            out.append([(f's_add_u32 m0, {S(sM0)}, {slot*SLOT + 16384 + i*4096}', None),
                        (f's_add_u32 {S(sTmpO)}, {S(sWo)}, {St*64*3456 + (i&1)*32*3456 + (i>>1)*128}', None),
                        (f'buffer_load_dwordx4 {V(vDw)}, {S(srdW,4)}, {S(sTmpO)} offen lds', f'st{St}')])
        return out

    def emit_group(g):
        for t, tag in g:
            e(t, tag=tag)
    for g in dma(0):
        emit_group(g)
    if code_pf:
        from pf import pf_code
        sPa = k.s(2, 2); sPs = k.s(2, 2); vPc = k.v(2)
        pf_code(k, name, code_pf[0], sPa, sW, sT, sPs, vPc)
    for g in dma(1):
        emit_group(g)
    if code_pf:
        e(f's_lshr_b32 {S(sT2)}, s2, 3')
        e(f's_lshl_b32 {S(sT2)}, {S(sT2)}, 2')
        e(f's_add_u32 {S(sT2)}, {S(sT2)}, {S(sW)}')
        e(f's_and_b32 {S(sT2)}, {S(sT2)}, 31')
        pf_code(k, code_pf[0], code_pf[1], sPa, sT2, sT, sPs, vPc + 1)
    e(f'''
    v_and_b32 {V(tmp)}, 15, v0
    v_lshrrev_b32 {V(tmp+1)}, 4, v0
    v_lshrrev_b32 {V(tmp+2)}, 1, {V(tmp)}
    v_xor_b32 {V(tmp+2)}, {V(tmp+2)}, {V(tmp+1)}
    v_lshlrev_b32 {V(tmp+3)}, 7, {V(tmp)}
    v_lshl_add_u32 {V(tmp+3)}, {V(tmp+2)}, 4, {V(tmp+3)}
    s_lshl_b32 {S(sT)}, {S(sTW)}, 13
    v_add_u32 {V(vT)}, {S(sT)}, {V(tmp+3)}
    v_add_u32 {V(vT+1)}, {2*SLOT}, {V(vT)}
    v_xor_b32 {V(vT+2)}, 64, {V(vT)}
    v_add_u32 {V(vT+3)}, {2*SLOT}, {V(vT+2)}
    v_lshrrev_b32 {V(tmp+2)}, 5, v0
    v_lshlrev_b32 {V(tmp+2)}, 4, {V(tmp+2)}
    v_bfe_u32 {V(tmp+3)}, v0, 2, 3
    v_add_u32 {V(tmp+2)}, {V(tmp+2)}, {V(tmp+3)}
    v_lshlrev_b32 {V(tmp+2)}, 7, {V(tmp+2)}
    v_and_b32 {V(tmp+4)}, 3, v0
    v_lshl_add_u32 {V(tmp+2)}, {V(tmp+4)}, 3, {V(tmp+2)}
    s_lshl_b32 {S(sT)}, {S(sCW)}, 13
    s_add_u32 {S(sT)}, {S(sT)}, 16384
    v_add_u32 {V(tmp+2)}, {S(sT)}, {V(tmp+2)}
    v_bfe_u32 {V(tmp+3)}, v0, 3, 2
    ''')
    for fb in range(4):
        e(f'v_xor_b32 {V(tmp+4)}, {fb}, {V(tmp+3)}')
        e(f'v_lshl_add_u32 {V(vWa+2*fb)}, {V(tmp+4)}, 5, {V(tmp+2)}')
        e(f'v_add_u32 {V(vWa+2*fb+1)}, {2*SLOT}, {V(vWa+2*fb)}')
    for r in range(4):
        e(f'v_mov_b32 {V(ones+r)}, 0x3f803f80')
    e(f'''
    v_and_b32 {V(tmp)}, 3, v0
    v_cmp_eq_u32 {S(sDiag,2)}, 1, {V(tmp)}
    v_cmp_eq_u32 {S(sDiag+2,2)}, 2, {V(tmp)}
    v_cmp_eq_u32 {S(sDiag+4,2)}, 3, {V(tmp)}
    v_bfe_u32 {V(tmp)}, v0, 2, 2
    v_lshrrev_b32 {V(tmp+1)}, 4, v0
    v_cmp_eq_u32 {S(sDiag+6,2)}, {V(tmp)}, {V(tmp+1)}
    ''')

    vT2 = k.v(4)
    e(f's_lshl_b32 {S(sT)}, {S(sCW)}, 12')
    e(f's_sub_u32 {S(sT2)}, 4096, {S(sT)}')
    for q in range(4):
        e(f'v_add_u32 {V(vT2+q)}, {S(sT2)}, {V(vT+q)}')
        e(f'v_add_u32 {V(vT+q)}, {S(sT)}, {V(vT+q)}')
    e(f's_cmp_eq_u32 {S(sTW)}, 0')
    e(f's_cbranch_scc1 L_{name}_nosw')
    k.opt(True)
    for q in range(4):
        e(f'v_swap_b32 {V(vWa+q)}, {V(vWa+4+q)}')
    k.opt(False)
    k.label(f'L_{name}_nosw')

    def reads(ks):
        St, s = ks >> 1, ks & 1
        slot = St % 4
        hi = slot >> 1
        o = []
        b = ks % 2
        for i in range(4):
            va = (vT if i < 2 else vT2) + 2 * s + hi
            o.append(f'ds_read_b128 {V(tf+b*16+i*4,4)}, {V(va)} offset:{(slot&1)*SLOT + (i&1)*2048}')
            off = (slot & 1) * SLOT + s * 4096
            o.append(f'ds_read_b64_tr_b16 {V(wf+b*16+i*4,2)}, {V(vWa+2*i+hi)} offset:{off}')
            o.append(f'ds_read_b64_tr_b16 {V(wf+b*16+i*4+2,2)}, {V(vWa+2*i+hi)} offset:{off+1024}')
        return o

    def statops(ks):
        b = ks % 2
        o = []
        for i in range(2):
            T_, W_ = V(tf + b * 16 + i * 4, 4), V(wf + b * 16 + i * 4, 4)
            for (d, x, y) in ((ssum + 4 * i, V(ones, 4), T_), (ssq + 4 * i, T_, T_), (csum + 4 * i, V(ones, 4), W_)):
                c = '0' if ks == 0 else V(d, 4)
                o.append(f'v_mfma_f32_16x16x32_bf16 {V(d,4)}, {x}, {y}, {c}')
        return o

    def mainloop(orient):
        pend = dma(2) + dma(3)
        k.wait_vm(['st0'])
        e('s_barrier')
        if orient == 0:
            stamp()
        for o in reads(0):
            e(o)
        for ks in range(18):
            b = ks % 2
            rd = []
            if ks + 1 < 18:
                if (ks + 1) % 2 == 0:
                    St = (ks + 1) // 2
                    assert not any(x[1] == f'st{St}' for g in pend for x in g)
                    k.wait_vm([f'st{St}'])
                    e('s_waitcnt lgkmcnt(0)')
                    e('s_barrier')
                    if St + 3 < 9:
                        pend += dma(St + 3)
                rd = reads(ks + 1)
            so = statops(ks)
            n = 0
            for i in range(4):
                for j in range(4):
                    a0 = acc + (i * 4 + j) * 4
                    c = '0' if ks == 0 else V(a0, 4)
                    T_, W_ = V(tf + b * 16 + i * 4, 4), V(wf + b * 16 + j * 4, 4)
                    if orient == 0:
                        e(f'v_mfma_f32_16x16x32_bf16 {V(a0,4)}, {W_}, {T_}, {c}')
                    else:
                        e(f'v_mfma_f32_16x16x32_bf16 {V(a0,4)}, {T_}, {W_}, {c}')
                    if rd:
                        e(rd.pop(0))
                    if n >= 10 and so:
                        e(so.pop(0))
                    if n % 2 == 1 and pend:
                        emit_group(pend.pop(0))
                    n += 1
            assert not so and not rd
        assert not pend

    def stats_addr():
        t = tmp
        e(f'''
        v_and_b32 {V(t)}, 15, v0
        v_lshlrev_b32 {V(t)}, 2, {V(t)}
        s_lshl_b32 {S(sT)}, {S(sTW)}, 8
        s_lshl_b32 {S(sT2)}, {S(sCW)}, 7
        s_add_u32 {S(sT)}, {S(sT)}, {S(sT2)}
        s_add_u32 {S(sT)}, {S(sT)}, {STL}
        v_add_u32 {V(adr)}, {S(sT)}, {V(t)}
        s_lshl_b32 {S(sT)}, {S(sCW)}, 8
        s_lshl_b32 {S(sT2)}, {S(sTW)}, 7
        s_add_u32 {S(sT)}, {S(sT)}, {S(sT2)}
        s_add_u32 {S(sT)}, {S(sT)}, {STL+1024}
        v_add_u32 {V(adr+1)}, {S(sT)}, {V(t)}
        ''')

    def stats_finish(store_mean=False):
        ops = [[], []]
        for i in range(2):
            m, v = ssum + 4 * i, ssq + 4 * i
            o = ops[i]
            for r in range(1, 4):
                o.append(f'v_cndmask_b32 {V(v)}, {V(v)}, {V(v+r)}, {S(sDiag+2*(r-1),2)}')
            o.append(f'v_mul_f32 {V(m)}, {F(1.0/576)}, {V(m)}')
            o.append(f'v_mov_b32 {V(m+1)}, {V(m)}')
            o.append(f'v_mul_f32 {V(v)}, {F(1.0/576)}, {V(v)}')
            o.append(f'v_fma_f32 {V(v)}, -{V(m)}, {V(m)}, {V(v)}')
            o.append(f'v_max_f32 {V(v)}, 0, {V(v)}')
            o += bf16_round(m, m) + bf16_round(v, v)
            o.append(f'v_add_f32 {V(v)}, {F(1e-5)}, {V(v)}')
            o += bf16_round(v, v)
            o.append(f'v_sqrt_f32 {V(v)}, {V(v)}')
            o += bf16_round(v, v)
            o.append(f'v_rcp_f32 {V(v)}, {V(v)}')
            o.append(f'v_sub_f32 {V(m)}, 0, {V(m)}')
        e('\n'.join(interleave(ops[0], ops[1])))
        e(f'''
        s_mov_b64 exec, {S(sDiag+6,2)}
        ds_write_b32 {V(adr)}, {V(ssum)}
        ds_write_b32 {V(adr)}, {V(ssum+4)} offset:64
        ds_write_b32 {V(adr)}, {V(ssq)} offset:512
        ds_write_b32 {V(adr)}, {V(ssq+4)} offset:576
        ds_write_b32 {V(adr+1)}, {V(csum)}
        ds_write_b32 {V(adr+1)}, {V(csum+4)} offset:64
        ''')
        if store_mean:
            e(f's_cmp_lg_u32 {S(sN)}, 0')
            e(f's_cbranch_scc1 L_{name}_nomx')
            k.opt(True)
            e(f's_lshl_b32 {S(sT)}, {S(sM)}, 9')
            e(f's_add_u32 {S(sT)}, {S(sT)}, {MX-STL}')
            e(f'buffer_store_dword {V(ssum+1)}, {V(adr)}, {S(srdS,4)}, {S(sT)} offen')
            e(f'buffer_store_dword {V(ssum+5)}, {V(adr)}, {S(srdS,4)}, {S(sT)} offen offset:64')
            k.opt(False)
            k.label(f'L_{name}_nomx')
        e(f'''
        s_mov_b64 exec, -1
        s_waitcnt lgkmcnt(0)
        s_barrier
        ''')

    e(f's_cmp_ge_u32 {S(sC64)}, 18')
    e(f's_cbranch_scc1 L_{name}_v')
    k.save_state()
    t = tmp + 40
    e(f'''
    s_cmp_ge_u32 {S(sC64)}, 9
    s_cselect_b32 {S(sSec)}, 9, 0
    s_cselect_b32 {S(sSt)}, {KF}, {QF}
    s_sub_u32 {S(sSec)}, {S(sC64)}, {S(sSec)}
    s_lshl_b32 {S(sSec)}, {S(sSec)}, 4
    s_lshl_b32 {S(sT)}, {S(sM)}, 3
    s_lshl_b32 {S(sT2)}, {S(sTW)}, 2
    s_add_u32 {S(sT)}, {S(sT)}, {S(sT2)}
    s_mul_i32 {S(sT)}, {S(sT)}, 576
    s_add_u32 {S(sSt)}, {S(sSt)}, {S(sT)}
    v_lshrrev_b32 {V(t)}, 4, v0
    v_add_u32 {V(t)}, {S(sSec)}, {V(t)}
    v_and_b32 {V(t+1)}, 15, v0
    s_lshl_b32 {S(sT)}, {S(sTW)}, 3
    ''')
    for j in range(4):
        e(f'''
        s_xor_b32 {S(sT2)}, {S(sT)}, {4*j}
        v_add_u32 {V(t+2)}, {S(sT2)}, {V(t)}
        v_mul_u32_u24 {V(t+3)}, 7282, {V(t+2)}
        v_lshrrev_b32 {V(t+3)}, 16, {V(t+3)}
        v_mul_u32_u24 {V(t+4)}, 9, {V(t+3)}
        v_sub_u32 {V(t+4)}, {V(t+2)}, {V(t+4)}
        v_cmp_lt_u32 vcc, 4, {V(t+4)}
        v_cmp_eq_u32 {S(sMask+2*j,2)}, 4, {V(t+4)}
        v_mul_u32_u24 {V(t+3)}, {2*128*576}, {V(t+3)}
        v_subrev_u32 {V(t+5)}, 5, {V(t+4)}
        v_cndmask_b32 {V(t+4)}, {V(t+4)}, {V(t+5)}, vcc
        v_add_u32 {V(t+5)}, {128*576}, {V(t+3)}
        v_cndmask_b32 {V(t+6)}, {V(t+3)}, {V(t+5)}, vcc
        v_lshrrev_b32 {V(t+7)}, 1, {V(t+4)}
        v_lshl_add_u32 {V(t+6)}, {V(t+7)}, 8, {V(t+6)}
        v_and_b32 {V(t+7)}, 1, {V(t+4)}
        v_lshl_add_u32 {V(t+6)}, {V(t+7)}, 3, {V(t+6)}
        v_lshl_add_u32 {V(t+6)}, {V(t+1)}, 4, {V(t+6)}
        v_lshl_add_u32 {V(t+3)}, {V(t+1)}, 2, {V(t+3)}
        v_add_u32 {V(t+3)}, 512, {V(t+3)}
        v_cndmask_b32 {V(t+8+2*j)}, {V(t+6)}, {V(t+3)}, {S(sMask+2*j,2)}
        v_add_u32 {V(t+9+2*j)}, {128*576}, {V(t+3)}
        ''')
    stats_addr()
    e(f'''
    v_and_b32 {V(tmp)}, 15, v0
    v_lshlrev_b32 {V(tmp)}, 2, {V(tmp)}
    s_lshl_b32 {S(sT)}, {S(sTW)}, 8
    s_lshl_b32 {S(sT2)}, {S(sCW)}, 7
    s_add_u32 {S(sT)}, {S(sT)}, {STL}
    s_add_u32 {S(sTmpO)}, {S(sT)}, {S(sT2)}
    v_add_u32 {V(adr+2)}, {S(sTmpO)}, {V(tmp)}
    s_sub_u32 {S(sT2)}, 128, {S(sT2)}
    s_add_u32 {S(sTmpO)}, {S(sT)}, {S(sT2)}
    v_add_u32 {V(adr+3)}, {S(sTmpO)}, {V(tmp)}
    v_lshrrev_b32 {V(tmp)}, 4, v0
    v_lshlrev_b32 {V(tmp)}, 4, {V(tmp)}
    s_lshl_b32 {S(sT)}, {S(sCW)}, 8
    s_lshl_b32 {S(sT2)}, {S(sTW)}, 7
    s_add_u32 {S(sT)}, {S(sT)}, {STL+1024}
    s_add_u32 {S(sTmpO)}, {S(sT)}, {S(sT2)}
    v_add_u32 {V(adr+4)}, {S(sTmpO)}, {V(tmp)}
    s_sub_u32 {S(sT2)}, 128, {S(sT2)}
    s_add_u32 {S(sTmpO)}, {S(sT)}, {S(sT2)}
    v_add_u32 {V(adr+5)}, {S(sTmpO)}, {V(tmp)}
    ''')
    mainloop(0)
    stamp()
    aQ = t + 8
    stats_finish(True)
    st = tmp
    for i in range(4):
        va = adr + 2 + (i >> 1)
        e(f'ds_read_b32 {V(st+i)}, {V(va)} offset:{(i&1)*64}')
        e(f'ds_read_b32 {V(st+4+i)}, {V(va)} offset:{512+(i&1)*64}')
    for j in range(4):
        va = adr + 4 + (j >> 1)
        e(f'ds_read_b128 {V(st+8+4*j,4)}, {V(va)} offset:{(j&1)*64}')
    e(f's_cmp_ge_u32 {S(sC64)}, 9')
    e(f's_cselect_b32 {S(sT)}, 1.0, {F(QSCALE)}')
    for i in range(4):
        e(f'v_mul_f32 {V(st+4+i)}, {S(sT)}, {V(st+4+i)}')
    e(f'''
    s_mul_i32 {S(sT)}, {S(sCW)}, {2*576}
    s_add_u32 {S(sO0)}, {S(sSt)}, {S(sT)}
    s_sub_u32 {S(sT)}, {2*576}, {S(sT)}
    s_add_u32 {S(sO1)}, {S(sSt)}, {S(sT)}
    ''')
    for j in range(4):
        for i in range(4):
            a0 = acc + (i * 4 + j) * 4
            for r in range(4):
                e(f'v_fma_f32 {V(a0+r)}, {V(st+8+4*j+r)}, {V(st+i)}, {V(a0+r)}')
            for r in range(4):
                e(f'v_mul_f32 {V(a0+r)}, {V(a0+r)}, {V(st+4+i)}')
            e(f'v_cvt_pk_bf16_f32 {V(a0)}, {V(a0)}, {V(a0+1)}')
            e(f'v_cvt_pk_bf16_f32 {V(a0+1)}, {V(a0+2)}, {V(a0+3)}')
        e(f's_andn2_b64 exec, -1, {S(sMask+2*j,2)}')
        for i in range(4):
            a0 = acc + (i * 4 + j) * 4
            so_ = sO0 if i < 2 else sO1
            e(f'buffer_store_dwordx2 {V(a0,2)}, {V(aQ+2*j)}, {S(srdS,4)}, {S(so_)} offen offset:{(i&1)*576}')
        e(f's_mov_b64 exec, {S(sMask+2*j,2)}')
        e(f's_cbranch_execz L_{name}_ns{j}')
        k.opt(True)
        for i in range(4):
            a0 = acc + (i * 4 + j) * 4
            so_ = sO0 if i < 2 else sO1
            e(f'buffer_store_dword {V(a0)}, {V(aQ+2*j)}, {S(srdS,4)}, {S(so_)} offen offset:{(i&1)*576}')
            e(f'buffer_store_dword {V(a0+1)}, {V(aQ+2*j+1)}, {S(srdS,4)}, {S(so_)} offen offset:{(i&1)*576}')
        k.opt(False)
        k.label(f'L_{name}_ns{j}')
        e('s_mov_b64 exec, -1')
    if stamps:
        stamp()
        e('s_waitcnt vmcnt(0)')
        stamp()
        emit_stamp_dump(k, e, sStamp, nst, srdW, s_x, sT, sW, tmp, int(stamps) - 1)
    e('s_endpgm')

    k.label(f'L_{name}_v')
    k.reset_state()
    t = tmp + 40
    e(f'''
    s_sub_u32 {S(sSec)}, {S(sC64)}, 18
    s_lshl_b32 {S(sSec)}, {S(sSec)}, 6
    v_and_b32 {V(t)}, 15, v0
    v_add_u32 {V(t)}, {S(sSec)}, {V(t)}
    v_lshrrev_b32 {V(t+1)}, 4, v0
    s_lshl_b32 {S(sT)}, {S(sTW)}, 5
    s_lshl_b32 {S(sSt)}, {S(sM)}, 2
    s_lshl_b32 {S(sT2)}, {S(sTW)}, 1
    s_add_u32 {S(sSt)}, {S(sSt)}, {S(sT2)}
    s_add_u32 {S(sO0)}, {S(sSt)}, {S(sCW)}
    s_sub_u32 {S(sO1)}, 1, {S(sCW)}
    s_add_u32 {S(sO1)}, {S(sO1)}, {S(sSt)}
    ''')
    for j in range(4):
        e(f'''
        s_xor_b32 {S(sT2)}, {S(sT)}, {16*j}
        v_add_u32 {V(t+2)}, {S(sT2)}, {V(t)}
        v_mul_u32_u24 {V(t+3)}, 3641, {V(t+2)}
        v_lshrrev_b32 {V(t+3)}, 16, {V(t+3)}
        v_mul_u32_u24 {V(t+4)}, 18, {V(t+3)}
        v_sub_u32 {V(t+4)}, {V(t+2)}, {V(t+4)}
        v_cmp_lt_u32 vcc, 15, {V(t+4)}
        v_lshlrev_b32 {V(t+3)}, 6, {V(t+3)}
        ''')
        for c in range(2):
            sc = sO0 if c == 0 else sO1
            e(f'''
            v_add_u32 {V(t+5)}, {S(sc)}, {V(t+3)}
            v_lshlrev_b32 {V(t+6)}, 10, {V(t+5)}
            v_lshl_add_u32 {V(t+6)}, {V(t+1)}, 8, {V(t+6)}
            v_lshl_add_u32 {V(t+6)}, {V(t+4)}, 4, {V(t+6)}
            v_add_u32 {V(t+6)}, {VF}, {V(t+6)}
            v_lshlrev_b32 {V(t+7)}, 7, {V(t+5)}
            v_lshl_add_u32 {V(t+7)}, {V(t+1)}, 5, {V(t+7)}
            v_lshl_add_u32 {V(t+7)}, {V(t+4)}, 4, {V(t+7)}
            v_add_u32 {V(t+7)}, {VT-256}, {V(t+7)}
            v_cndmask_b32 {V(t+8+2*j+c)}, {V(t+6)}, {V(t+7)}, vcc
            ''')
    stats_addr()
    e(f'''
    v_lshrrev_b32 {V(tmp)}, 4, v0
    v_lshlrev_b32 {V(tmp)}, 4, {V(tmp)}
    s_lshl_b32 {S(sT)}, {S(sTW)}, 8
    s_lshl_b32 {S(sT2)}, {S(sCW)}, 7
    s_add_u32 {S(sT)}, {S(sT)}, {STL}
    s_add_u32 {S(sTmpO)}, {S(sT)}, {S(sT2)}
    v_add_u32 {V(adr+2)}, {S(sTmpO)}, {V(tmp)}
    s_sub_u32 {S(sT2)}, 128, {S(sT2)}
    s_add_u32 {S(sTmpO)}, {S(sT)}, {S(sT2)}
    v_add_u32 {V(adr+3)}, {S(sTmpO)}, {V(tmp)}
    v_and_b32 {V(tmp)}, 15, v0
    v_lshlrev_b32 {V(tmp)}, 2, {V(tmp)}
    s_lshl_b32 {S(sT)}, {S(sCW)}, 8
    s_lshl_b32 {S(sT2)}, {S(sTW)}, 7
    s_add_u32 {S(sT)}, {S(sT)}, {STL+1024}
    s_add_u32 {S(sTmpO)}, {S(sT)}, {S(sT2)}
    v_add_u32 {V(adr+4)}, {S(sTmpO)}, {V(tmp)}
    s_sub_u32 {S(sT2)}, 128, {S(sT2)}
    s_add_u32 {S(sTmpO)}, {S(sT)}, {S(sT2)}
    v_add_u32 {V(adr+5)}, {S(sTmpO)}, {V(tmp)}
    ''')
    mainloop(1)
    aV = t + 8
    stats_finish()
    e(f's_cmp_ge_u32 {S(sC64)}, 27')
    e(f's_cbranch_scc1 L_{name}_x')
    st = tmp
    for i in range(4):
        va = adr + 2 + (i >> 1)
        e(f'ds_read_b128 {V(st+4*i,4)}, {V(va)} offset:{(i&1)*64}')
        e(f'ds_read_b128 {V(st+16+4*i,4)}, {V(va)} offset:{512+(i&1)*64}')
    for j in range(4):
        va = adr + 4 + (j >> 1)
        e(f'ds_read_b32 {V(st+32+j)}, {V(va)} offset:{(j&1)*64}')
    for j in range(4):
        for c in range(2):
            pk = wf + (j * 2 + c) * 4
            for hf in range(2):
                i = 2 * c + hf
                a0 = acc + (i * 4 + j) * 4
                for r in range(4):
                    e(f'v_fma_f32 {V(a0+r)}, {V(st+32+j)}, {V(st+4*i+r)}, {V(a0+r)}')
                for r in range(4):
                    e(f'v_mul_f32 {V(a0+r)}, {V(a0+r)}, {V(st+16+4*i+r)}')
                e(f'v_cvt_pk_bf16_f32 {V(pk+2*hf)}, {V(a0)}, {V(a0+1)}')
                e(f'v_cvt_pk_bf16_f32 {V(pk+2*hf+1)}, {V(a0+2)}, {V(a0+3)}')
            e(f'buffer_store_dwordx4 {V(pk,4)}, {V(aV+2*j+c)}, {S(srdS,4)}, 0 offen')
    k.label(f'L_{name}_x')
    e('s_endpgm')
    k.label(f'L_{name}_pf')
    k.clear_state()
    e(f'''
    s_load_dwordx2 {S(s_x,2)}, s[0:1], {KA_WO}
    s_load_dwordx2 {S(s_ws,2)}, s[0:1], {KA_WS}
    s_sub_u32 {S(sT)}, s2, 224
    s_lshl_b32 {S(sT)}, {S(sT)}, 2
    s_add_u32 {S(sT)}, {S(sT)}, {S(sW)}
    s_cmp_ge_u32 {S(sT)}, 72
    s_cbranch_scc1 L_{name}_x
    v_lshrrev_b32 v1, 3, v0
    v_mul_u32_u24 v2, 1152, v1
    v_and_b32 v3, 7, v0
    v_lshl_add_u32 v2, v3, 4, v2
    s_mul_i32 {S(sT2)}, {S(sT)}, {8*1152}
    s_waitcnt lgkmcnt(0)
    s_mov_b32 {S(srdX)}, {S(s_x)}
    s_mov_b32 {S(srdX+1)}, {S(s_x+1)}
    s_mov_b32 {S(srdX+2)}, {576*1152}
    s_mov_b32 {S(srdX+3)}, 0x00020000
    s_mov_b32 {S(srdS)}, {S(s_ws)}
    s_mov_b32 {S(srdS+1)}, {S(s_ws+1)}
    s_mov_b32 {S(srdS+2)}, {WS_USED}
    s_mov_b32 {S(srdS+3)}, 0x00020000
    ''')
    for i in range(9):
        e(f'buffer_load_dwordx4 {V(16+4*i,4)}, v2, {S(srdX,4)}, {S(sT2)} offen offset:{i*128}')
    e(f'''
    s_lshl_b32 {S(sT)}, {S(sT)}, 3
    v_add_u32 v1, {S(sT)}, v1
    v_lshrrev_b32 v4, 5, v1
    v_lshlrev_b32 v5, 6, v4
    v_bfe_u32 v4, v1, 2, 2
    v_lshl_add_u32 v5, v4, 4, v5
    v_bfe_u32 v4, v1, 4, 1
    v_lshl_add_u32 v5, v4, 3, v5
    v_and_b32 v4, 3, v1
    v_lshl_add_u32 v5, v4, 1, v5
    v_add_u32 v5, {WB}, v5
    v_mov_b32 v6, 0
    v_mov_b32 v7, 0
    v_cmp_eq_u32 {S(sMask,2)}, 0, v3
    ''')
    for i in range(36):
        e(f'v_lshlrev_b32 v8, 16, {V(16+i)}')
        e(f'v_and_b32 v9, 0xffff0000, {V(16+i)}')
        e(f'v_add_f32 v6, v6, v8')
        e(f'v_add_f32 v7, v7, v9')
    e(f'''
    v_add_f32 v6, v6, v7
    v_add_f32_dpp v7, v6, v6 quad_perm:[1,0,3,2] row_mask:0xf bank_mask:0xf
    v_add_f32_dpp v6, v7, v7 quad_perm:[2,3,0,1] row_mask:0xf bank_mask:0xf
    v_add_f32_dpp v7, v6, v6 row_half_mirror row_mask:0xf bank_mask:0xf
    v_mul_f32 v7, {F(1.0/576)}, v7
    v_cvt_pk_bf16_f32 v8, v7, v7
    v_lshlrev_b32 v9, 16, v8
    v_sub_f32 v7, v7, v9
    v_cvt_pk_bf16_f32 v9, v7, v7
    s_mov_b64 exec, {S(sMask,2)}
    buffer_store_short v8, v5, {S(srdS,4)}, 0 offen
    buffer_store_short v9, v5, {S(srdS,4)}, 0 offen offset:1152
    s_endpgm
    ''')
    return k
```

```python
from asmb import *
from layout import *


def pf_gate_up(k, sW, s_ptr8, srdP, sT, sT2, vP, nload=3, lanes=54):
    def lines(dst, first):
        return (f'' if first else f'v_add_u32 {V(vP+5)}, {lanes}, {V(vP+5)}\n') + f'''
        v_mul_u32_u24 {V(vP+6)}, 3641, {V(vP+5)}
        v_lshrrev_b32 {V(vP+6)}, 16, {V(vP+6)}
        v_mul_u32_u24 {V(vP+6)}, {9216-18*128}, {V(vP+6)}
        v_lshl_add_u32 {V(dst)}, {V(vP+5)}, 7, {V(vP+6)}
        v_add_u32 {V(dst)}, {S(sT)}, {V(dst)}
        '''
    setup = f'''
        s_lshr_b32 {S(sT)}, s2, 3
        s_lshl_b32 {S(sT)}, {S(sT)}, 2
        s_add_u32 {S(sT)}, {S(sT)}, {S(sW)}
        s_cmp_lt_u32 {S(sT)}, 64
        s_cselect_b32 {S(srdP)}, {S(s_ptr8+4)}, {S(s_ptr8+6)}
        s_cselect_b32 {S(srdP+1)}, {S(s_ptr8+5)}, {S(s_ptr8+7)}
        s_mov_b32 {S(srdP+2)}, {576*9216}
        s_mov_b32 {S(srdP+3)}, 0x00020000
        s_mov_b32 {S(srdP+4)}, {S(s_ptr8)}
        s_mov_b32 {S(srdP+5)}, {S(s_ptr8+1)}
        s_mov_b32 {S(srdP+6)}, {576*1152}
        s_mov_b32 {S(srdP+7)}, 0x00020000
        s_lshl_b32 {S(sT2)}, {S(sT)}, 6
        v_add_u32 {V(vP+4)}, {S(sT2)}, v0
        v_lshlrev_b32 {V(vP+4)}, 7, {V(vP+4)}
        s_and_b32 {S(sT)}, {S(sT)}, 63
        s_mul_i32 {S(sT)}, {S(sT)}, {nload*lanes}
        v_add_u32 {V(vP+5)}, {S(sT)}, v0
        s_and_b32 {S(sT)}, s2, 3
        s_mul_i32 {S(sT)}, {S(sT)}, 2304
        ''' + ''.join(lines(vP + i, i == 0) for i in range(nload))
    loads = [f'buffer_load_dword {V(vP+4)}, {V(vP+4)}, {S(srdP+4,4)}, 0 offen', f's_bfm_b64 exec, {lanes}, 0' if lanes < 64 else 's_nop 0']
    loads += [f'buffer_load_dword {V(vP+i)}, {V(vP+i)}, {S(srdP,4)}, 0 offen' for i in range(nload)]
    loads += ['s_mov_b64 exec, -1']
    return setup, loads


def pf_down(k, sW, s_wd, srdP, sT, sT2, vP):
    setup = f'''
        s_lshr_b32 {S(sT)}, s2, 3
        s_lshl_b32 {S(sT)}, {S(sT)}, 3
        s_add_u32 {S(sT)}, {S(sT)}, {S(sW)}
        s_mul_i32 {S(sT)}, {S(sT)}, 41
        s_and_b32 {S(sT2)}, s2, 3
        s_mul_i32 {S(sT2)}, {S(sT2)}, 10368
        s_add_u32 {S(sT)}, {S(sT)}, {S(sT2)}
        v_add_u32 {V(vP)}, {S(sT)}, v0
        v_lshlrev_b32 {V(vP)}, 7, {V(vP)}
        s_mov_b32 {S(srdP)}, {S(s_wd)}
        s_mov_b32 {S(srdP+1)}, {S(s_wd+1)}
        s_mov_b32 {S(srdP+2)}, {4608*1152}
        s_mov_b32 {S(srdP+3)}, 0x00020000
        '''
    loads = ['s_bfm_b64 exec, 41, 0', f'buffer_load_dword {V(vP)}, {V(vP)}, {S(srdP,4)}, 0 offen', 's_mov_b64 exec, -1']
    return setup, loads


_pfc = [0]


def pf_code(k, start, end, sA, sShare, sT, sSave, vT):
    _pfc[0] += 1
    L = f'L_pfc{_pfc[0]}'
    e = k.e
    e(f's_getpc_b64 {S(sA,2)}')
    k.label(L)
    e(f'''
    s_add_u32 {S(sA)}, {S(sA)}, {start}-{L}
    s_addc_u32 {S(sA+1)}, {S(sA+1)}, ({start}-{L})>>32
    s_lshl_b32 {S(sT)}, {S(sShare)}, 6
    v_add_u32 {V(vT)}, {S(sT)}, v0
    v_lshlrev_b32 {V(vT)}, 7, {V(vT)}
    s_mov_b32 {S(sT)}, {end}-{start}
    v_cmp_gt_u32 vcc, {S(sT)}, {V(vT)}
    s_and_saveexec_b64 {S(sSave,2)}, vcc
    s_cbranch_execz {L}_s
    ''')
    k.opt(True)
    e(f'global_load_dword {V(vT)}, {V(vT)}, {S(sA,2)}')
    k.opt(False)
    k.label(L + '_s')
    e('s_mov_b64 exec, -1')
```

```python
from asmb import *
from layout import *
from k4 import F
from k4 import emit_stamp_dump
from pf import pf_gate_up

NEG_BIG = 0xFF7FFFFF


def row_max(x, t):
    return [f'v_mov_b32 {V(t)}, {V(x)}',
            f'v_permlane16_swap_b32 {V(x)}, {V(t)}',
            f'v_max_f32 {V(x)}, {V(x)}, {V(t)}',
            f'v_mov_b32 {V(t)}, {V(x)}',
            f'v_permlane32_swap_b32 {V(x)}, {V(t)}',
            f'v_max_f32 {V(x)}, {V(x)}, {V(t)}']


def build_k2(name='k2_kernel', stamps=False, colsum=False, prefetch=True, pf_n=2, pf_lanes=45, pf_late=True, code_pf=None):
    k = Kernel(name)
    k.lds = 1024
    k.ns = 3
    s_ws = k.s(2, 2)
    s_wg = k.s(4, 4)
    srdS = k.s(4, 4)
    srdW = k.s(4, 4)
    sW = k.s(); sH = k.s(); sQB = k.s(); sT = k.s(); sT2 = k.s()
    sK = k.s(3); sQ = k.s(); sV = k.s(3); sV2 = k.s(); sO = k.s()
    sB = k.s(4)
    s_p8 = k.s(8, 4); srdP = k.s(8, 4)
    k.nv = 1
    vL16 = k.v(); vTail = k.v(); vV2 = k.v()
    vO = k.v(3)
    mdiag = k.v(4, 4); mfirst = k.v(4, 4)
    cq = k.v(12, 4)
    NS = 6
    sb = k.v(NS * 4, 4)
    pb = k.v(8, 4)
    o1 = k.v(4, 4); o2 = k.v(4, 4)
    vm = k.v(2)
    tmp = k.v(8, 4)
    vP = k.v(7)
    ores = k.v(12)
    Kf = k.a(80, 4); V1 = k.a(40, 4); V2 = k.a(40, 4); Qf = k.a(16, 4)
    e = k.e
    sStamp = k.s(24, 2) if stamps else None
    nst = [0]

    def stamp():
        if stamps:
            e(f's_memtime {S(sStamp + 2*nst[0], 2)}'); e('s_waitcnt lgkmcnt(0)'); nst[0] += 1
    e(f'''
    s_cmp_ge_u32 s2, 256
    s_cbranch_scc1 L_{name}_cs
    s_load_dwordx2 {S(s_ws,2)}, s[0:1], {KA_WS}
    s_load_dwordx8 {S(s_p8,8)}, s[0:1], {KA_WO}
    v_lshrrev_b32 {V(tmp)}, 6, v0
    v_and_b32 v0, 63, v0
    v_readfirstlane_b32 {S(sW)}, {V(tmp)}
    v_lshlrev_b32 {V(vL16)}, 4, v0
    s_and_b32 {S(sT)}, s2, 7
    s_lshr_b32 {S(sT2)}, s2, 3
    s_lshl_b32 {S(sH)}, {S(sT)}, 2
    s_and_b32 {S(sT)}, {S(sT2)}, 3
    s_add_u32 {S(sH)}, {S(sH)}, {S(sT)}
    s_lshr_b32 {S(sQB)}, {S(sT2)}, 2
    s_lshl_b32 {S(sQB)}, {S(sQB)}, 2
    s_add_u32 {S(sQB)}, {S(sQB)}, {S(sW)}
    ''')
    stamp()
    if stamps:
        e(f's_memrealtime {S(sStamp+20,2)}')
    e(f'''
    s_lshl_b32 {S(sT)}, {S(sH)}, 7
    s_lshl_b32 {S(sT2)}, {S(sQB)}, 2
    s_add_u32 {S(sT)}, {S(sT)}, {S(sT2)}
    s_mul_i32 {S(sQ)}, {S(sT)}, 576
    s_add_u32 {S(sK)}, {S(sQ)}, {KF - 16*576}
    s_add_u32 {S(sK+1)}, {S(sK)}, {7*576}
    s_add_u32 {S(sK+2)}, {S(sK)}, {14*576}
    s_add_u32 {S(sQ)}, {S(sQ)}, {QF}
    s_lshr_b32 {S(sT)}, {S(sT)}, 1
    s_lshl_b32 {S(sV)}, {S(sT)}, 10
    s_add_u32 {S(sV)}, {S(sV)}, {VF - 8*1024}
    s_add_u32 {S(sV+1)}, {S(sV)}, 4096
    s_add_u32 {S(sV+2)}, {S(sV)}, 8192
    s_lshl_b32 {S(sV2)}, {S(sT)}, 7
    s_add_u32 {S(sV2)}, {S(sV2)}, {VT - 8*128}
    s_mul_i32 {S(sO)}, {S(sQB)}, {4*18*1024}
    s_add_u32 {S(sO)}, {S(sO)}, {OF}
    v_lshlrev_b32 {V(vTail)}, 2, v0
    v_add_u32 {V(vTail)}, {512-128}, {V(vTail)}
    v_lshrrev_b32 {V(tmp)}, 4, v0
    v_lshlrev_b32 {V(vV2)}, 5, {V(tmp)}
    v_and_b32 {V(tmp+1)}, 1, v0
    v_lshl_add_u32 {V(vV2)}, {V(tmp+1)}, 4, {V(vV2)}
    ''')
    for gI in range(4):
        e(f's_cmp_ge_u32 {S(sQB)}, {4-gI}')
        e(f's_cselect_b32 {S(sB+gI)}, 0, 0xff7f')
    e(f'v_mov_b32 {V(tmp+2)}, 0')
    e(f'v_mov_b32 {V(tmp+3)}, 0x3f80')
    e(f'v_cmp_gt_u32 vcc, 48, v0')
    e(f'v_cndmask_b32 {V(tmp+3)}, 0, {V(tmp+3)}, vcc')
    for j in range(4):
        e(f'v_accvgpr_write_b32 {A(Qf+4*j)}, {V(tmp+2)}')
        e(f'v_accvgpr_write_b32 {A(Qf+4*j+1)}, {V(tmp+3)}')
        e(f'v_accvgpr_write_b32 {A(Qf+4*j+2)}, {V(tmp+2)}')
        e(f'v_accvgpr_write_b32 {A(Qf+4*j+3)}, {V(tmp+2)}')
    for gI in range(5):
        if gI < 4:
            e(f'v_mov_b32 {V(tmp+3)}, {S(sB+gI)}')
        for i in range(4 * gI, 4 * gI + 4):
            e(f'v_accvgpr_write_b32 {A(Kf+4*i)}, {V(tmp+2)}')
            e(f'v_accvgpr_write_b32 {A(Kf+4*i+1)}, {V(tmp+3 if gI < 4 else tmp+2)}')
            e(f'v_accvgpr_write_b32 {A(Kf+4*i+2)}, {V(tmp+2)}')
            e(f'v_accvgpr_write_b32 {A(Kf+4*i+3)}, {V(tmp+2)}')
    e(f'''
    s_waitcnt lgkmcnt(0)
    s_mov_b32 {S(srdS)}, {S(s_ws)}
    s_mov_b32 {S(srdS+1)}, {S(s_ws+1)}
    s_mov_b32 {S(srdS+2)}, {WS_USED}
    s_mov_b32 {S(srdS+3)}, 0x00020000
    ''')

    def ldK(i, tail):
        so, off = sK + i // 7, (i % 7) * 576
        if tail:
            return f'buffer_load_dword {A(Kf+4*i)}, {V(vTail)}, {S(srdS,4)}, {S(so)} offen offset:{off}'
        return f'buffer_load_dwordx4 {A(Kf+4*i,4)}, {V(vL16)}, {S(srdS,4)}, {S(so)} offen offset:{off}'

    def ldQ(j, tail):
        if tail:
            return f'buffer_load_dword {A(Qf+4*j)}, {V(vTail)}, {S(srdS,4)}, {S(sQ)} offen offset:{j*576}'
        return f'buffer_load_dwordx4 {A(Qf+4*j,4)}, {V(vL16)}, {S(srdS,4)}, {S(sQ)} offen offset:{j*576}'

    def ldV1(c):
        return f'buffer_load_dwordx4 {A(V1+4*c,4)}, {V(vL16)}, {S(srdS,4)}, {S(sV + c//4)} offen offset:{(c%4)*1024}'

    def ldV2(c):
        return f'buffer_load_dwordx4 {A(V2+4*c,4)}, {V(vV2)}, {S(srdS,4)}, {S(sV2)} offen offset:{c*128}'
    EX_LO = 's_mov_b64 exec, 0xffffffff'
    EX_ALL = 's_mov_b64 exec, -1'
    sEx = k.s(4, 2)
    e(f's_mov_b32 {S(sEx)}, 0'); e(f's_mov_b32 {S(sEx+1)}, 0xffff')
    e(f's_mov_b32 {S(sEx+2)}, 0x00030003'); e(f's_mov_b32 {S(sEx+3)}, 0x00030003')
    EX_TAIL = f's_mov_b64 exec, {S(sEx,2)}'
    EX_V2 = f's_mov_b64 exec, {S(sEx+2,2)}'
    e(EX_LO)
    e(ldQ(0, False))
    for i in range(17):
        e(ldK(i, False))
    e(EX_TAIL)
    e(ldQ(0, True))
    for i in range(17):
        e(ldK(i, True))
    e(EX_ALL)
    e(f'v_mov_b32 {V(tmp+3)}, 0x3f803f80')
    for i in range(40):
        e(f'v_accvgpr_write_b32 {A(V2+i)}, {V(tmp+3)}')
    for c in range(9):
        e(ldV1(c))
    e(EX_V2)
    for c in range(9):
        e(ldV2(c))
    e(EX_ALL)
    e(f'''
    v_lshrrev_b32 {V(tmp)}, 4, v0
    v_lshlrev_b32 {V(tmp)}, 2, {V(tmp)}
    v_and_b32 {V(tmp+1)}, 15, v0
    v_mov_b32 {V(tmp+2)}, {hex(NEG_BIG)}
    ''')
    for r in range(4):
        e(f'v_add_u32 {V(tmp+3)}, {r}, {V(tmp)}')
        e(f'v_cmp_gt_u32 vcc, {V(tmp+3)}, {V(tmp+1)}')
        e(f'v_cndmask_b32 {V(mdiag+r)}, 0, {V(tmp+2)}, vcc')
        e(f'v_cndmask_b32 {V(mfirst+r)}, {V(tmp+2)}, {V(tmp+4)}, vcc' if False else f'v_sub_f32 {V(mfirst+r)}, {V(tmp+2)}, {V(mdiag+r)}')
    e(f's_mul_i32 {S(sT)}, {S(sH)}, 18')
    for i in range(3):
        if i < 2:
            e(f'v_add_u32 {V(tmp+3)}, {S(sT)}, {V(tmp)}')
            if i:
                e(f'v_add_u32 {V(tmp+3)}, 2, {V(tmp+3)}')
        else:
            e(f's_add_u32 {S(sT)}, {S(sT)}, 16')
            e(f'v_mov_b32 {V(tmp+3)}, {S(sT)}')
        e(f'''
        v_lshrrev_b32 {V(tmp+4)}, 5, {V(tmp+3)}
        v_lshlrev_b32 {V(vO+i)}, 10, {V(tmp+4)}
        v_bfe_u32 {V(tmp+4)}, {V(tmp+3)}, 2, 2
        v_lshl_add_u32 {V(vO+i)}, {V(tmp+4)}, 8, {V(vO+i)}
        v_lshl_add_u32 {V(vO+i)}, {V(tmp+1)}, 4, {V(vO+i)}
        v_bfe_u32 {V(tmp+4)}, {V(tmp+3)}, 4, 1
        v_lshl_add_u32 {V(vO+i)}, {V(tmp+4)}, 3, {V(vO+i)}
        v_bfe_u32 {V(tmp+4)}, {V(tmp+3)}, 1, 1
        v_lshl_add_u32 {V(vO+i)}, {V(tmp+4)}, 2, {V(vO+i)}
        ''')
    late = [EX_LO] + [ldQ(j, False) for j in (1, 2, 3)] + [ldK(i, False) for i in (17, 18, 19)] + \
           [EX_TAIL] + [ldQ(j, True) for j in (1, 2, 3)] + [ldK(i, True) for i in (17, 18, 19)] + \
           [EX_V2, ldV2(9), EX_ALL, ldV1(9)]
    if prefetch:
        su, pl = pf_gate_up(k, sW, s_p8, srdP, sT, sT2, vP, pf_n, pf_lanes)
        e(su)
        if not pf_late:
            late += pl; pl = []

    stamp()
    sidx = [0]

    def pass1(j):
        ops = []
        pendv = []
        for i in range(17):
            b = sb + (sidx[0] % NS) * 4; sidx[0] += 1
            c = V(mfirst, 4) if i == 0 else V(mdiag, 4) if i == 16 else '0'
            ops.append(f'v_mfma_f32_16x16x32_bf16 {V(b,4)}, {A(Kf+4*(j+i),4)}, {A(Qf+4*j,4)}, {c}')
            m = vm + (i & 1)
            if i < 2:
                va = [f'v_max3_f32 {V(m)}, {V(b)}, {V(b+1)}, {V(b+2)}', f'v_max_f32 {V(m)}, {V(m)}, {V(b+3)}']
            else:
                va = [f'v_max3_f32 {V(m)}, {V(m)}, {V(b)}, {V(b+1)}', f'v_max3_f32 {V(m)}, {V(m)}, {V(b+2)}, {V(b+3)}']
            pendv.append(va)
            if len(pendv) > 3:
                ops += pendv.pop(0)
        for va in pendv:
            ops += va
        ops.append(f'v_max_f32 {V(vm)}, {V(vm)}, {V(vm+1)}')
        ops += row_max(vm, tmp)
        for r in range(4):
            ops.append(f'v_sub_f32 {V(cq+r)}, 0, {V(vm)}')
        for r in range(4):
            ops.append(f'v_sub_f32 {V(cq+4+r)}, {V(mdiag+r)}, {V(vm)}')
            ops.append(f'v_sub_f32 {V(cq+8+r)}, {V(mfirst+r)}, {V(vm)}')
        return ops

    def pass2(j):
        ops = []
        c0 = j // 2
        stages = []
        for ci in range(9):
            c = c0 + ci
            sm, va = [], []
            p = pb + (ci % 2) * 4
            for hf in range(2):
                kb = 2 * c + hf
                i = kb - j
                if i < 0 or i > 16:
                    va += [f'v_mov_b32 {V(p+2*hf)}, 0', f'v_mov_b32 {V(p+2*hf+1)}, 0']
                    continue
                b = sb + (sidx[0] % NS) * 4; sidx[0] += 1
                cc = cq + (8 if i == 0 else 4 if i == 16 else 0)
                sm.append(f'v_mfma_f32_16x16x32_bf16 {V(b,4)}, {A(Kf+4*kb,4)}, {A(Qf+4*j,4)}, {V(cc,4)}')
                va += [f'v_exp_f32 {V(b+r)}, {V(b+r)}' for r in range(4)]
                va += [f'v_cvt_pk_bf16_f32 {V(p+2*hf+q)}, {V(b+2*q)}, {V(b+2*q+1)}' for q in range(2)]
            ca = '0' if ci == 0 else V(o1, 4)
            cb = '0' if ci == 0 else V(o2, 4)
            pv = [f'v_mfma_f32_16x16x32_bf16 {V(o1,4)}, {A(V1+4*c,4)}, {V(p,4)}, {ca}',
                  f'v_mfma_f32_16x16x32_bf16 {V(o2,4)}, {A(V2+4*c,4)}, {V(p,4)}, {cb}']
            stages.append((sm, va, pv))
        ops += stages[0][0]
        for ci in range(9):
            if ci + 1 < 9:
                ops += stages[ci + 1][0]
            va = list(stages[ci][1])
            if ci > 0:
                ops += va[:2] + stages[ci - 1][2] + va[2:]
            else:
                ops += va
        ops += ['s_nop 1'] + stages[8][2]
        return ops

    def final(j):
        t = tmp
        r0 = ores + 3 * j
        ops = [f'v_rcp_f32 {V(t)}, {V(o2+2)}']
        ops += [f'v_mul_f32 {V(o1+r)}, {V(o1+r)}, {V(t)}' for r in range(4)]
        ops += [f'v_mul_f32 {V(o2+r)}, {V(o2+r)}, {V(t)}' for r in range(2)]
        ops += [f'v_cvt_pk_bf16_f32 {V(r0)}, {V(o1)}, {V(o1+1)}', f'v_cvt_pk_bf16_f32 {V(r0+1)}, {V(o1+2)}, {V(o1+3)}',
                f'v_cvt_pk_bf16_f32 {V(r0+2)}, {V(o2)}, {V(o2+1)}']
        return ops

    def stores():
        ops = []
        for j in range(4):
            ops.append(f's_add_u32 {S(sK+0)}, {S(sO)}, {18*1024*j}')
            ops += [f'buffer_store_dword {V(ores+3*j)}, {V(vO)}, {S(srdS,4)}, {S(sK)} offen',
                    f'buffer_store_dword {V(ores+3*j+1)}, {V(vO+1)}, {S(srdS,4)}, {S(sK)} offen']
        ops.append('s_mov_b64 exec, 0xffff')
        for j in range(4):
            ops.append(f's_add_u32 {S(sK+0)}, {S(sO)}, {18*1024*j}')
            ops.append(f'buffer_store_dword {V(ores+3*j+2)}, {V(vO+2)}, {S(srdS,4)}, {S(sK)} offen')
        ops.append(EX_ALL)
        return ops

    for j in range(4):
        p1 = pass1(j)
        if j == 0:
            e('\n'.join(p1[:12])); e('\n'.join(late)); e('\n'.join(p1[12:]))
        else:
            fin = final(j - 1)
            e('\n'.join(p1[:4])); e('\n'.join(fin)); e('\n'.join(p1[4:]))
        if j == 0:
            stamp()
        e('\n'.join(pass2(j)))
        if j == 0:
            stamp()
            if prefetch and pl:
                e('s_waitcnt vmcnt(0)')
                if code_pf:
                    from pf import pf_code
                    e(f's_lshr_b32 {S(sT2)}, s2, 3')
                    e(f's_lshl_b32 {S(sT2)}, {S(sT2)}, 2')
                    e(f's_add_u32 {S(sT2)}, {S(sT2)}, {S(sW)}')
                    e(f's_and_b32 {S(sT2)}, {S(sT2)}, 15')
                    pf_code(k, code_pf[0], code_pf[1], s_wg, sT2, sT, s_wg + 2, vP + 3)
                e('\n'.join(pl))
    e('\n'.join(final(3)))
    e('\n'.join(stores()))
    if stamps:
        stamp()
        e('s_waitcnt vmcnt(0)')
        stamp()
        emit_stamp_dump(k, e, sStamp, nst, srdW, s_wg, sT, sW, tmp, int(stamps) - 1)
    e('s_endpgm')

    k.label(f'L_{name}_cs')
    if not colsum:
        e('s_endpgm')
        return k
    ld = 4
    e(f'''
    s_sub_u32 {S(sT)}, s2, 256
    s_cmp_ge_u32 {S(sT)}, 144
    s_cbranch_scc1 L_{name}_end
    s_load_dwordx2 {S(s_ws,2)}, s[0:1], {KA_WS}
    s_load_dwordx4 {S(s_wg,4)}, s[0:1], {KA_WG}
    v_lshrrev_b32 v1, 6, v0
    v_and_b32 v0, 63, v0
    v_readfirstlane_b32 {S(sW)}, v1
    s_and_b32 {S(sT2)}, {S(sT)}, 3
    s_mul_i32 {S(sT2)}, {S(sT2)}, 18
    s_lshr_b32 {S(sH)}, {S(sT)}, 3
    s_add_u32 {S(sT2)}, {S(sT2)}, {S(sH)}
    s_bfe_u32 {S(sH)}, {S(sT)}, 0x10002
    v_lshrrev_b32 v1, 3, v0
    v_mul_u32_u24 v1, 9216, v1
    v_and_b32 v2, 7, v0
    v_lshl_add_u32 v1, v2, 4, v1
    s_mul_i32 {S(sQ)}, {S(sW)}, {144*9216}
    s_lshl_b32 {S(sT)}, {S(sT2)}, 7
    s_add_u32 {S(sQ)}, {S(sQ)}, {S(sT)}
    s_waitcnt lgkmcnt(0)
    s_cmp_eq_u32 {S(sH)}, 0
    s_cselect_b32 {S(srdW)}, {S(s_wg)}, {S(s_wg+2)}
    s_cselect_b32 {S(srdW+1)}, {S(s_wg+1)}, {S(s_wg+3)}
    s_mov_b32 {S(srdW+2)}, {576*9216}
    s_mov_b32 {S(srdW+3)}, 0x00020000
    s_mov_b32 {S(srdS)}, {S(s_ws)}
    s_mov_b32 {S(srdS+1)}, {S(s_ws+1)}
    s_mov_b32 {S(srdS+2)}, {WS_USED}
    s_mov_b32 {S(srdS+3)}, 0x00020000
    ''')
    for i in range(18):
        e(f'buffer_load_dwordx4 {A(4*i,4)}, v1, {S(srdW,4)}, {S(sQ)} offen')
        if i < 17:
            e(f's_add_u32 {S(sQ)}, {S(sQ)}, {8*9216}')
    ac = 8
    for q in range(8):
        e(f'v_mov_b32 {V(ac+q)}, 0')
    for i in range(18):
        for q in range(4):
            e(f'v_accvgpr_read_b32 {V(16+q)}, {A(4*i+q)}')
        for q in range(4):
            e(f'v_lshlrev_b32 {V(20+q)}, 16, {V(16+q)}')
            e(f'v_and_b32 {V(16+q)}, 0xffff0000, {V(16+q)}')
        for q in range(4):
            e(f'v_add_f32 {V(ac+2*q)}, {V(ac+2*q)}, {V(20+q)}')
            e(f'v_add_f32 {V(ac+2*q+1)}, {V(ac+2*q+1)}, {V(16+q)}')
    for q in range(8):
        e(f'v_add_f32_dpp {V(16+q)}, {V(ac+q)}, {V(ac+q)} row_ror:8 row_mask:0xf bank_mask:0xf')
    for q in range(8):
        x, t = 16 + q, 24 + q
        e(f'''
        v_mov_b32 {V(t)}, {V(x)}
        v_permlane16_swap_b32 {V(x)}, {V(t)}
        v_add_f32 {V(x)}, {V(x)}, {V(t)}
        v_mov_b32 {V(t)}, {V(x)}
        v_permlane32_swap_b32 {V(x)}, {V(t)}
        v_add_f32 {V(x)}, {V(x)}, {V(t)}
        ''')
    e(f'''
    v_lshlrev_b32 v1, 5, v2
    s_lshl_b32 {S(sT)}, {S(sW)}, 8
    v_add_u32 v1, {S(sT)}, v1
    s_mov_b64 exec, 0xff
    ds_write_b128 v1, v[16:19]
    ds_write_b128 v1, v[20:23] offset:16
    s_mov_b64 exec, -1
    s_waitcnt lgkmcnt(0)
    s_barrier
    s_cmp_lg_u32 {S(sW)}, 0
    s_cbranch_scc1 L_{name}_end
    v_lshlrev_b32 v1, 2, v0
    ds_read_b32 v4, v1
    ds_read_b32 v5, v1 offset:256
    ds_read_b32 v6, v1 offset:512
    ds_read_b32 v7, v1 offset:768
    s_mul_i32 {S(sT)}, {S(sH)}, {4608*4}
    s_lshl_b32 {S(sT2)}, {S(sT2)}, 8
    s_add_u32 {S(sT)}, {S(sT)}, {S(sT2)}
    s_add_u32 {S(sT)}, {S(sT)}, {CS}
    v_add_f32 v4, v4, v5
    v_add_f32 v6, v6, v7
    v_add_f32 v4, v4, v6
    buffer_store_dword v4, v1, {S(srdS,4)}, {S(sT)} offen
    ''')
    k.label(f'L_{name}_end')
    e('s_endpgm')
    return k
```

```python
from asmb import *
from layout import *
import struct

LOG2E = 1.4426950408889634


def F(x):
    return hex(struct.unpack('<I', struct.pack('<f', x))[0])


def emit_stamp_dump(k, e, sStamp, nst, srd, sp, sT, sW, vt, region=0):
    e(f's_memrealtime {S(sStamp+22,2)}')
    e(f's_load_dwordx2 {S(sp,2)}, s[0:1], {KA_BX}')
    e('s_waitcnt lgkmcnt(0)')
    e(f's_mov_b32 {S(srd)}, {S(sp)}'); e(f's_mov_b32 {S(srd+1)}, {S(sp+1)}'); e(f's_mov_b32 {S(srd+2)}, 0x100000'); e(f's_mov_b32 {S(srd+3)}, 0x00020000')
    e(f's_lshl_b32 {S(sT)}, s2, 3'); e(f's_add_u32 {S(sT)}, {S(sT)}, {S(sW)}'); e(f's_lshl_b32 {S(sT)}, {S(sT)}, 6')
    e(f's_add_u32 {S(sT)}, {S(sT)}, {region*0x20000}')
    e(f'v_mov_b32 {V(vt)}, 0')
    for i in range(12):
        e(f'v_mov_b32 {V(vt+1)}, {S(sStamp+2*i)}')
        e(f'buffer_store_dword {V(vt+1)}, {V(vt)}, {S(srd,4)}, {S(sT)} offen offset:{4*i}')
        e('s_waitcnt vmcnt(0)')


def bf16_round(dst, src):
    return [f'v_cvt_pk_bf16_f32 {V(dst)}, {V(src)}, {V(src)}', f'v_lshlrev_b32 {V(dst)}, 16, {V(dst)}']


def ln_stats_ops(st, nparts, npart_elems, t0, t1, s_inv, s_n):
    o = []
    so = o.append
    so(f'v_add_f32 {V(t0)}, {V(st)}, {V(st+2)}')
    for nt in range(2, nparts):
        so(f'v_add_f32 {V(t0)}, {V(t0)}, {V(st+2*nt)}')
    so(f'v_mul_f32 {V(t0)}, {F(1.0/576)}, {V(t0)}')
    so(f'v_mov_b32 {V(t1)}, 0')
    for nt in range(nparts):
        so(f'v_fma_f32 {V(st+2*nt)}, {V(st+2*nt)}, {S(s_inv)}, -{V(t0)}')
        so(f'v_mul_f32 {V(st+2*nt)}, {V(st+2*nt)}, {V(st+2*nt)}')
        so(f'v_add_f32 {V(t1)}, {V(t1)}, {V(st+2*nt+1)}')
        so(f'v_fma_f32 {V(t1)}, {V(st+2*nt)}, {S(s_n)}, {V(t1)}')
    so(f'v_mul_f32 {V(t1)}, {F(1.0/576)}, {V(t1)}')
    o += bf16_round(t0, t0)
    o += bf16_round(t1, t1)
    so(f'v_add_f32 {V(t1)}, {F(1e-5)}, {V(t1)}')
    o += bf16_round(t1, t1)
    so(f'v_sqrt_f32 {V(t1)}, {V(t1)}')
    o += bf16_round(t1, t1)
    return o


def build_k4(TAIL=6, WF=6, PF=5, use_pk=False, name='k4_kernel', vm_every=2, pre_stages=2, stamps=False,
             no_mfma=False, no_lds=False, no_store=False, no_vm=False, no_bar=False, prefetch_code=None, pf_at=18*13, DIST=6, code_pf=None, no_side=False, rgroup=1, prio=False, rd128=False, wf_v=False, half_reads=False):
    assert not use_pk
    k = Kernel(name)
    NKS = 18
    RING = 8
    PART = RING * 9216
    UOFF = PART
    CSL = 2 * PART
    k.lds = CSL
    k.ns = 3
    s_wg = k.s(4, 4)
    s_ws = k.s(2, 2)
    s_wd = k.s(2, 2)
    srdP = k.s(4, 4)
    srdW = k.s(4, 4)
    srdS = k.s(4, 4)
    sW = k.s(); sPart = k.s(); sJ = k.s(); sM = k.s(); sN = k.s(); sT = k.s(); sT2 = k.s()
    sM8 = k.s(); sM0 = k.s(); sTok0 = k.s(); sTok1 = k.s(); sGrp = k.s(); sSt = k.s(); sSt8 = k.s()
    k.nv = 1
    vL16 = k.v()
    vSt = k.v()
    vP = k.v()
    acc = k.v(144, 4)
    vA = k.v(4)
    vAa = k.v(2); vSs = k.v(2)
    vdma = k.v(3)
    tmp = k.v(20, 4)
    wf = k.v(WF * 4, 4) if wf_v else k.a(WF * 4, 4)
    WR = V if wf_v else A
    ntokA = (256 - ((k.nv + 3) // 4 * 4) - k.na) // 8
    tokA = k.a(ntokA * 8, 4)
    TF = ntokA
    assert (k.nv + 3) // 4 * 4 + k.na <= 256, (k.nv, k.na)

    def ACC(fb, part, tb):
        return acc + ((fb * 2 + part) * 2 + tb) * 4

    main_ks = NKS - TAIL
    tokbuf = {}
    extra = [('v', tmp + 4), ('v', tmp + 12)]
    n_extra = 2
    ring_ks = [ks for ks in range(NKS - n_extra)]
    for i, ks in enumerate(ring_ks):
        tokbuf[ks] = ('a', tokA + (i % TF) * 8)
    for i in range(n_extra):
        tokbuf[NKS - n_extra + i] = extra[i]

    def TOK(ks, tb):
        kind, b = tokbuf[ks]
        return R(kind, b + 4 * tb, 4)

    e = k.e
    sStamp = k.s(24, 2) if stamps else None
    nst = [0]

    def stamp():
        if stamps:
            e(f's_memtime {S(sStamp + 2*nst[0], 2)}'); e('s_waitcnt lgkmcnt(0)'); nst[0] += 1
    e(f'''
    s_cmp_ge_u32 s2, 256
    s_cbranch_scc1 L_{name}_end
    s_load_dwordx4 {S(s_wg,4)}, s[0:1], {KA_WG}
    s_load_dwordx2 {S(s_ws,2)}, s[0:1], {KA_WS}
    s_load_dwordx2 {S(s_wd,2)}, s[0:1], {KA_WD}
    v_lshrrev_b32 {V(tmp)}, 6, v0
    v_and_b32 v0, 63, v0
    v_readfirstlane_b32 {S(sW)}, {V(tmp)}
    v_lshlrev_b32 {V(vL16)}, 4, v0
    s_and_b32 {S(sT)}, s2, 7
    s_lshr_b32 {S(sT2)}, s2, 3
    s_lshr_b32 {S(sM)}, {S(sT)}, 2
    s_lshl_b32 {S(sM)}, {S(sM)}, 2
    s_and_b32 {S(sN)}, {S(sT2)}, 3
    s_add_u32 {S(sM)}, {S(sM)}, {S(sN)}
    s_and_b32 {S(sN)}, {S(sT)}, 3
    s_lshl_b32 {S(sN)}, {S(sN)}, 3
    s_lshr_b32 {S(sT2)}, {S(sT2)}, 2
    s_add_u32 {S(sN)}, {S(sN)}, {S(sT2)}
    s_lshr_b32 {S(sPart)}, {S(sW)}, 2
    s_and_b32 {S(sJ)}, {S(sW)}, 3
    ''')
    stamp()
    if stamps:
        e(f's_memrealtime {S(sStamp+20,2)}')
    e(f'''
    s_lshl_b32 {S(sT)}, {S(sJ)}, 6
    v_add_u32 {V(tmp)}, {S(sT)}, v0
    s_lshl_b32 {S(sT)}, {S(sJ)}, 4
    v_add_u32 {V(tmp+3)}, {S(sT)}, v0
    s_mul_i32 {S(sM8)}, {S(sPart)}, {UOFF}
    s_lshl_b32 {S(sT)}, {S(sJ)}, 8
    s_add_u32 {S(sM8)}, {S(sM8)}, {S(sT)}
    s_mul_i32 {S(sGrp)}, {S(sN)}, 288
    s_mul_i32 {S(sM0)}, {S(sPart)}, {UOFF}
    s_lshl_b32 {S(sT)}, {S(sJ)}, 10
    s_add_u32 {S(sM0)}, {S(sM0)}, {S(sT)}
    s_lshl_b32 {S(sT)}, {S(sM)}, 3
    s_add_u32 {S(sT)}, {S(sT)}, {S(sW)}
    s_mul_i32 {S(sTok0)}, {S(sT)}, {36*1024}
    s_add_u32 {S(sTok0)}, {S(sTok0)}, {HC}
    s_add_u32 {S(sTok1)}, {S(sTok0)}, {18*1024}
    s_mul_i32 {S(sSt)}, {S(sT)}, {2*144*1024}
    s_add_u32 {S(sSt)}, {S(sSt)}, {HH}
    s_lshr_b32 {S(sT2)}, {S(sN)}, 1
    s_mul_i32 {S(sT2)}, {S(sT2)}, {9*1024}
    s_add_u32 {S(sSt)}, {S(sSt)}, {S(sT2)}
    s_and_b32 {S(sT2)}, {S(sN)}, 1
    s_lshl_b32 {S(sSt8)}, {S(sT2)}, 3
    s_add_u32 {S(sSt8)}, {S(sSt8)}, {S(sSt)}
    s_add_u32 {S(sSt8)}, {S(sSt8)}, {8*1024}
    s_lshl_b32 {S(sT2)}, {S(sT2)}, 12
    s_add_u32 {S(sSt)}, {S(sSt)}, {S(sT2)}
    ''')

    def dma_voff(i):
        d = vdma + i
        return [f'v_add_u32 {V(tmp+1)}, {256*i}, {V(tmp)}' if i < 2 else f'v_add_u32 {V(tmp+1)}, 512, {V(tmp+3)}',
                f'v_mul_u32_u24 {V(tmp+2)}, 3641, {V(tmp+1)}',
                f'v_lshrrev_b32 {V(tmp+2)}, 16, {V(tmp+2)}',
                f'v_mul_u32_u24 {V(tmp+2)}, {9216-288}, {V(tmp+2)}',
                f'v_lshl_add_u32 {V(d)}, {V(tmp+1)}, 4, {V(tmp+2)}']
    for i in range(3):
        e('\n'.join(dma_voff(i)))
    e(f'''
    s_waitcnt lgkmcnt(0)
    s_cmp_eq_u32 {S(sPart)}, 0
    s_cselect_b32 {S(srdW)}, {S(s_wg)}, {S(s_wg+2)}
    s_cselect_b32 {S(srdW+1)}, {S(s_wg+1)}, {S(s_wg+3)}
    s_mov_b32 {S(srdW+2)}, {576*9216}
    s_mov_b32 {S(srdW+3)}, 0x00020000
    s_mov_b32 {S(srdS)}, {S(s_ws)}
    s_mov_b32 {S(srdS+1)}, {S(s_ws+1)}
    s_mov_b32 {S(srdS+2)}, {WS_USED}
    s_mov_b32 {S(srdS+3)}, 0x00020000
    ''')

    order = [(ks, fb, p) for ks in range(main_ks) for fb in range(9) for p in range(2)]
    groups = [(0, 1), (2, 3), (4, 5), (6, 7), (8,)]
    grp_last = {}
    for gi, g in enumerate(groups):
        for ks in range(main_ks, NKS):
            for fb in g:
                for p in range(2):
                    order.append((ks, fb, p))
        grp_last[gi] = len(order) - 1
    N = len(order)
    first_use, last_use = {}, {}
    for n, (ks, fb, p) in enumerate(order):
        first_use.setdefault(ks, n)
        last_use[ks] = n
    dmas = [dict(G=G, i=i, smin=G, smax=G) for G in range(18) for i in range(3)]
    pend = []
    for d in dmas:
        pend.append((first_use[d['smin']] - PF, 0, 'dma', d))
    for ks in range(NKS):
        for tb in range(2):
            pend.append((first_use[ks], 1 + tb, 'tok', (ks, tb)))
    pend.sort(key=lambda x: (x[0], x[1]))
    barrier_passed = [-1]
    tok_sbase = [0, 0]
    grp_cur = [0]
    voff_done = set(range(3))
    corr_end = [10 ** 9]

    def eligible(p, n):
        if p[0] > max(n, 0) + DIST * 18:
            return False
        if p[2] == 'dma':
            d = p[3]
            return d['smax'] < RING or barrier_passed[0] >= d['smax'] - 6
        ks, tb = p[3]
        if tokbuf[ks][0] == 'v':
            return n > corr_end[0]
        return ks < TF or last_use[ks - TF] < n

    def issue(p):
        if no_vm and not ((p[2] == 'dma' and p[3]['smin'] < 1) or (p[2] == 'tok' and p[3][0] < TF)):
            return
        if p[2] == 'dma':
            d = p[3]
            slot = d['G'] % RING
            if d['i'] < 2:
                e(f's_add_u32 m0, {S(sM0)}, {slot * 9216 + d["i"] * 4096}')
            else:
                e(f's_add_u32 m0, {S(sM8)}, {slot * 9216 + 8192}')
            while grp_cur[0] < d['G']:
                e(f's_add_u32 {S(sGrp)}, {S(sGrp)}, {32*9216}'); grp_cur[0] += 1
            if d['i'] == 2:
                e('s_mov_b64 exec, 0xffff')
            e(f'buffer_load_dwordx4 {V(vdma+d["i"])}, {S(srdW,4)}, {S(sGrp)} offen lds', tag=f'st{d["smin"]}')
            if d['i'] == 2:
                e('s_mov_b64 exec, -1')
        else:
            ks, tb = p[3]
            sT_ = sTok1 if tb else sTok0
            while ks - tok_sbase[tb] >= 4:
                e(f's_add_u32 {S(sT_)}, {S(sT_)}, 4096'); tok_sbase[tb] += 4
            off = (ks - tok_sbase[tb]) * 1024
            e(f'buffer_load_dwordx4 {TOK(ks, tb)}, {V(vL16)}, {S(srdS,4)}, {S(sT_)} offen offset:{off}')

    def pop_issue(n, maxn=1):
        c = 0
        while pend and c < maxn:
            for q, p in enumerate(pend):
                if eligible(p, n):
                    if any(pp[2] == p[2] for pp in pend[:q]):
                        continue
                    issue(p); pend.pop(q); c += 1
                    break
            else:
                break

    npre = sum(1 for p in pend if (p[2] == 'dma' and p[3]['smin'] < pre_stages) or (p[2] == 'tok' and p[3][0] < pre_stages))
    pop_issue(-1, npre)
    e(f'''
    v_lshrrev_b32 {V(tmp+4)}, 2, v0
    v_mul_u32_u24 {V(vA)}, 288, {V(tmp+4)}
    v_and_b32 {V(tmp+5)}, 3, v0
    v_lshl_add_u32 {V(vA)}, {V(tmp+5)}, 3, {V(vA)}
    v_add_u32 {V(vA+1)}, {4*9216}, {V(vA)}
    v_add_u32 {V(vA+2)}, {UOFF}, {V(vA)}
    v_add_u32 {V(vA+3)}, {UOFF+4*9216}, {V(vA)}
    v_add_u32 {V(vSt)}, {144*1024}, {V(vL16)}
    ''')
    e(f'''
    v_and_b32 {V(tmp)}, 31, v0
    v_lshlrev_b32 {V(tmp)}, 3, {V(tmp)}
    s_lshl_b32 {S(sT)}, {S(sT)}, 8
    s_add_u32 {S(sT)}, {S(sT)}, {ST}
    ''')
    for nt in range(9):
        e(f'buffer_load_dwordx2 {V(tmp+2+2*nt,2)}, {V(tmp)}, {S(srdS,4)}, {S(sT)} offen')
        if nt < 8:
            e(f's_add_u32 {S(sT)}, {S(sT)}, 16384')
    e(f's_lshl_b32 {S(sT)}, s2, 3')
    e(f's_add_u32 {S(sT)}, {S(sT)}, {S(sW)}')
    e(f's_cmp_ge_u32 {S(sT)}, 8')
    e(f's_cbranch_scc1 L_{name}_nofl')
    k.opt(True)
    e(f's_lshl_b32 {S(sT)}, {S(sT)}, 10')
    e(f's_add_u32 {S(sT)}, {S(sT)}, {FL}')
    for q in range(4):
        e(f'v_mov_b32 {V(acc+q)}, 0')
    e(f'buffer_store_dwordx4 {V(acc,4)}, {V(vL16)}, {S(srdS,4)}, {S(sT)} offen')
    e('s_nop 1')
    k.opt(False)
    k.label(f'L_{name}_nofl')
    from pf import pf_down
    su, pf_loads = pf_down(k, sW, s_wd, srdP, sT, sT2, vP)
    e(su)

    stats_ops = ln_stats_ops(tmp + 2, 9, 64, tmp, tmp + 1, sJ, sT2)
    so = stats_ops.append
    so(f'v_mov_b32 {V(vSs)}, {V(tmp+1)}')
    so(f'v_mov_b32 {V(vSs+1)}, {V(tmp+1)}')
    so(f'v_rcp_f32 {V(vAa)}, {V(tmp+1)}')
    so(f'v_mul_f32 {V(vAa)}, {F(-LOG2E)}, {V(vAa)}')
    so(f'v_mov_b32 {V(vAa+1)}, {V(vAa)}')
    for r in (vSs, vAa):
        so(f'v_permlane16_swap_b32 {V(r)}, {V(r+1)}')

    def corr_read(fb, p, t):
        return [f'ds_read_b128 {V(t,4)}, {V(vCs)} offset:{fb*64+p*1024}']

    def corr_ops(fb, p, t):
        o = []
        for tb in range(2):
            a0 = ACC(fb, p, tb)
            if use_pk:
                o += [f'v_pk_fma_f32 {V(a0+2*q,2)}, {V(t+2*q,2)}, {V(vNegM+2*tb,2)}, {V(a0+2*q,2)}' for q in range(2)]
            else:
                o += [f'v_fma_f32 {V(a0+q)}, {V(t+q)}, {V(vNegM+tb)}, {V(a0+q)}' for q in range(4)]
        return o

    def epi_ops(gi, tb):
        g = groups[gi]
        o = []
        Gs = [ACC(fb, 0, tb) for fb in g]
        Us = [ACC(fb, 1, tb) for fb in g]
        aa, ss = vAa + tb, vSs + tb
        for G in Gs:
            if use_pk:
                o += [f'v_pk_mul_f32 {V(G+2*q,2)}, {V(G+2*q,2)}, {V(aa,2)}' for q in range(2)]
            else:
                o += [f'v_mul_f32 {V(G+q)}, {V(G+q)}, {V(aa)}' for q in range(4)]
        for G in Gs:
            o += [f'v_exp_f32 {V(G+q)}, {V(G+q)}' for q in range(4)]
        for G in Gs:
            if use_pk:
                o += [f'v_pk_fma_f32 {V(G+2*q,2)}, {V(G+2*q,2)}, {V(ss,2)}, {V(ss,2)}' for q in range(2)]
            else:
                o += [f'v_fma_f32 {V(G+q)}, {V(G+q)}, {V(ss)}, {V(ss)}' for q in range(4)]
        for G in Gs:
            o += [f'v_rcp_f32 {V(G+q)}, {V(G+q)}' for q in range(4)]
        for G, U in zip(Gs, Us):
            if use_pk:
                o += [f'v_pk_mul_f32 {V(U+2*q,2)}, {V(U+2*q,2)}, {V(G+2*q,2)}' for q in range(2)]
            else:
                o += [f'v_mul_f32 {V(U+q)}, {V(U+q)}, {V(G+q)}' for q in range(4)]
        D = Gs[0]
        for bi, U in enumerate(Us):
            o += [f'v_cvt_pk_bf16_f32 {V(D+2*bi+q)}, {V(U+2*q)}, {V(U+2*q+1)}' for q in range(2)]
        va = vSt if tb else vL16
        if not no_store:
            if len(g) == 2:
                o += [f'buffer_store_dwordx4 {V(D,4)}, {V(va)}, {S(srdS,4)}, {S(sSt)} offen offset:{gi*1024}']
            else:
                o += [f'buffer_store_dwordx2 {V(D,2)}, {V(va)}, {S(srdS,4)}, {S(sSt8)} offen']
        return o

    e(f's_mov_b32 {S(sJ)}, {F(1.0/64)}')
    e(f's_mov_b32 {S(sT2)}, {F(64.0)}')

    side = {}

    def spread(ops, n0, n1):
        cnt = n1 - n0
        for i, o in enumerate(ops):
            side.setdefault(n0 + i * cnt // len(ops), []).append(o)
    spread(stats_ops, 18 * 2, 18 * 4)
    corr_end[0] = 18 * 4
    for gi in range(4):
        nd = grp_last[gi]
        span = grp_last[gi + 1] - nd
        ops = epi_ops(gi, 0) + epi_ops(gi, 1)
        spread(ops, nd + 2, nd + max(span, 8))

    def reads(n):
        ks, fb, p = order[n]
        if ks > barrier_passed[0]:
            assert not any(q[2] == 'dma' and q[3]['smin'] <= ks for q in pend), ('dma late', ks)
            k.wait_vm([f'st{s}' for s in range(ks + 1)])
            if not no_bar or ks == 0:
                e('s_barrier')
            barrier_passed[0] = ks
            if ks in (0, 1, 4, 8, main_ks):
                stamp()
        slot = ks % RING
        va = vA + 2 * p + (slot >> 2)
        off = (slot & 3) * 9216 + fb * 32
        b = wf + (n % WF) * 4
        if half_reads and n >= WF and n % 2:
            return
        if not no_lds or n < WF:
            if rd128:
                e(f'ds_read_b128 {WR(b,4)}, {V(vL16)} offset:{(off//1024)*1024}')
            else:
                e(f'ds_read_b64_tr_b16 {WR(b,2)}, {V(va)} offset:{off}')
                e(f'ds_read_b64_tr_b16 {WR(b+2,2)}, {V(va)} offset:{off+4608}')

    for n in range(PF):
        reads(n)
    if prio:
        e(f's_cmp_ge_u32 {S(sW)}, 4')
        e(f's_cbranch_scc0 L_{name}_np')
        e('s_setprio 1')
        k.label(f'L_{name}_np')
    for n in range(N):
        ks, fb, p = order[n]
        if n % rgroup == 0:
            for q in range(rgroup):
                if n + PF + q < N:
                    reads(n + PF + q)
        assert not any(q[2] == 'tok' and q[3][0] <= ks for q in pend), ('tok late', ks)
        ops = side.get(n, []) if not no_side else []
        h = (len(ops) + 1) // 2
        for tb in range(2):
            a0 = ACC(fb, p, tb)
            c = '0' if ks == 0 else V(a0, 4)
            e(f'v_mfma_f32_16x16x32_bf16 {V(a0,4)}, {WR(wf+(n%WF)*4,4)}, {TOK(ks,tb)}, {c}')
            for o in (ops[:h] if tb == 0 else ops[h:]):
                e(o)
        if n % vm_every == 0:
            pop_issue(n + 1, 1)
        if pf_loads and not pend and pf_at is not None and n >= pf_at:
            e('\n'.join(pf_loads)); pf_loads = []
            if code_pf:
                from pf import pf_code
                e(f's_lshr_b32 {S(sT2)}, s2, 3')
                e(f's_lshl_b32 {S(sT2)}, {S(sT2)}, 3')
                e(f's_add_u32 {S(sT2)}, {S(sT2)}, {S(sW)}')
                e(f's_and_b32 {S(sT2)}, {S(sT2)}, 31')
                pf_code(k, code_pf[0], code_pf[1], s_wg, sT2, sT, s_wg + 2, vdma)
    for n in sorted(side):
        if n >= N:
            for o in side[n]:
                e(o)
    assert not pend, pend
    stamp()
    for o in interleave(epi_ops(4, 0), epi_ops(4, 1)):
        e(o)
    if stamps:
        stamp()
        e('s_waitcnt vmcnt(0)')
        stamp()
        emit_stamp_dump(k, e, sStamp, nst, srdW, s_wg, sT, sW, tmp, int(stamps) - 1)
    k.label(f'L_{name}_end')
    e('s_endpgm')
    return k
```

```python
from asmb import *
from layout import *
from k4 import F, bf16_round, LOG2E
from k4 import emit_stamp_dump
from k3 import row_reduce

QSCALE = 18 ** -0.5 * LOG2E


def build_k1(name='k1_kernel', stamps=False, extra=None, code_pf=None, self_pf=False, pre=2, xmap=0, rot=True):
    k = Kernel(name)
    SLOT = 32768
    STL = 4 * SLOT
    k.lds = STL + 2048
    k.ns = 3
    s_x = k.s(4, 4)
    s_ws = k.s(2, 2)
    srdX = k.s(4, 4); srdW = k.s(4, 4); srdS = k.s(4, 4)
    sW = k.s(); sM = k.s(); sN = k.s(); sT = k.s(); sT2 = k.s(); sTW = k.s(); sCW = k.s(); sC64 = k.s()
    sM0 = k.s(); sXo = k.s(); sWo = k.s(); sTmpO = k.s(); sOne = k.s(); sSt = k.s(); sSec = k.s()
    sMask = k.s(8, 2)
    sO0 = k.s(); sO1 = k.s()
    k.nv = 1
    vDx = k.v(); vDw = k.v()
    vT = k.v(4)
    vWa = k.v(8)
    acc = k.v(64, 4)
    tf = k.v(32, 4)
    wf = k.v(32, 4)
    ssum = k.v(8, 4); ssq = k.v(8, 4); csum = k.v(8, 4); ones = k.v(4, 4)
    adr = k.v(8)
    sDiag = k.s(8, 4)
    tmp = k.v(56, 4)
    e = k.e
    sStamp = k.s(24, 2) if stamps else None
    nst = [0]

    def stamp():
        if stamps:
            e(f's_memtime {S(sStamp + 2*nst[0], 2)}'); e('s_waitcnt lgkmcnt(0)'); nst[0] += 1
    e(f'''
    s_cmp_ge_u32 s2, 256
    s_cbranch_scc1 L_{name}_x
    v_lshrrev_b32 {V(tmp)}, 6, v0
    v_and_b32 v0, 63, v0
    v_readfirstlane_b32 {S(sW)}, {V(tmp)}
    s_cmp_ge_u32 s2, 224
    s_cbranch_scc1 L_{name}_pf
    s_load_dwordx4 {S(s_x,4)}, s[0:1], {KA_X}
    s_load_dwordx2 {S(s_ws,2)}, s[0:1], {KA_WS}
    s_and_b32 {S(sT)}, s2, 7
    s_lshr_b32 {S(sT2)}, s2, 3
    ''' + (f'''
    s_lshl_b32 {S(sM)}, {S(sT)}, 1
    s_and_b32 {S(sT)}, {S(sT2)}, 1
    s_add_u32 {S(sM)}, {S(sM)}, {S(sT)}
    s_lshr_b32 {S(sN)}, {S(sT2)}, 1
    ''' if xmap == 0 else f'''
    s_lshr_b32 {S(sM)}, {S(sT)}, 1
    s_lshl_b32 {S(sM)}, {S(sM)}, 2
    s_and_b32 {S(sN)}, {S(sT2)}, 3
    s_add_u32 {S(sM)}, {S(sM)}, {S(sN)}
    s_and_b32 {S(sN)}, {S(sT)}, 1
    s_mul_i32 {S(sN)}, {S(sN)}, 7
    s_lshr_b32 {S(sT2)}, {S(sT2)}, 2
    s_add_u32 {S(sN)}, {S(sN)}, {S(sT2)}
    ''') + f'''
    s_lshr_b32 {S(sTW)}, {S(sW)}, 1
    s_and_b32 {S(sCW)}, {S(sW)}, 1
    s_lshl_b32 {S(sC64)}, {S(sN)}, 1
    s_add_u32 {S(sC64)}, {S(sC64)}, {S(sCW)}
    ''')
    stamp()
    if stamps:
        e(f's_memrealtime {S(sStamp+20,2)}')
    e(f'''
    v_lshrrev_b32 {V(tmp)}, 3, v0
    v_mul_u32_u24 {V(vDx)}, 1152, {V(tmp)}
    v_lshrrev_b32 {V(tmp+1)}, 4, v0
    s_lshl_b32 {S(sT)}, {S(sCW)}, 2
    v_add_u32 {V(tmp+2)}, {S(sT)}, {V(tmp+1)}
    v_and_b32 {V(tmp+3)}, 7, v0
    v_xor_b32 {V(tmp+2)}, {V(tmp+2)}, {V(tmp+3)}
    v_lshl_add_u32 {V(vDx)}, {V(tmp+2)}, 4, {V(vDx)}
    v_lshrrev_b32 {V(tmp+2)}, 5, v0
    v_lshlrev_b32 {V(tmp+2)}, 3, {V(tmp+2)}
    v_and_b32 {V(tmp)}, 3, {V(tmp)}
    v_add_u32 {V(tmp+2)}, {V(tmp+2)}, {V(tmp)}
    v_mul_u32_u24 {V(vDw)}, 3456, {V(tmp+2)}
    v_lshlrev_b32 {V(tmp+1)}, 1, {V(tmp+1)}
    v_xor_b32 {V(tmp+1)}, {V(tmp+1)}, {V(tmp+3)}
    v_lshl_add_u32 {V(vDw)}, {V(tmp+1)}, 4, {V(vDw)}
    s_lshl_b32 {S(sM0)}, {S(sW)}, 10
    s_lshl_b32 {S(sT)}, {S(sM)}, 7
    s_lshl_b32 {S(sT2)}, {S(sW)}, 3
    s_add_u32 {S(sT)}, {S(sT)}, {S(sT2)}
    s_mul_i32 {S(sXo)}, {S(sT)}, 1152
    s_lshl_b32 {S(sT)}, {S(sTW)}, 4
    s_lshl_b32 {S(sT2)}, {S(sCW)}, 2
    s_add_u32 {S(sT)}, {S(sT)}, {S(sT2)}
    s_mul_i32 {S(sWo)}, {S(sT)}, 3456
    s_lshl_b32 {S(sT)}, {S(sN)}, 8
    s_add_u32 {S(sWo)}, {S(sWo)}, {S(sT)}
    s_mov_b32 {S(sOne)}, 0x3f803f80
    s_waitcnt lgkmcnt(0)
    s_mov_b32 {S(srdX)}, {S(s_x)}
    s_mov_b32 {S(srdX+1)}, {S(s_x+1)}
    s_mov_b32 {S(srdX+2)}, {2048*1152}
    s_mov_b32 {S(srdX+3)}, 0x00020000
    s_mov_b32 {S(srdW)}, {S(s_x+2)}
    s_mov_b32 {S(srdW+1)}, {S(s_x+3)}
    s_mov_b32 {S(srdW+2)}, {576*3456}
    s_mov_b32 {S(srdW+3)}, 0x00020000
    s_mov_b32 {S(srdS)}, {S(s_ws)}
    s_mov_b32 {S(srdS+1)}, {S(s_ws+1)}
    s_mov_b32 {S(srdS+2)}, {WS_USED}
    s_mov_b32 {S(srdS+3)}, 0x00020000
    ''')

    sXc = k.s(); sWc = k.s(); sRot = k.s()
    if rot:
        e(f'''
        s_add_u32 {S(sRot)}, {S(sM)}, {S(sN)}
        s_mul_i32 {S(sT)}, {S(sRot)}, 7282
        s_lshr_b32 {S(sT)}, {S(sT)}, 16
        s_mul_i32 {S(sT)}, {S(sT)}, 9
        s_sub_u32 {S(sRot)}, {S(sRot)}, {S(sT)}
        ''')
    else:
        e(f's_mov_b32 {S(sRot)}, 0')

    def dma(St):
        slot = St % 4
        out = []
        for i in range(4):
            g = []
            if i == 0:
                g += [(f's_lshl_b32 {S(sXc)}, {S(sRot)}, 7', None), (f's_add_u32 {S(sXc)}, {S(sXc)}, {S(sXo)}', None),
                      (f's_mul_i32 {S(sWc)}, {S(sRot)}, {64*3456}', None), (f's_add_u32 {S(sWc)}, {S(sWc)}, {S(sWo)}', None),
                      (f's_add_u32 {S(sRot)}, {S(sRot)}, 1', None), (f's_cmp_eq_u32 {S(sRot)}, 9', None),
                      (f's_cselect_b32 {S(sRot)}, 0, {S(sRot)}', None)]
            out.append(g + [(f's_add_u32 m0, {S(sM0)}, {slot*SLOT + i*4096}', None),
                            (f's_add_u32 {S(sTmpO)}, {S(sXc)}, {i*32*1152}', None),
                            (f'buffer_load_dwordx4 {V(vDx)}, {S(srdX,4)}, {S(sTmpO)} offen lds', f'st{St}')])
            out.append([(f's_add_u32 m0, {S(sM0)}, {slot*SLOT + 16384 + i*4096}', None),
                        (f's_add_u32 {S(sTmpO)}, {S(sWc)}, {(i&1)*32*3456 + (i>>1)*128}', None),
                        (f'buffer_load_dwordx4 {V(vDw)}, {S(srdW,4)}, {S(sTmpO)} offen lds', f'st{St}')])
        return out

    def emit_group(g):
        for t, tag in g:
            e(t, tag=tag)
    for g in dma(0):
        emit_group(g)
    if self_pf:
        vQ = k.v(4)
        e(f'''
        s_lshr_b32 {S(sT)}, s2, 3
        s_lshl_b32 {S(sT)}, {S(sT)}, 2
        s_add_u32 {S(sT)}, {S(sT)}, {S(sW)}
        s_mul_i32 {S(sT2)}, {S(sT)}, 47
        v_add_u32 {V(vQ)}, {S(sT2)}, v0
        v_lshlrev_b32 {V(vQ)}, 7, {V(vQ)}
        v_add_u32 {V(vQ+1)}, {112*47*128}, {V(vQ)}
        v_add_u32 {V(vQ+2)}, {2*112*47*128}, {V(vQ)}
        s_mul_i32 {S(sT2)}, {S(sT)}, 21
        s_and_b32 {S(sT)}, s2, 7
        s_mul_i32 {S(sT)}, {S(sT)}, 2304
        s_add_u32 {S(sT2)}, {S(sT2)}, {S(sT)}
        v_add_u32 {V(vQ+3)}, {S(sT2)}, v0
        v_lshlrev_b32 {V(vQ+3)}, 7, {V(vQ+3)}
        s_bfm_b64 exec, 21, 0
        buffer_load_dword {V(vQ+3)}, {V(vQ+3)}, {S(srdX,4)}, 0 offen
        s_bfm_b64 exec, 47, 0
        buffer_load_dword {V(vQ)}, {V(vQ)}, {S(srdW,4)}, 0 offen
        buffer_load_dword {V(vQ+1)}, {V(vQ+1)}, {S(srdW,4)}, 0 offen
        buffer_load_dword {V(vQ+2)}, {V(vQ+2)}, {S(srdW,4)}, 0 offen
        s_mov_b64 exec, -1
        ''')
    if code_pf:
        from pf import pf_code
        sPa = k.s(2, 2); sPs = k.s(2, 2); vPc = k.v(2)
        pf_code(k, name, code_pf[0], sPa, sW, sT, sPs, vPc)
    for St in range(1, pre):
        for g in dma(St):
            emit_group(g)
    if code_pf:
        e(f's_lshr_b32 {S(sT2)}, s2, 3')
        e(f's_lshl_b32 {S(sT2)}, {S(sT2)}, 2')
        e(f's_add_u32 {S(sT2)}, {S(sT2)}, {S(sW)}')
        e(f's_and_b32 {S(sT2)}, {S(sT2)}, 31')
        pf_code(k, code_pf[0], code_pf[1], sPa, sT2, sT, sPs, vPc + 1)
    e(f'''
    v_and_b32 {V(tmp)}, 15, v0
    v_lshrrev_b32 {V(tmp+1)}, 4, v0
    v_lshrrev_b32 {V(tmp+2)}, 1, {V(tmp)}
    v_xor_b32 {V(tmp+2)}, {V(tmp+2)}, {V(tmp+1)}
    v_lshlrev_b32 {V(tmp+3)}, 7, {V(tmp)}
    v_lshl_add_u32 {V(tmp+3)}, {V(tmp+2)}, 4, {V(tmp+3)}
    s_lshl_b32 {S(sT)}, {S(sTW)}, 13
    v_add_u32 {V(vT)}, {S(sT)}, {V(tmp+3)}
    v_add_u32 {V(vT+1)}, {2*SLOT}, {V(vT)}
    v_xor_b32 {V(vT+2)}, 64, {V(vT)}
    v_add_u32 {V(vT+3)}, {2*SLOT}, {V(vT+2)}
    v_lshrrev_b32 {V(tmp+2)}, 5, v0
    v_lshlrev_b32 {V(tmp+2)}, 4, {V(tmp+2)}
    v_bfe_u32 {V(tmp+3)}, v0, 2, 3
    v_add_u32 {V(tmp+2)}, {V(tmp+2)}, {V(tmp+3)}
    v_lshlrev_b32 {V(tmp+2)}, 7, {V(tmp+2)}
    v_and_b32 {V(tmp+4)}, 3, v0
    v_lshl_add_u32 {V(tmp+2)}, {V(tmp+4)}, 3, {V(tmp+2)}
    s_lshl_b32 {S(sT)}, {S(sCW)}, 13
    s_add_u32 {S(sT)}, {S(sT)}, 16384
    v_add_u32 {V(tmp+2)}, {S(sT)}, {V(tmp+2)}
    v_bfe_u32 {V(tmp+3)}, v0, 3, 2
    ''')
    for fb in range(4):
        e(f'v_xor_b32 {V(tmp+4)}, {fb}, {V(tmp+3)}')
        e(f'v_lshl_add_u32 {V(vWa+2*fb)}, {V(tmp+4)}, 5, {V(tmp+2)}')
        e(f'v_add_u32 {V(vWa+2*fb+1)}, {2*SLOT}, {V(vWa+2*fb)}')
    for r in range(4):
        e(f'v_mov_b32 {V(ones+r)}, 0x3f803f80')
    e(f'''
    v_and_b32 {V(tmp)}, 3, v0
    v_cmp_eq_u32 {S(sDiag,2)}, 1, {V(tmp)}
    v_cmp_eq_u32 {S(sDiag+2,2)}, 2, {V(tmp)}
    v_cmp_eq_u32 {S(sDiag+4,2)}, 3, {V(tmp)}
    v_bfe_u32 {V(tmp)}, v0, 2, 2
    v_lshrrev_b32 {V(tmp+1)}, 4, v0
    v_cmp_eq_u32 {S(sDiag+6,2)}, {V(tmp)}, {V(tmp+1)}
    ''')

    vT2 = k.v(4)
    e(f's_lshl_b32 {S(sT)}, {S(sCW)}, 12')
    e(f's_sub_u32 {S(sT2)}, 4096, {S(sT)}')
    for q in range(4):
        e(f'v_add_u32 {V(vT2+q)}, {S(sT2)}, {V(vT+q)}')
        e(f'v_add_u32 {V(vT+q)}, {S(sT)}, {V(vT+q)}')
    e(f's_cmp_eq_u32 {S(sTW)}, 0')
    e(f's_cbranch_scc1 L_{name}_nosw')
    k.opt(True)
    for q in range(4):
        e(f'v_swap_b32 {V(vWa+q)}, {V(vWa+4+q)}')
    k.opt(False)
    k.label(f'L_{name}_nosw')

    def reads(ks):
        St, s = ks >> 1, ks & 1
        slot = St % 4
        hi = slot >> 1
        o = []
        b = ks % 2
        for i in range(4):
            va = (vT if i < 2 else vT2) + 2 * s + hi
            o.append(f'ds_read_b128 {V(tf+b*16+i*4,4)}, {V(va)} offset:{(slot&1)*SLOT + (i&1)*2048}')
            off = (slot & 1) * SLOT + s * 4096
            o.append(f'ds_read_b64_tr_b16 {V(wf+b*16+i*4,2)}, {V(vWa+2*i+hi)} offset:{off}')
            o.append(f'ds_read_b64_tr_b16 {V(wf+b*16+i*4+2,2)}, {V(vWa+2*i+hi)} offset:{off+1024}')
        return o

    def statops(ks):
        b = ks % 2
        o = []
        for i in range(2):
            T_, W_ = V(tf + b * 16 + i * 4, 4), V(wf + b * 16 + i * 4, 4)
            for (d, x, y) in ((ssum + 4 * i, V(ones, 4), T_), (ssq + 4 * i, T_, T_), (csum + 4 * i, V(ones, 4), W_)):
                c = '0' if ks == 0 else V(d, 4)
                o.append(f'v_mfma_f32_16x16x32_bf16 {V(d,4)}, {x}, {y}, {c}')
        return o

    def mainloop(orient):
        pend = sum((dma(St) for St in range(pre, 4)), [])
        k.wait_vm(['st0'])
        e('s_barrier')
        if orient == 0:
            stamp()
        for o in reads(0):
            e(o)
        for ks in range(18):
            b = ks % 2
            rd = []
            if ks + 1 < 18:
                if (ks + 1) % 2 == 0:
                    St = (ks + 1) // 2
                    assert not any(x[1] == f'st{St}' for g in pend for x in g)
                    k.wait_vm([f'st{St}'])
                    e('s_waitcnt lgkmcnt(0)')
                    e('s_barrier')
                    if St + 3 < 9:
                        pend += dma(St + 3)
                rd = reads(ks + 1)
            so = statops(ks)
            n = 0
            for i in range(4):
                for j in range(4):
                    a0 = acc + (i * 4 + j) * 4
                    c = '0' if ks == 0 else V(a0, 4)
                    T_, W_ = V(tf + b * 16 + i * 4, 4), V(wf + b * 16 + j * 4, 4)
                    if orient == 0:
                        e(f'v_mfma_f32_16x16x32_bf16 {V(a0,4)}, {W_}, {T_}, {c}')
                    else:
                        e(f'v_mfma_f32_16x16x32_bf16 {V(a0,4)}, {T_}, {W_}, {c}')
                    if rd:
                        e(rd.pop(0))
                    if n >= 10 and so:
                        e(so.pop(0))
                    if n % 2 == 1 and pend:
                        emit_group(pend.pop(0))
                    n += 1
            assert not so and not rd
        assert not pend

    def stats_addr():
        t = tmp
        e(f'''
        v_and_b32 {V(t)}, 15, v0
        v_lshlrev_b32 {V(t)}, 2, {V(t)}
        s_lshl_b32 {S(sT)}, {S(sTW)}, 8
        s_lshl_b32 {S(sT2)}, {S(sCW)}, 7
        s_add_u32 {S(sT)}, {S(sT)}, {S(sT2)}
        s_add_u32 {S(sT)}, {S(sT)}, {STL}
        v_add_u32 {V(adr)}, {S(sT)}, {V(t)}
        s_lshl_b32 {S(sT)}, {S(sCW)}, 8
        s_lshl_b32 {S(sT2)}, {S(sTW)}, 7
        s_add_u32 {S(sT)}, {S(sT)}, {S(sT2)}
        s_add_u32 {S(sT)}, {S(sT)}, {STL+1024}
        v_add_u32 {V(adr+1)}, {S(sT)}, {V(t)}
        ''')

    def stats_finish(store_mean=False):
        ops = [[], []]
        for i in range(2):
            m, v = ssum + 4 * i, ssq + 4 * i
            o = ops[i]
            for r in range(1, 4):
                o.append(f'v_cndmask_b32 {V(v)}, {V(v)}, {V(v+r)}, {S(sDiag+2*(r-1),2)}')
            o.append(f'v_mul_f32 {V(m)}, {F(1.0/576)}, {V(m)}')
            o.append(f'v_mov_b32 {V(m+1)}, {V(m)}')
            o.append(f'v_mul_f32 {V(v)}, {F(1.0/576)}, {V(v)}')
            o.append(f'v_fma_f32 {V(v)}, -{V(m)}, {V(m)}, {V(v)}')
            o.append(f'v_max_f32 {V(v)}, 0, {V(v)}')
            o += bf16_round(m, m) + bf16_round(v, v)
            o.append(f'v_add_f32 {V(v)}, {F(1e-5)}, {V(v)}')
            o += bf16_round(v, v)
            o.append(f'v_sqrt_f32 {V(v)}, {V(v)}')
            o += bf16_round(v, v)
            o.append(f'v_rcp_f32 {V(v)}, {V(v)}')
            o.append(f'v_sub_f32 {V(m)}, 0, {V(m)}')
        e('\n'.join(interleave(ops[0], ops[1])))
        e(f'''
        s_mov_b64 exec, {S(sDiag+6,2)}
        ds_write_b32 {V(adr)}, {V(ssum)}
        ds_write_b32 {V(adr)}, {V(ssum+4)} offset:64
        ds_write_b32 {V(adr)}, {V(ssq)} offset:512
        ds_write_b32 {V(adr)}, {V(ssq+4)} offset:576
        ds_write_b32 {V(adr+1)}, {V(csum)}
        ds_write_b32 {V(adr+1)}, {V(csum+4)} offset:64
        ''')
        if store_mean:
            e(f's_cmp_lg_u32 {S(sN)}, 0')
            e(f's_cbranch_scc1 L_{name}_nomx')
            k.opt(True)
            e(f's_lshl_b32 {S(sT)}, {S(sM)}, 9')
            e(f's_add_u32 {S(sT)}, {S(sT)}, {MX-STL}')
            e(f'buffer_store_dword {V(ssum+1)}, {V(adr)}, {S(srdS,4)}, {S(sT)} offen')
            e(f'buffer_store_dword {V(ssum+5)}, {V(adr)}, {S(srdS,4)}, {S(sT)} offen offset:64')
            k.opt(False)
            k.label(f'L_{name}_nomx')
        e(f'''
        s_mov_b64 exec, -1
        s_waitcnt lgkmcnt(0)
        s_barrier
        ''')

    e(f's_cmp_ge_u32 {S(sC64)}, 18')
    e(f's_cbranch_scc1 L_{name}_v')
    k.save_state()
    t = tmp + 40
    e(f'''
    s_cmp_ge_u32 {S(sC64)}, 9
    s_cselect_b32 {S(sSec)}, 9, 0
    s_cselect_b32 {S(sSt)}, {KF}, {QF}
    s_sub_u32 {S(sSec)}, {S(sC64)}, {S(sSec)}
    s_lshl_b32 {S(sSec)}, {S(sSec)}, 4
    s_lshl_b32 {S(sT)}, {S(sM)}, 3
    s_lshl_b32 {S(sT2)}, {S(sTW)}, 2
    s_add_u32 {S(sT)}, {S(sT)}, {S(sT2)}
    s_add_u32 {S(sT)}, {S(sT)}, 16
    s_mul_i32 {S(sT)}, {S(sT)}, {RQ}
    s_add_u32 {S(sSt)}, {S(sSt)}, {S(sT)}
    v_lshrrev_b32 {V(t)}, 4, v0
    v_add_u32 {V(t)}, {S(sSec)}, {V(t)}
    v_and_b32 {V(t+1)}, 15, v0
    s_lshl_b32 {S(sT)}, {S(sTW)}, 3
    ''')
    for j in range(4):
        e(f'''
        s_xor_b32 {S(sT2)}, {S(sT)}, {4*j}
        v_add_u32 {V(t+2)}, {S(sT2)}, {V(t)}
        v_mul_u32_u24 {V(t+3)}, 7282, {V(t+2)}
        v_lshrrev_b32 {V(t+3)}, 16, {V(t+3)}
        v_mul_u32_u24 {V(t+4)}, 9, {V(t+3)}
        v_sub_u32 {V(t+4)}, {V(t+2)}, {V(t+4)}
        v_cmp_lt_u32 vcc, 4, {V(t+4)}
        v_cmp_eq_u32 {S(sMask+2*j,2)}, 4, {V(t+4)}
        v_mul_u32_u24 {V(t+3)}, {2*HS}, {V(t+3)}
        v_subrev_u32 {V(t+5)}, 5, {V(t+4)}
        v_cndmask_b32 {V(t+4)}, {V(t+4)}, {V(t+5)}, vcc
        v_add_u32 {V(t+5)}, {HS}, {V(t+3)}
        v_cndmask_b32 {V(t+6)}, {V(t+3)}, {V(t+5)}, vcc
        v_lshrrev_b32 {V(t+7)}, 1, {V(t+4)}
        v_lshl_add_u32 {V(t+6)}, {V(t+7)}, 8, {V(t+6)}
        v_and_b32 {V(t+7)}, 1, {V(t+4)}
        v_lshl_add_u32 {V(t+6)}, {V(t+7)}, 3, {V(t+6)}
        v_lshl_add_u32 {V(t+6)}, {V(t+1)}, 4, {V(t+6)}
        v_lshl_add_u32 {V(t+3)}, {V(t+1)}, 2, {V(t+3)}
        v_add_u32 {V(t+3)}, 512, {V(t+3)}
        v_cndmask_b32 {V(t+8+2*j)}, {V(t+6)}, {V(t+3)}, {S(sMask+2*j,2)}
        v_add_u32 {V(t+9+2*j)}, {HS}, {V(t+3)}
        ''')
    stats_addr()
    e(f'''
    v_and_b32 {V(tmp)}, 15, v0
    v_lshlrev_b32 {V(tmp)}, 2, {V(tmp)}
    s_lshl_b32 {S(sT)}, {S(sTW)}, 8
    s_lshl_b32 {S(sT2)}, {S(sCW)}, 7
    s_add_u32 {S(sT)}, {S(sT)}, {STL}
    s_add_u32 {S(sTmpO)}, {S(sT)}, {S(sT2)}
    v_add_u32 {V(adr+2)}, {S(sTmpO)}, {V(tmp)}
    s_sub_u32 {S(sT2)}, 128, {S(sT2)}
    s_add_u32 {S(sTmpO)}, {S(sT)}, {S(sT2)}
    v_add_u32 {V(adr+3)}, {S(sTmpO)}, {V(tmp)}
    v_lshrrev_b32 {V(tmp)}, 4, v0
    v_lshlrev_b32 {V(tmp)}, 4, {V(tmp)}
    s_lshl_b32 {S(sT)}, {S(sCW)}, 8
    s_lshl_b32 {S(sT2)}, {S(sTW)}, 7
    s_add_u32 {S(sT)}, {S(sT)}, {STL+1024}
    s_add_u32 {S(sTmpO)}, {S(sT)}, {S(sT2)}
    v_add_u32 {V(adr+4)}, {S(sTmpO)}, {V(tmp)}
    s_sub_u32 {S(sT2)}, 128, {S(sT2)}
    s_add_u32 {S(sTmpO)}, {S(sT)}, {S(sT2)}
    v_add_u32 {V(adr+5)}, {S(sTmpO)}, {V(tmp)}
    ''')
    mainloop(0)
    stamp()
    aQ = t + 8
    stats_finish(True)
    st = tmp
    for i in range(4):
        va = adr + 2 + (i >> 1)
        e(f'ds_read_b32 {V(st+i)}, {V(va)} offset:{(i&1)*64}')
        e(f'ds_read_b32 {V(st+4+i)}, {V(va)} offset:{512+(i&1)*64}')
    for j in range(4):
        va = adr + 4 + (j >> 1)
        e(f'ds_read_b128 {V(st+8+4*j,4)}, {V(va)} offset:{(j&1)*64}')
    e(f's_cmp_ge_u32 {S(sC64)}, 9')
    e(f's_cselect_b32 {S(sT)}, 1.0, {F(QSCALE)}')
    for i in range(4):
        e(f'v_mul_f32 {V(st+4+i)}, {S(sT)}, {V(st+4+i)}')
    e(f'''
    s_mul_i32 {S(sT)}, {S(sCW)}, {2*RQ}
    s_add_u32 {S(sO0)}, {S(sSt)}, {S(sT)}
    s_sub_u32 {S(sT)}, {2*RQ}, {S(sT)}
    s_add_u32 {S(sO1)}, {S(sSt)}, {S(sT)}
    ''')
    for j in range(4):
        for i in range(4):
            a0 = acc + (i * 4 + j) * 4
            for r in range(4):
                e(f'v_fma_f32 {V(a0+r)}, {V(st+8+4*j+r)}, {V(st+i)}, {V(a0+r)}')
            for r in range(4):
                e(f'v_mul_f32 {V(a0+r)}, {V(a0+r)}, {V(st+4+i)}')
            e(f'v_cvt_pk_bf16_f32 {V(a0)}, {V(a0)}, {V(a0+1)}')
            e(f'v_cvt_pk_bf16_f32 {V(a0+1)}, {V(a0+2)}, {V(a0+3)}')
        e(f's_andn2_b64 exec, -1, {S(sMask+2*j,2)}')
        for i in range(4):
            a0 = acc + (i * 4 + j) * 4
            so_ = sO0 if i < 2 else sO1
            e(f'buffer_store_dwordx2 {V(a0,2)}, {V(aQ+2*j)}, {S(srdS,4)}, {S(so_)} offen offset:{(i&1)*RQ}')
        e(f's_mov_b64 exec, {S(sMask+2*j,2)}')
        e(f's_cbranch_execz L_{name}_ns{j}')
        k.opt(True)
        for i in range(4):
            a0 = acc + (i * 4 + j) * 4
            so_ = sO0 if i < 2 else sO1
            e(f'buffer_store_dword {V(a0)}, {V(aQ+2*j)}, {S(srdS,4)}, {S(so_)} offen offset:{(i&1)*RQ}')
            e(f'buffer_store_dword {V(a0+1)}, {V(aQ+2*j+1)}, {S(srdS,4)}, {S(so_)} offen offset:{(i&1)*RQ}')
        k.opt(False)
        k.label(f'L_{name}_ns{j}')
        e('s_mov_b64 exec, -1')
    if stamps:
        stamp()
        e('s_waitcnt vmcnt(0)')
        stamp()
        emit_stamp_dump(k, e, sStamp, nst, srdW, s_x, sT, sW, tmp, int(stamps) - 1)
    e('s_endpgm')

    k.label(f'L_{name}_v')
    k.reset_state()
    t = tmp + 40
    e(f'''
    s_sub_u32 {S(sSec)}, {S(sC64)}, 18
    s_lshl_b32 {S(sSec)}, {S(sSec)}, 6
    v_and_b32 {V(t)}, 15, v0
    v_add_u32 {V(t)}, {S(sSec)}, {V(t)}
    v_lshrrev_b32 {V(t+1)}, 4, v0
    s_lshl_b32 {S(sT)}, {S(sTW)}, 5
    s_lshl_b32 {S(sSt)}, {S(sM)}, 2
    s_lshl_b32 {S(sT2)}, {S(sTW)}, 1
    s_add_u32 {S(sSt)}, {S(sSt)}, {S(sT2)}
    s_add_u32 {S(sO0)}, {S(sSt)}, {S(sCW)}
    s_sub_u32 {S(sO1)}, 1, {S(sCW)}
    s_add_u32 {S(sO1)}, {S(sO1)}, {S(sSt)}
    ''')
    for j in range(4):
        e(f'''
        s_xor_b32 {S(sT2)}, {S(sT)}, {16*j}
        v_add_u32 {V(t+2)}, {S(sT2)}, {V(t)}
        v_mul_u32_u24 {V(t+3)}, 3641, {V(t+2)}
        v_lshrrev_b32 {V(t+3)}, 16, {V(t+3)}
        v_mul_u32_u24 {V(t+4)}, 18, {V(t+3)}
        v_sub_u32 {V(t+4)}, {V(t+2)}, {V(t+4)}
        v_cmp_lt_u32 vcc, 15, {V(t+4)}
        v_lshlrev_b32 {V(t+3)}, 6, {V(t+3)}
        ''')
        for c in range(2):
            sc = sO0 if c == 0 else sO1
            e(f'''
            v_add_u32 {V(t+5)}, {S(sc)}, {V(t+3)}
            v_lshlrev_b32 {V(t+6)}, 10, {V(t+5)}
            v_lshl_add_u32 {V(t+6)}, {V(t+1)}, 8, {V(t+6)}
            v_lshl_add_u32 {V(t+6)}, {V(t+4)}, 4, {V(t+6)}
            v_add_u32 {V(t+6)}, {VF}, {V(t+6)}
            v_mul_u32_u24 {V(t+7)}, {RV}, {V(t+5)}
            v_lshl_add_u32 {V(t+7)}, {V(t+1)}, 5, {V(t+7)}
            v_lshl_add_u32 {V(t+7)}, {V(t+4)}, 4, {V(t+7)}
            v_add_u32 {V(t+7)}, {VT-256}, {V(t+7)}
            v_cndmask_b32 {V(t+8+2*j+c)}, {V(t+6)}, {V(t+7)}, vcc
            ''')
    stats_addr()
    e(f'''
    v_lshrrev_b32 {V(tmp)}, 4, v0
    v_lshlrev_b32 {V(tmp)}, 4, {V(tmp)}
    s_lshl_b32 {S(sT)}, {S(sTW)}, 8
    s_lshl_b32 {S(sT2)}, {S(sCW)}, 7
    s_add_u32 {S(sT)}, {S(sT)}, {STL}
    s_add_u32 {S(sTmpO)}, {S(sT)}, {S(sT2)}
    v_add_u32 {V(adr+2)}, {S(sTmpO)}, {V(tmp)}
    s_sub_u32 {S(sT2)}, 128, {S(sT2)}
    s_add_u32 {S(sTmpO)}, {S(sT)}, {S(sT2)}
    v_add_u32 {V(adr+3)}, {S(sTmpO)}, {V(tmp)}
    v_and_b32 {V(tmp)}, 15, v0
    v_lshlrev_b32 {V(tmp)}, 2, {V(tmp)}
    s_lshl_b32 {S(sT)}, {S(sCW)}, 8
    s_lshl_b32 {S(sT2)}, {S(sTW)}, 7
    s_add_u32 {S(sT)}, {S(sT)}, {STL+1024}
    s_add_u32 {S(sTmpO)}, {S(sT)}, {S(sT2)}
    v_add_u32 {V(adr+4)}, {S(sTmpO)}, {V(tmp)}
    s_sub_u32 {S(sT2)}, 128, {S(sT2)}
    s_add_u32 {S(sTmpO)}, {S(sT)}, {S(sT2)}
    v_add_u32 {V(adr+5)}, {S(sTmpO)}, {V(tmp)}
    ''')
    mainloop(1)
    aV = t + 8
    stats_finish()
    e(f's_cmp_ge_u32 {S(sC64)}, 27')
    e(f's_cbranch_scc1 L_{name}_x')
    st = tmp
    for i in range(4):
        va = adr + 2 + (i >> 1)
        e(f'ds_read_b128 {V(st+4*i,4)}, {V(va)} offset:{(i&1)*64}')
        e(f'ds_read_b128 {V(st+16+4*i,4)}, {V(va)} offset:{512+(i&1)*64}')
    for j in range(4):
        va = adr + 4 + (j >> 1)
        e(f'ds_read_b32 {V(st+32+j)}, {V(va)} offset:{(j&1)*64}')
    for j in range(4):
        for c in range(2):
            pk = wf + (j * 2 + c) * 4
            for hf in range(2):
                i = 2 * c + hf
                a0 = acc + (i * 4 + j) * 4
                for r in range(4):
                    e(f'v_fma_f32 {V(a0+r)}, {V(st+32+j)}, {V(st+4*i+r)}, {V(a0+r)}')
                for r in range(4):
                    e(f'v_mul_f32 {V(a0+r)}, {V(a0+r)}, {V(st+16+4*i+r)}')
                e(f'v_cvt_pk_bf16_f32 {V(pk+2*hf)}, {V(a0)}, {V(a0+1)}')
                e(f'v_cvt_pk_bf16_f32 {V(pk+2*hf+1)}, {V(a0+2)}, {V(a0+3)}')
            e(f'buffer_store_dwordx4 {V(pk,4)}, {V(aV+2*j+c)}, {S(srdS,4)}, 0 offen')
    k.label(f'L_{name}_x')
    e('s_endpgm')
    k.label(f'L_{name}_pf')
    k.clear_state()
    e(f'''
    s_load_dwordx2 {S(s_x,2)}, s[0:1], {KA_WO}
    s_load_dwordx2 {S(s_ws,2)}, s[0:1], {KA_WS}
    s_sub_u32 {S(sT)}, s2, 224
    s_lshl_b32 {S(sT)}, {S(sT)}, 2
    s_add_u32 {S(sT)}, {S(sT)}, {S(sW)}
    v_lshrrev_b32 v1, 3, v0
    v_mul_u32_u24 v2, 1152, v1
    v_and_b32 v3, 7, v0
    v_lshl_add_u32 v2, v3, 4, v2
    s_mul_i32 {S(sT2)}, {S(sT)}, {8*1152}
    s_mov_b32 {S(sOne)}, {16*RQ + 576}
    s_waitcnt lgkmcnt(0)
    s_mov_b32 {S(srdX)}, {S(s_x)}
    s_mov_b32 {S(srdX+1)}, {S(s_x+1)}
    s_mov_b32 {S(srdX+2)}, {576*1152}
    s_mov_b32 {S(srdX+3)}, 0x00020000
    s_mov_b32 {S(srdS)}, {S(s_ws)}
    s_mov_b32 {S(srdS+1)}, {S(s_ws+1)}
    s_mov_b32 {S(srdS+2)}, {WS_USED}
    s_mov_b32 {S(srdS+3)}, 0x00020000
    ''')
    for i in range(9):
        e(f'buffer_load_dwordx4 {V(16+4*i,4)}, v2, {S(srdX,4)}, {S(sT2)} offen offset:{i*128}')
    e(f'''
    v_mov_b32 v60, 0
    v_mov_b32 v61, 0
    v_mov_b32 v62, 0
    v_mov_b32 v63, 0
    v_mov_b32 v64, 0x3f803f80
    v_mov_b32 v65, 0x3f803f80
    v_mov_b32 v66, 0x3f803f80
    v_mov_b32 v67, 0x3f803f80
    s_lshl_b32 {S(sM)}, {S(sT)}, 6
    v_add_u32 v56, {S(sM)}, v0
    v_lshrrev_b32 v57, 7, v56
    v_and_b32 v58, 127, v56
    v_mul_u32_u24 v57, {HS}, v57
    v_mul_u32_u24 v58, {RQ}, v58
    v_add3_u32 v57, v57, v58, {S(sOne)}
    buffer_store_dwordx4 v[60:63], v57, {S(srdS,4)}, 0 offen
    v_mul_u32_u24 v58, {RV}, v56
    v_add_u32 v58, {VT + 128}, v58
    s_cmp_ge_u32 {S(sT)}, 32
    s_cbranch_scc1 L_{name}_nov
    ''')
    k.opt(True)
    e(f'buffer_store_dwordx4 v[64:67], v58, {S(srdS,4)}, 0 offen')
    k.opt(False)
    k.label(f'L_{name}_nov')
    e(f'''
    s_sub_u32 {S(sM)}, s2, 224
    s_mul_i32 {S(sM)}, {S(sM)}, {HS}
    s_add_u32 {S(sM)}, {S(sM)}, {KF}
    s_lshl_b32 {S(sN)}, {S(sW)}, 6
    v_add_u32 v56, {S(sN)}, v0
    v_mov_b32 v69, 0
    v_mov_b32 v70, 0
    v_mov_b32 v71, 0
    v_mov_b32 v73, 0
    v_mov_b32 v74, 0
    v_mov_b32 v75, 0
    v_mov_b32 v77, 0
    v_mov_b32 v78, 0
    v_mov_b32 v79, 0
    v_mov_b32 v59, 0xff7f
    ''')
    for i in range(3):
        e(f'''
        v_mul_u32_u24 v57, 1772, v56
        v_lshrrev_b32 v57, 16, v57
        v_mul_u32_u24 v57, 37, v57
        v_sub_u32 v57, v56, v57
        v_cmp_eq_u32 vcc, 36, v57
        v_cndmask_b32 {V(68+4*i)}, 0, v59, vcc
        v_lshlrev_b32 {V(80+i)}, 4, v56
        v_cmp_gt_u32 vcc, 0x250, v56
        s_and_saveexec_b64 {S(sMask+2,2)}, vcc
        s_cbranch_execz L_{name}_dk{i}
        ''')
        k.opt(True)
        e(f'buffer_store_dwordx4 {V(68+4*i,4)}, {V(80+i)}, {S(srdS,4)}, {S(sM)} offen')
        k.opt(False)
        k.label(f'L_{name}_dk{i}')
        e('s_mov_b64 exec, -1')
        e('v_add_u32 v56, 256, v56')
    e(f's_cmp_ge_u32 {S(sT)}, 72')
    e(f's_cbranch_scc1 L_{name}_x')
    e(f'''
    s_lshl_b32 {S(sT)}, {S(sT)}, 3
    v_add_u32 v1, {S(sT)}, v1
    v_lshrrev_b32 v4, 5, v1
    v_lshlrev_b32 v5, 6, v4
    v_bfe_u32 v4, v1, 2, 2
    v_lshl_add_u32 v5, v4, 4, v5
    v_bfe_u32 v4, v1, 4, 1
    v_lshl_add_u32 v5, v4, 3, v5
    v_and_b32 v4, 3, v1
    v_lshl_add_u32 v5, v4, 1, v5
    v_add_u32 v5, {WB}, v5
    v_mov_b32 v6, 0
    v_mov_b32 v7, 0
    v_cmp_eq_u32 {S(sMask,2)}, 0, v3
    ''')
    for i in range(36):
        e(f'v_lshlrev_b32 v8, 16, {V(16+i)}')
        e(f'v_and_b32 v9, 0xffff0000, {V(16+i)}')
        e(f'v_add_f32 v6, v6, v8')
        e(f'v_add_f32 v7, v7, v9')
    e(f'''
    v_add_f32 v6, v6, v7
    v_add_f32_dpp v7, v6, v6 quad_perm:[1,0,3,2] row_mask:0xf bank_mask:0xf
    v_add_f32_dpp v6, v7, v7 quad_perm:[2,3,0,1] row_mask:0xf bank_mask:0xf
    v_add_f32_dpp v7, v6, v6 row_half_mirror row_mask:0xf bank_mask:0xf
    v_mul_f32 v7, {F(1.0/576)}, v7
    v_cvt_pk_bf16_f32 v8, v7, v7
    v_lshlrev_b32 v9, 16, v8
    v_sub_f32 v7, v7, v9
    v_cvt_pk_bf16_f32 v9, v7, v7
    s_mov_b64 exec, {S(sMask,2)}
    buffer_store_short v8, v5, {S(srdS,4)}, 0 offen
    buffer_store_short v9, v5, {S(srdS,4)}, 0 offen offset:1152
    s_endpgm
    ''')
    return k
```

```python
from asmb import *
from layout import *
from k4 import F
from k4 import emit_stamp_dump
from pf import pf_gate_up

NEG_BIG = 0xFF7FFFFF


def row_max(x, t):
    return [f'v_mov_b32 {V(t)}, {V(x)}',
            f'v_permlane16_swap_b32 {V(x)}, {V(t)}',
            f'v_max_f32 {V(x)}, {V(x)}, {V(t)}',
            f'v_mov_b32 {V(t)}, {V(x)}',
            f'v_permlane32_swap_b32 {V(x)}, {V(t)}',
            f'v_max_f32 {V(x)}, {V(x)}, {V(t)}']


def build_k2(name='k2_kernel', stamps=False, colsum=False, prefetch=True, pf_n=2, pf_lanes=45, pf_late=True, code_pf=None, n_early=0):
    k = Kernel(name)
    k.lds = 1024
    k.ns = 3
    s_ws = k.s(2, 2)
    s_wg = k.s(4, 4)
    srdS = k.s(4, 4)
    srdW = k.s(4, 4)
    sW = k.s(); sH = k.s(); sQB = k.s(); sT = k.s(); sT2 = k.s()
    sK = k.s(4); sQ = k.s(); sV = k.s(3); sV2 = k.s(); sO = k.s()
    sB = k.s(4)
    s_p8 = k.s(8, 4); srdP = k.s(8, 4)
    k.nv = 1
    vL16 = k.v(); vTail = k.v(); vV2 = k.v()
    vO = k.v(3)
    mdiag = k.v(4, 4); mfirst = k.v(4, 4)
    cq = k.v(12, 4)
    NS = 6
    sb = k.v(NS * 4, 4)
    pb = k.v(8, 4)
    o1 = k.v(4, 4); o2 = k.v(4, 4)
    vm = k.v(2)
    tmp = k.v(8, 4)
    vP = k.v(7)
    ores = k.v(12)
    Kf = k.a(80, 4); V1 = k.a(40, 4); V2 = k.a(40, 4)
    Qf = k.v(16, 4)
    cq2 = k.v(12, 4); sb2 = k.v(NS * 4, 4); tm2 = k.v()
    e = k.e
    sStamp = k.s(24, 2) if stamps else None
    nst = [0]

    def stamp():
        if stamps:
            e(f's_memtime {S(sStamp + 2*nst[0], 2)}'); e('s_waitcnt lgkmcnt(0)'); nst[0] += 1
    e(f'''
    s_cmp_ge_u32 s2, 256
    s_cbranch_scc1 L_{name}_cs
    s_load_dwordx2 {S(s_ws,2)}, s[0:1], {KA_WS}
    s_load_dwordx8 {S(s_p8,8)}, s[0:1], {KA_WO}
    v_lshrrev_b32 {V(tmp)}, 6, v0
    v_and_b32 v0, 63, v0
    v_readfirstlane_b32 {S(sW)}, {V(tmp)}
    v_lshlrev_b32 {V(vL16)}, 4, v0
    s_and_b32 {S(sT)}, s2, 7
    s_lshr_b32 {S(sT2)}, s2, 3
    s_lshl_b32 {S(sH)}, {S(sT)}, 2
    s_and_b32 {S(sT)}, {S(sT2)}, 3
    s_add_u32 {S(sH)}, {S(sH)}, {S(sT)}
    s_lshr_b32 {S(sQB)}, {S(sT2)}, 2
    s_lshl_b32 {S(sQB)}, {S(sQB)}, 2
    s_add_u32 {S(sQB)}, {S(sQB)}, {S(sW)}
    ''')
    stamp()
    if stamps:
        e(f's_memrealtime {S(sStamp+20,2)}')
    e(f'''
    s_mul_i32 {S(sT)}, {S(sH)}, 144
    s_lshl_b32 {S(sT2)}, {S(sQB)}, 2
    s_add_u32 {S(sT)}, {S(sT)}, {S(sT2)}
    s_mul_i32 {S(sQ)}, {S(sT)}, {RQ}
    s_add_u32 {S(sK)}, {S(sQ)}, {KF}
    s_add_u32 {S(sK+1)}, {S(sK)}, {6*RQ}
    s_add_u32 {S(sK+2)}, {S(sK)}, {12*RQ}
    s_add_u32 {S(sK+3)}, {S(sK)}, {18*RQ}
    s_add_u32 {S(sQ)}, {S(sQ)}, {QF + 16*RQ}
    s_lshl_b32 {S(sT)}, {S(sH)}, 6
    s_lshl_b32 {S(sT2)}, {S(sQB)}, 1
    s_add_u32 {S(sT)}, {S(sT)}, {S(sT2)}
    s_lshl_b32 {S(sV)}, {S(sT)}, 10
    s_add_u32 {S(sV)}, {S(sV)}, {VF - 8*1024}
    s_add_u32 {S(sV+1)}, {S(sV)}, 4096
    s_add_u32 {S(sV+2)}, {S(sV)}, 8192
    s_mul_i32 {S(sV2)}, {S(sT)}, {RV}
    s_add_u32 {S(sV2)}, {S(sV2)}, {VT - 8*RV}
    s_mul_i32 {S(sO)}, {S(sQB)}, {4*18*1024}
    s_add_u32 {S(sO)}, {S(sO)}, {OF}
    v_lshlrev_b32 {V(vTail)}, 2, v0
    v_add_u32 {V(vTail)}, {512-128}, {V(vTail)}
    v_min_u32 {V(vTail)}, 576, {V(vTail)}
    v_cmp_gt_u32 vcc, 32, v0
    v_lshrrev_b32 {V(tmp)}, 4, v0
    v_lshlrev_b32 {V(vV2)}, 5, {V(tmp)}
    v_cndmask_b32 {V(vTail)}, {V(vTail)}, {V(vL16)}, vcc
    v_and_b32 {V(tmp+1)}, 1, v0
    v_lshl_add_u32 {V(vV2)}, {V(tmp+1)}, 4, {V(vV2)}
    v_and_b32 {V(tmp+1)}, 14, v0
    v_cmp_eq_u32 vcc, 0, {V(tmp+1)}
    v_mov_b32 {V(tmp+2)}, 128
    s_waitcnt lgkmcnt(0)
    v_cndmask_b32 {V(vV2)}, {V(tmp+2)}, {V(vV2)}, vcc
    s_mov_b32 {S(srdS)}, {S(s_ws)}
    s_mov_b32 {S(srdS+1)}, {S(s_ws+1)}
    s_mov_b32 {S(srdS+2)}, {WS_USED}
    s_mov_b32 {S(srdS+3)}, 0x00020000
    ''')

    def ldK(i):
        so, off = sK + i // 6, (i % 6) * RQ
        return f'buffer_load_dwordx4 {A(Kf+4*i,4)}, {V(vTail)}, {S(srdS,4)}, {S(so)} offen offset:{off}'

    def ldQ(j):
        return f'buffer_load_dwordx4 {V(Qf+4*j,4)}, {V(vTail)}, {S(srdS,4)}, {S(sQ)} offen offset:{j*RQ}'

    def ldV1(c):
        return f'buffer_load_dwordx4 {A(V1+4*c,4)}, {V(vL16)}, {S(srdS,4)}, {S(sV + c//4)} offen offset:{(c%4)*1024}'

    def ldV2(c):
        return f'buffer_load_dwordx4 {A(V2+4*c,4)}, {V(vV2)}, {S(srdS,4)}, {S(sV2)} offen offset:{c*RV}'
    EX_ALL = 's_mov_b64 exec, -1'
    sEx = k.s(4, 2)
    e(f's_mov_b32 {S(sEx)}, 0'); e(f's_mov_b32 {S(sEx+1)}, -1')
    e(f's_mov_b32 {S(sEx+2)}, 0'); e(f's_mov_b32 {S(sEx+3)}, 0xffff0000')
    for j in range(4):
        e(ldQ(j))
    for i in range(17):
        e(ldK(i))
    rest = []
    for c in range(9):
        rest += [ldV1(c), ldV2(c)]
        if c == 1:
            rest.append(ldK(17))
    rest += [ldK(18), ldK(19), ldV1(9), ldV2(9)]
    for r_ in rest[:n_early]:
        e(r_)
    rest = rest[n_early:]
    e(f'''
    v_lshrrev_b32 {V(tmp)}, 4, v0
    v_lshlrev_b32 {V(tmp)}, 2, {V(tmp)}
    v_and_b32 {V(tmp+1)}, 15, v0
    v_mov_b32 {V(tmp+2)}, {hex(NEG_BIG)}
    ''')
    for r in range(4):
        e(f'v_add_u32 {V(tmp+3)}, {r}, {V(tmp)}')
        e(f'v_cmp_gt_u32 vcc, {V(tmp+3)}, {V(tmp+1)}')
        e(f'v_cndmask_b32 {V(mdiag+r)}, 0, {V(tmp+2)}, vcc')
        e(f'v_cndmask_b32 {V(mfirst+r)}, {V(tmp+2)}, {V(tmp+4)}, vcc' if False else f'v_sub_f32 {V(mfirst+r)}, {V(tmp+2)}, {V(mdiag+r)}')
    e(f's_mul_i32 {S(sT)}, {S(sH)}, 18')
    for i in range(3):
        if i < 2:
            e(f'v_add_u32 {V(tmp+3)}, {S(sT)}, {V(tmp)}')
            if i:
                e(f'v_add_u32 {V(tmp+3)}, 2, {V(tmp+3)}')
        else:
            e(f's_add_u32 {S(sT)}, {S(sT)}, 16')
            e(f'v_mov_b32 {V(tmp+3)}, {S(sT)}')
        e(f'''
        v_lshrrev_b32 {V(tmp+4)}, 5, {V(tmp+3)}
        v_lshlrev_b32 {V(vO+i)}, 10, {V(tmp+4)}
        v_bfe_u32 {V(tmp+4)}, {V(tmp+3)}, 2, 2
        v_lshl_add_u32 {V(vO+i)}, {V(tmp+4)}, 8, {V(vO+i)}
        v_lshl_add_u32 {V(vO+i)}, {V(tmp+1)}, 4, {V(vO+i)}
        v_bfe_u32 {V(tmp+4)}, {V(tmp+3)}, 4, 1
        v_lshl_add_u32 {V(vO+i)}, {V(tmp+4)}, 3, {V(vO+i)}
        v_bfe_u32 {V(tmp+4)}, {V(tmp+3)}, 1, 1
        v_lshl_add_u32 {V(vO+i)}, {V(tmp+4)}, 2, {V(vO+i)}
        ''')
    qpatch = [f's_mov_b64 exec, {S(sEx,2)}']
    for j in range(4):
        qpatch += [f'v_mov_b32 {V(Qf+4*j+r)}, 0' for r in (1, 2, 3)]
    qpatch += [f's_mov_b64 exec, {S(sEx+2,2)}'] + [f'v_mov_b32 {V(Qf+4*j)}, 0x3f80' for j in range(4)] + [EX_ALL]
    late = []
    if prefetch:
        su, pl = pf_gate_up(k, sW, s_p8, srdP, sT, sT2, vP, pf_n, pf_lanes)
        e(su)
        if not pf_late:
            late += pl; pl = []

    stamp()
    sidx = [0]
    CQ = [cq, cq2]

    def pass1(j):
        ops = []
        pendv = []
        for i in range(17):
            b = sb2 + (i % NS) * 4
            c = V(mfirst, 4) if i == 0 else V(mdiag, 4) if i == 16 else '0'
            ops.append(f'v_mfma_f32_16x16x32_bf16 {V(b,4)}, {A(Kf+4*(j+i),4)}, {V(Qf+4*j,4)}, {c}')
            m = vm + (i & 1)
            if i < 2:
                va = [f'v_max3_f32 {V(m)}, {V(b)}, {V(b+1)}, {V(b+2)}', f'v_max_f32 {V(m)}, {V(m)}, {V(b+3)}']
            else:
                va = [f'v_max3_f32 {V(m)}, {V(m)}, {V(b)}, {V(b+1)}', f'v_max3_f32 {V(m)}, {V(m)}, {V(b+2)}, {V(b+3)}']
            pendv.append(va)
            if len(pendv) > 3:
                ops += pendv.pop(0)
        for va in pendv:
            ops += va
        ops.append(f'v_max_f32 {V(vm)}, {V(vm)}, {V(vm+1)}')
        ops += row_max(vm, tm2)
        cq = CQ[j % 2]
        for r in range(4):
            ops.append(f'v_sub_f32 {V(cq+r)}, 0, {V(vm)}')
        for r in range(4):
            ops.append(f'v_sub_f32 {V(cq+4+r)}, {V(mdiag+r)}, {V(vm)}')
            ops.append(f'v_sub_f32 {V(cq+8+r)}, {V(mfirst+r)}, {V(vm)}')
        return ops

    def pass2(j):
        ops = []
        c0 = j // 2
        cq = CQ[j % 2]
        stages = []
        for ci in range(9):
            c = c0 + ci
            sm, va = [], []
            p = pb + (ci % 2) * 4
            for hf in range(2):
                kb = 2 * c + hf
                i = kb - j
                if i < 0 or i > 16:
                    va += [f'v_mov_b32 {V(p+2*hf)}, 0', f'v_mov_b32 {V(p+2*hf+1)}, 0']
                    continue
                b = sb + (sidx[0] % NS) * 4; sidx[0] += 1
                cc = cq + (8 if i == 0 else 4 if i == 16 else 0)
                sm.append(f'v_mfma_f32_16x16x32_bf16 {V(b,4)}, {A(Kf+4*kb,4)}, {V(Qf+4*j,4)}, {V(cc,4)}')
                va += [f'v_exp_f32 {V(b+r)}, {V(b+r)}' for r in range(4)]
                va += [f'v_cvt_pk_bf16_f32 {V(p+2*hf+q)}, {V(b+2*q)}, {V(b+2*q+1)}' for q in range(2)]
            ca = '0' if ci == 0 else V(o1, 4)
            cb = '0' if ci == 0 else V(o2, 4)
            pv = [f'v_mfma_f32_16x16x32_bf16 {V(o1,4)}, {A(V1+4*c,4)}, {V(p,4)}, {ca}',
                  f'v_mfma_f32_16x16x32_bf16 {V(o2,4)}, {A(V2+4*c,4)}, {V(p,4)}, {cb}']
            stages.append((sm, va, pv))
        ops += stages[0][0]
        for ci in range(9):
            if ci + 1 < 9:
                ops += stages[ci + 1][0]
            va = list(stages[ci][1])
            if ci > 0:
                ops += va[:2] + stages[ci - 1][2] + va[2:]
            else:
                ops += va
        ops += ['s_nop 1'] + stages[8][2]
        return ops

    def final(j):
        t = tmp
        r0 = ores + 3 * j
        ops = [f'v_rcp_f32 {V(t)}, {V(o2+2)}']
        ops += [f'v_mul_f32 {V(o1+r)}, {V(o1+r)}, {V(t)}' for r in range(4)]
        ops += [f'v_mul_f32 {V(o2+r)}, {V(o2+r)}, {V(t)}' for r in range(2)]
        ops += [f'v_cvt_pk_bf16_f32 {V(r0)}, {V(o1)}, {V(o1+1)}', f'v_cvt_pk_bf16_f32 {V(r0+1)}, {V(o1+2)}, {V(o1+3)}',
                f'v_cvt_pk_bf16_f32 {V(r0+2)}, {V(o2)}, {V(o2+1)}']
        return ops

    def stores():
        ops = []
        for j in range(4):
            ops.append(f's_add_u32 {S(sK+0)}, {S(sO)}, {18*1024*j}')
            ops += [f'buffer_store_dword {V(ores+3*j)}, {V(vO)}, {S(srdS,4)}, {S(sK)} offen',
                    f'buffer_store_dword {V(ores+3*j+1)}, {V(vO+1)}, {S(srdS,4)}, {S(sK)} offen']
        ops.append('s_mov_b64 exec, 0xffff')
        for j in range(4):
            ops.append(f's_add_u32 {S(sK+0)}, {S(sO)}, {18*1024*j}')
            ops.append(f'buffer_store_dword {V(ores+3*j+2)}, {V(vO+2)}, {S(srdS,4)}, {S(sK)} offen')
        ops.append(EX_ALL)
        return ops

    e('\n'.join(qpatch))
    e('\n'.join(interleave(pass1(0)[:50], rest) + pass1(0)[50:]))
    stamp()
    for j in range(4):
        p2 = pass2(j)
        if j > 0:
            p2 = p2[:3] + final(j - 1) + p2[3:]
        if j < 3:
            p2 = interleave(p2, pass1(j + 1))
        e('\n'.join(p2))
        if j == 0:
            stamp()
            if prefetch and pl:
                e('s_waitcnt vmcnt(0)')
                if code_pf:
                    from pf import pf_code
                    e(f's_lshr_b32 {S(sT2)}, s2, 3')
                    e(f's_lshl_b32 {S(sT2)}, {S(sT2)}, 2')
                    e(f's_add_u32 {S(sT2)}, {S(sT2)}, {S(sW)}')
                    e(f's_and_b32 {S(sT2)}, {S(sT2)}, 15')
                    pf_code(k, code_pf[0], code_pf[1], s_wg, sT2, sT, s_wg + 2, vP + 3)
                e('\n'.join(pl))
    e('\n'.join(final(3)))
    e('\n'.join(stores()))
    if stamps:
        stamp()
        e('s_waitcnt vmcnt(0)')
        stamp()
        emit_stamp_dump(k, e, sStamp, nst, srdW, s_wg, sT, sW, tmp, int(stamps) - 1)
    e('s_endpgm')

    k.label(f'L_{name}_cs')
    if not colsum:
        e('s_endpgm')
        return k
    ld = 4
    e(f'''
    s_sub_u32 {S(sT)}, s2, 256
    s_cmp_ge_u32 {S(sT)}, 144
    s_cbranch_scc1 L_{name}_end
    s_load_dwordx2 {S(s_ws,2)}, s[0:1], {KA_WS}
    s_load_dwordx4 {S(s_wg,4)}, s[0:1], {KA_WG}
    v_lshrrev_b32 v1, 6, v0
    v_and_b32 v0, 63, v0
    v_readfirstlane_b32 {S(sW)}, v1
    s_and_b32 {S(sT2)}, {S(sT)}, 3
    s_mul_i32 {S(sT2)}, {S(sT2)}, 18
    s_lshr_b32 {S(sH)}, {S(sT)}, 3
    s_add_u32 {S(sT2)}, {S(sT2)}, {S(sH)}
    s_bfe_u32 {S(sH)}, {S(sT)}, 0x10002
    v_lshrrev_b32 v1, 3, v0
    v_mul_u32_u24 v1, 9216, v1
    v_and_b32 v2, 7, v0
    v_lshl_add_u32 v1, v2, 4, v1
    s_mul_i32 {S(sQ)}, {S(sW)}, {144*9216}
    s_lshl_b32 {S(sT)}, {S(sT2)}, 7
    s_add_u32 {S(sQ)}, {S(sQ)}, {S(sT)}
    s_waitcnt lgkmcnt(0)
    s_cmp_eq_u32 {S(sH)}, 0
    s_cselect_b32 {S(srdW)}, {S(s_wg)}, {S(s_wg+2)}
    s_cselect_b32 {S(srdW+1)}, {S(s_wg+1)}, {S(s_wg+3)}
    s_mov_b32 {S(srdW+2)}, {576*9216}
    s_mov_b32 {S(srdW+3)}, 0x00020000
    s_mov_b32 {S(srdS)}, {S(s_ws)}
    s_mov_b32 {S(srdS+1)}, {S(s_ws+1)}
    s_mov_b32 {S(srdS+2)}, {WS_USED}
    s_mov_b32 {S(srdS+3)}, 0x00020000
    ''')
    for i in range(18):
        e(f'buffer_load_dwordx4 {A(4*i,4)}, v1, {S(srdW,4)}, {S(sQ)} offen')
        if i < 17:
            e(f's_add_u32 {S(sQ)}, {S(sQ)}, {8*9216}')
    ac = 8
    for q in range(8):
        e(f'v_mov_b32 {V(ac+q)}, 0')
    for i in range(18):
        for q in range(4):
            e(f'v_accvgpr_read_b32 {V(16+q)}, {A(4*i+q)}')
        for q in range(4):
            e(f'v_lshlrev_b32 {V(20+q)}, 16, {V(16+q)}')
            e(f'v_and_b32 {V(16+q)}, 0xffff0000, {V(16+q)}')
        for q in range(4):
            e(f'v_add_f32 {V(ac+2*q)}, {V(ac+2*q)}, {V(20+q)}')
            e(f'v_add_f32 {V(ac+2*q+1)}, {V(ac+2*q+1)}, {V(16+q)}')
    for q in range(8):
        e(f'v_add_f32_dpp {V(16+q)}, {V(ac+q)}, {V(ac+q)} row_ror:8 row_mask:0xf bank_mask:0xf')
    for q in range(8):
        x, t = 16 + q, 24 + q
        e(f'''
        v_mov_b32 {V(t)}, {V(x)}
        v_permlane16_swap_b32 {V(x)}, {V(t)}
        v_add_f32 {V(x)}, {V(x)}, {V(t)}
        v_mov_b32 {V(t)}, {V(x)}
        v_permlane32_swap_b32 {V(x)}, {V(t)}
        v_add_f32 {V(x)}, {V(x)}, {V(t)}
        ''')
    e(f'''
    v_lshlrev_b32 v1, 5, v2
    s_lshl_b32 {S(sT)}, {S(sW)}, 8
    v_add_u32 v1, {S(sT)}, v1
    s_mov_b64 exec, 0xff
    ds_write_b128 v1, v[16:19]
    ds_write_b128 v1, v[20:23] offset:16
    s_mov_b64 exec, -1
    s_waitcnt lgkmcnt(0)
    s_barrier
    s_cmp_lg_u32 {S(sW)}, 0
    s_cbranch_scc1 L_{name}_end
    v_lshlrev_b32 v1, 2, v0
    ds_read_b32 v4, v1
    ds_read_b32 v5, v1 offset:256
    ds_read_b32 v6, v1 offset:512
    ds_read_b32 v7, v1 offset:768
    s_mul_i32 {S(sT)}, {S(sH)}, {4608*4}
    s_lshl_b32 {S(sT2)}, {S(sT2)}, 8
    s_add_u32 {S(sT)}, {S(sT)}, {S(sT2)}
    s_add_u32 {S(sT)}, {S(sT)}, {CS}
    v_add_f32 v4, v4, v5
    v_add_f32 v6, v6, v7
    v_add_f32 v4, v4, v6
    buffer_store_dword v4, v1, {S(srdS,4)}, {S(sT)} offen
    ''')
    k.label(f'L_{name}_end')
    e('s_endpgm')
    return k
```

```python
from asmb import *
from layout import *
import struct

LOG2E = 1.4426950408889634


def F(x):
    return hex(struct.unpack('<I', struct.pack('<f', x))[0])


def emit_stamp_dump(k, e, sStamp, nst, srd, sp, sT, sW, vt, region=0):
    e(f's_memrealtime {S(sStamp+22,2)}')
    e(f's_load_dwordx2 {S(sp,2)}, s[0:1], {KA_BX}')
    e('s_waitcnt lgkmcnt(0)')
    e(f's_mov_b32 {S(srd)}, {S(sp)}'); e(f's_mov_b32 {S(srd+1)}, {S(sp+1)}'); e(f's_mov_b32 {S(srd+2)}, 0x100000'); e(f's_mov_b32 {S(srd+3)}, 0x00020000')
    e(f's_lshl_b32 {S(sT)}, s2, 3'); e(f's_add_u32 {S(sT)}, {S(sT)}, {S(sW)}'); e(f's_lshl_b32 {S(sT)}, {S(sT)}, 6')
    e(f's_add_u32 {S(sT)}, {S(sT)}, {region*0x20000}')
    e(f'v_mov_b32 {V(vt)}, 0')
    for i in range(12):
        e(f'v_mov_b32 {V(vt+1)}, {S(sStamp+2*i)}')
        e(f'buffer_store_dword {V(vt+1)}, {V(vt)}, {S(srd,4)}, {S(sT)} offen offset:{4*i}')
        e('s_waitcnt vmcnt(0)')


def bf16_round(dst, src):
    return [f'v_cvt_pk_bf16_f32 {V(dst)}, {V(src)}, {V(src)}', f'v_lshlrev_b32 {V(dst)}, 16, {V(dst)}']


def ln_stats_ops(st, nparts, npart_elems, t0, t1, s_inv, s_n):
    o = []
    so = o.append
    so(f'v_add_f32 {V(t0)}, {V(st)}, {V(st+2)}')
    for nt in range(2, nparts):
        so(f'v_add_f32 {V(t0)}, {V(t0)}, {V(st+2*nt)}')
    so(f'v_mul_f32 {V(t0)}, {F(1.0/576)}, {V(t0)}')
    so(f'v_mov_b32 {V(t1)}, 0')
    for nt in range(nparts):
        so(f'v_fma_f32 {V(st+2*nt)}, {V(st+2*nt)}, {S(s_inv)}, -{V(t0)}')
        so(f'v_mul_f32 {V(st+2*nt)}, {V(st+2*nt)}, {V(st+2*nt)}')
        so(f'v_add_f32 {V(t1)}, {V(t1)}, {V(st+2*nt+1)}')
        so(f'v_fma_f32 {V(t1)}, {V(st+2*nt)}, {S(s_n)}, {V(t1)}')
    so(f'v_mul_f32 {V(t1)}, {F(1.0/576)}, {V(t1)}')
    o += bf16_round(t0, t0)
    o += bf16_round(t1, t1)
    so(f'v_add_f32 {V(t1)}, {F(1e-5)}, {V(t1)}')
    o += bf16_round(t1, t1)
    so(f'v_sqrt_f32 {V(t1)}, {V(t1)}')
    o += bf16_round(t1, t1)
    return o


def build_k4(TAIL=6, WF=6, PF=5, use_pk=False, name='k4_kernel', vm_every=2, pre_stages=2, stamps=False,
             no_mfma=False, no_lds=False, no_store=False, no_vm=False, no_bar=False, prefetch_code=None, pf_at=18*13, DIST=6, code_pf=None, st_flags='', no_side=False, rgroup=1, prio=False, rd128=False, wf_v=False, half_reads=False):
    assert not use_pk
    k = Kernel(name)
    NKS = 18
    RING = 8
    PART = RING * 9216
    UOFF = PART
    CSL = 2 * PART
    k.lds = CSL
    k.ns = 3
    s_wg = k.s(4, 4)
    s_ws = k.s(2, 2)
    s_wd = k.s(2, 2)
    srdP = k.s(4, 4)
    srdW = k.s(4, 4)
    srdS = k.s(4, 4)
    sW = k.s(); sPart = k.s(); sJ = k.s(); sM = k.s(); sN = k.s(); sT = k.s(); sT2 = k.s()
    sM8 = k.s(); sM0 = k.s(); sTok0 = k.s(); sTok1 = k.s(); sGrp = k.s(); sSt = k.s(); sSt8 = k.s()
    k.nv = 1
    vL16 = k.v()
    vSt = k.v()
    vP = k.v()
    acc = k.v(144, 4)
    vA = k.v(4)
    vAa = k.v(2); vSs = k.v(2)
    vdma = k.v(3)
    tmp = k.v(20, 4)
    wf = k.v(WF * 4, 4) if wf_v else k.a(WF * 4, 4)
    WR = V if wf_v else A
    ntokA = (256 - ((k.nv + 3) // 4 * 4) - k.na) // 8
    tokA = k.a(ntokA * 8, 4)
    TF = ntokA
    assert (k.nv + 3) // 4 * 4 + k.na <= 256, (k.nv, k.na)

    def ACC(fb, part, tb):
        return acc + ((fb * 2 + part) * 2 + tb) * 4

    main_ks = NKS - TAIL
    tokbuf = {}
    extra = [('v', tmp + 4), ('v', tmp + 12)]
    n_extra = 2
    ring_ks = [ks for ks in range(NKS - n_extra)]
    for i, ks in enumerate(ring_ks):
        tokbuf[ks] = ('a', tokA + (i % TF) * 8)
    for i in range(n_extra):
        tokbuf[NKS - n_extra + i] = extra[i]

    def TOK(ks, tb):
        kind, b = tokbuf[ks]
        return R(kind, b + 4 * tb, 4)

    e = k.e
    sStamp = k.s(24, 2) if stamps else None
    nst = [0]

    def stamp():
        if stamps:
            e(f's_memtime {S(sStamp + 2*nst[0], 2)}'); e('s_waitcnt lgkmcnt(0)'); nst[0] += 1
    e(f'''
    s_cmp_ge_u32 s2, 256
    s_cbranch_scc1 L_{name}_end
    s_load_dwordx4 {S(s_wg,4)}, s[0:1], {KA_WG}
    s_load_dwordx2 {S(s_ws,2)}, s[0:1], {KA_WS}
    s_load_dwordx2 {S(s_wd,2)}, s[0:1], {KA_WD}
    v_lshrrev_b32 {V(tmp)}, 6, v0
    v_and_b32 v0, 63, v0
    v_readfirstlane_b32 {S(sW)}, {V(tmp)}
    v_lshlrev_b32 {V(vL16)}, 4, v0
    s_and_b32 {S(sT)}, s2, 7
    s_lshr_b32 {S(sT2)}, s2, 3
    s_lshr_b32 {S(sM)}, {S(sT)}, 2
    s_lshl_b32 {S(sM)}, {S(sM)}, 2
    s_and_b32 {S(sN)}, {S(sT2)}, 3
    s_add_u32 {S(sM)}, {S(sM)}, {S(sN)}
    s_and_b32 {S(sN)}, {S(sT)}, 3
    s_lshl_b32 {S(sN)}, {S(sN)}, 3
    s_lshr_b32 {S(sT2)}, {S(sT2)}, 2
    s_add_u32 {S(sN)}, {S(sN)}, {S(sT2)}
    s_lshr_b32 {S(sPart)}, {S(sW)}, 2
    s_and_b32 {S(sJ)}, {S(sW)}, 3
    ''')
    stamp()
    if stamps:
        e(f's_memrealtime {S(sStamp+20,2)}')
    e(f'''
    s_lshl_b32 {S(sT)}, {S(sJ)}, 6
    v_add_u32 {V(tmp)}, {S(sT)}, v0
    s_lshl_b32 {S(sT)}, {S(sJ)}, 4
    v_add_u32 {V(tmp+3)}, {S(sT)}, v0
    s_mul_i32 {S(sM8)}, {S(sPart)}, {UOFF}
    s_lshl_b32 {S(sT)}, {S(sJ)}, 8
    s_add_u32 {S(sM8)}, {S(sM8)}, {S(sT)}
    s_mul_i32 {S(sGrp)}, {S(sN)}, 288
    s_mul_i32 {S(sM0)}, {S(sPart)}, {UOFF}
    s_lshl_b32 {S(sT)}, {S(sJ)}, 10
    s_add_u32 {S(sM0)}, {S(sM0)}, {S(sT)}
    s_lshl_b32 {S(sT)}, {S(sM)}, 3
    s_add_u32 {S(sT)}, {S(sT)}, {S(sW)}
    s_mul_i32 {S(sTok0)}, {S(sT)}, {36*1024}
    s_add_u32 {S(sTok0)}, {S(sTok0)}, {HC}
    s_add_u32 {S(sTok1)}, {S(sTok0)}, {18*1024}
    s_mul_i32 {S(sSt)}, {S(sT)}, {2*144*1024}
    s_add_u32 {S(sSt)}, {S(sSt)}, {HH}
    s_lshr_b32 {S(sT2)}, {S(sN)}, 1
    s_mul_i32 {S(sT2)}, {S(sT2)}, {9*1024}
    s_add_u32 {S(sSt)}, {S(sSt)}, {S(sT2)}
    s_and_b32 {S(sT2)}, {S(sN)}, 1
    s_lshl_b32 {S(sSt8)}, {S(sT2)}, 3
    s_add_u32 {S(sSt8)}, {S(sSt8)}, {S(sSt)}
    s_add_u32 {S(sSt8)}, {S(sSt8)}, {8*1024}
    s_lshl_b32 {S(sT2)}, {S(sT2)}, 12
    s_add_u32 {S(sSt)}, {S(sSt)}, {S(sT2)}
    ''')

    def dma_voff(i):
        d = vdma + i
        return [f'v_add_u32 {V(tmp+1)}, {256*i}, {V(tmp)}' if i < 2 else f'v_add_u32 {V(tmp+1)}, 512, {V(tmp+3)}',
                f'v_mul_u32_u24 {V(tmp+2)}, 3641, {V(tmp+1)}',
                f'v_lshrrev_b32 {V(tmp+2)}, 16, {V(tmp+2)}',
                f'v_mul_u32_u24 {V(tmp+2)}, {9216-288}, {V(tmp+2)}',
                f'v_lshl_add_u32 {V(d)}, {V(tmp+1)}, 4, {V(tmp+2)}']
    for i in range(3):
        e('\n'.join(dma_voff(i)))
    e(f'''
    s_waitcnt lgkmcnt(0)
    s_cmp_eq_u32 {S(sPart)}, 0
    s_cselect_b32 {S(srdW)}, {S(s_wg)}, {S(s_wg+2)}
    s_cselect_b32 {S(srdW+1)}, {S(s_wg+1)}, {S(s_wg+3)}
    s_mov_b32 {S(srdW+2)}, {576*9216}
    s_mov_b32 {S(srdW+3)}, 0x00020000
    s_mov_b32 {S(srdS)}, {S(s_ws)}
    s_mov_b32 {S(srdS+1)}, {S(s_ws+1)}
    s_mov_b32 {S(srdS+2)}, {WS_USED}
    s_mov_b32 {S(srdS+3)}, 0x00020000
    ''')

    order = [(ks, fb, p) for ks in range(main_ks) for fb in range(9) for p in range(2)]
    groups = [(0, 1), (2, 3), (4, 5), (6, 7), (8,)]
    grp_last = {}
    for gi, g in enumerate(groups):
        for ks in range(main_ks, NKS):
            for fb in g:
                for p in range(2):
                    order.append((ks, fb, p))
        grp_last[gi] = len(order) - 1
    N = len(order)
    first_use, last_use = {}, {}
    for n, (ks, fb, p) in enumerate(order):
        first_use.setdefault(ks, n)
        last_use[ks] = n
    dmas = [dict(G=G, i=i, smin=G, smax=G) for G in range(18) for i in range(3)]
    pend = []
    for d in dmas:
        pend.append((first_use[d['smin']] - PF, 0, 'dma', d))
    for ks in range(NKS):
        for tb in range(2):
            pend.append((first_use[ks], 1 + tb, 'tok', (ks, tb)))
    pend.sort(key=lambda x: (x[0], x[1]))
    barrier_passed = [-1]
    tok_sbase = [0, 0]
    grp_cur = [0]
    voff_done = set(range(3))
    corr_end = [10 ** 9]

    def eligible(p, n):
        if p[0] > max(n, 0) + DIST * 18:
            return False
        if p[2] == 'dma':
            d = p[3]
            return d['smax'] < RING or barrier_passed[0] >= d['smax'] - 6
        ks, tb = p[3]
        if tokbuf[ks][0] == 'v':
            return n > corr_end[0]
        return ks < TF or last_use[ks - TF] < n

    def issue(p):
        if no_vm and not ((p[2] == 'dma' and p[3]['smin'] < 1) or (p[2] == 'tok' and p[3][0] < TF)):
            return
        if p[2] == 'dma':
            d = p[3]
            slot = d['G'] % RING
            if d['i'] < 2:
                e(f's_add_u32 m0, {S(sM0)}, {slot * 9216 + d["i"] * 4096}')
            else:
                e(f's_add_u32 m0, {S(sM8)}, {slot * 9216 + 8192}')
            while grp_cur[0] < d['G']:
                e(f's_add_u32 {S(sGrp)}, {S(sGrp)}, {32*9216}'); grp_cur[0] += 1
            if d['i'] == 2:
                e('s_mov_b64 exec, 0xffff')
            e(f'buffer_load_dwordx4 {V(vdma+d["i"])}, {S(srdW,4)}, {S(sGrp)} offen lds', tag=f'st{d["smin"]}')
            if d['i'] == 2:
                e('s_mov_b64 exec, -1')
        else:
            ks, tb = p[3]
            sT_ = sTok1 if tb else sTok0
            while ks - tok_sbase[tb] >= 4:
                e(f's_add_u32 {S(sT_)}, {S(sT_)}, 4096'); tok_sbase[tb] += 4
            off = (ks - tok_sbase[tb]) * 1024
            e(f'buffer_load_dwordx4 {TOK(ks, tb)}, {V(vL16)}, {S(srdS,4)}, {S(sT_)} offen offset:{off}')

    def pop_issue(n, maxn=1):
        c = 0
        while pend and c < maxn:
            for q, p in enumerate(pend):
                if eligible(p, n):
                    if any(pp[2] == p[2] for pp in pend[:q]):
                        continue
                    issue(p); pend.pop(q); c += 1
                    break
            else:
                break

    npre = sum(1 for p in pend if (p[2] == 'dma' and p[3]['smin'] < pre_stages) or (p[2] == 'tok' and p[3][0] < pre_stages))
    pop_issue(-1, npre)
    e(f'''
    v_lshrrev_b32 {V(tmp+4)}, 2, v0
    v_mul_u32_u24 {V(vA)}, 288, {V(tmp+4)}
    v_and_b32 {V(tmp+5)}, 3, v0
    v_lshl_add_u32 {V(vA)}, {V(tmp+5)}, 3, {V(vA)}
    v_add_u32 {V(vA+1)}, {4*9216}, {V(vA)}
    v_add_u32 {V(vA+2)}, {UOFF}, {V(vA)}
    v_add_u32 {V(vA+3)}, {UOFF+4*9216}, {V(vA)}
    v_add_u32 {V(vSt)}, {144*1024}, {V(vL16)}
    ''')
    e(f'''
    v_and_b32 {V(tmp)}, 31, v0
    v_lshlrev_b32 {V(tmp)}, 3, {V(tmp)}
    s_lshl_b32 {S(sT)}, {S(sT)}, 8
    s_add_u32 {S(sT)}, {S(sT)}, {ST}
    ''')
    for nt in range(9):
        e(f'buffer_load_dwordx2 {V(tmp+2+2*nt,2)}, {V(tmp)}, {S(srdS,4)}, {S(sT)} offen')
        if nt < 8:
            e(f's_add_u32 {S(sT)}, {S(sT)}, 16384')
    e(f's_lshl_b32 {S(sT)}, s2, 3')
    e(f's_add_u32 {S(sT)}, {S(sT)}, {S(sW)}')
    e(f's_cmp_ge_u32 {S(sT)}, 8')
    e(f's_cbranch_scc1 L_{name}_nofl')
    k.opt(True)
    e(f's_lshl_b32 {S(sT)}, {S(sT)}, 10')
    e(f's_add_u32 {S(sT)}, {S(sT)}, {FL}')
    for q in range(4):
        e(f'v_mov_b32 {V(acc+q)}, 0')
    e(f'buffer_store_dwordx4 {V(acc,4)}, {V(vL16)}, {S(srdS,4)}, {S(sT)} offen')
    e('s_nop 1')
    k.opt(False)
    k.label(f'L_{name}_nofl')
    from pf import pf_down
    su, pf_loads = pf_down(k, sW, s_wd, srdP, sT, sT2, vP)
    e(su)

    stats_ops = ln_stats_ops(tmp + 2, 9, 64, tmp, tmp + 1, sJ, sT2)
    so = stats_ops.append
    so(f'v_mov_b32 {V(vSs)}, {V(tmp+1)}')
    so(f'v_mov_b32 {V(vSs+1)}, {V(tmp+1)}')
    so(f'v_rcp_f32 {V(vAa)}, {V(tmp+1)}')
    so(f'v_mul_f32 {V(vAa)}, {F(-LOG2E)}, {V(vAa)}')
    so(f'v_mov_b32 {V(vAa+1)}, {V(vAa)}')
    for r in (vSs, vAa):
        so(f'v_permlane16_swap_b32 {V(r)}, {V(r+1)}')

    def corr_read(fb, p, t):
        return [f'ds_read_b128 {V(t,4)}, {V(vCs)} offset:{fb*64+p*1024}']

    def corr_ops(fb, p, t):
        o = []
        for tb in range(2):
            a0 = ACC(fb, p, tb)
            if use_pk:
                o += [f'v_pk_fma_f32 {V(a0+2*q,2)}, {V(t+2*q,2)}, {V(vNegM+2*tb,2)}, {V(a0+2*q,2)}' for q in range(2)]
            else:
                o += [f'v_fma_f32 {V(a0+q)}, {V(t+q)}, {V(vNegM+tb)}, {V(a0+q)}' for q in range(4)]
        return o

    def epi_ops(gi, tb):
        g = groups[gi]
        o = []
        Gs = [ACC(fb, 0, tb) for fb in g]
        Us = [ACC(fb, 1, tb) for fb in g]
        aa, ss = vAa + tb, vSs + tb
        for G in Gs:
            if use_pk:
                o += [f'v_pk_mul_f32 {V(G+2*q,2)}, {V(G+2*q,2)}, {V(aa,2)}' for q in range(2)]
            else:
                o += [f'v_mul_f32 {V(G+q)}, {V(G+q)}, {V(aa)}' for q in range(4)]
        for G in Gs:
            o += [f'v_exp_f32 {V(G+q)}, {V(G+q)}' for q in range(4)]
        for G in Gs:
            if use_pk:
                o += [f'v_pk_fma_f32 {V(G+2*q,2)}, {V(G+2*q,2)}, {V(ss,2)}, {V(ss,2)}' for q in range(2)]
            else:
                o += [f'v_fma_f32 {V(G+q)}, {V(G+q)}, {V(ss)}, {V(ss)}' for q in range(4)]
        for G in Gs:
            o += [f'v_rcp_f32 {V(G+q)}, {V(G+q)}' for q in range(4)]
        for G, U in zip(Gs, Us):
            if use_pk:
                o += [f'v_pk_mul_f32 {V(U+2*q,2)}, {V(U+2*q,2)}, {V(G+2*q,2)}' for q in range(2)]
            else:
                o += [f'v_mul_f32 {V(U+q)}, {V(U+q)}, {V(G+q)}' for q in range(4)]
        D = Gs[0]
        for bi, U in enumerate(Us):
            o += [f'v_cvt_pk_bf16_f32 {V(D+2*bi+q)}, {V(U+2*q)}, {V(U+2*q+1)}' for q in range(2)]
        va = vSt if tb else vL16
        if not no_store:
            if len(g) == 2:
                o += [f'buffer_store_dwordx4 {V(D,4)}, {V(va)}, {S(srdS,4)}, {S(sSt)} offen offset:{gi*1024} {st_flags}']
            else:
                o += [f'buffer_store_dwordx2 {V(D,2)}, {V(va)}, {S(srdS,4)}, {S(sSt8)} offen {st_flags}']
        return o

    e(f's_mov_b32 {S(sJ)}, {F(1.0/64)}')
    e(f's_mov_b32 {S(sT2)}, {F(64.0)}')

    side = {}

    def spread(ops, n0, n1):
        cnt = n1 - n0
        for i, o in enumerate(ops):
            side.setdefault(n0 + i * cnt // len(ops), []).append(o)
    spread(stats_ops, 18 * 2, 18 * 4)
    corr_end[0] = 18 * 4
    for gi in range(4):
        nd = grp_last[gi]
        span = grp_last[gi + 1] - nd
        ops = epi_ops(gi, 0) + epi_ops(gi, 1)
        spread(ops, nd + 2, nd + max(span, 8))

    def reads(n):
        ks, fb, p = order[n]
        if ks > barrier_passed[0]:
            assert not any(q[2] == 'dma' and q[3]['smin'] <= ks for q in pend), ('dma late', ks)
            k.wait_vm([f'st{s}' for s in range(ks + 1)])
            if not no_bar or ks == 0:
                e('s_barrier')
            barrier_passed[0] = ks
            if ks in (0, 1, 4, 8, main_ks):
                stamp()
        slot = ks % RING
        va = vA + 2 * p + (slot >> 2)
        off = (slot & 3) * 9216 + fb * 32
        b = wf + (n % WF) * 4
        if half_reads and n >= WF and n % 2:
            return
        if not no_lds or n < WF:
            if rd128:
                e(f'ds_read_b128 {WR(b,4)}, {V(vL16)} offset:{(off//1024)*1024}')
            else:
                e(f'ds_read_b64_tr_b16 {WR(b,2)}, {V(va)} offset:{off}')
                e(f'ds_read_b64_tr_b16 {WR(b+2,2)}, {V(va)} offset:{off+4608}')

    for n in range(PF):
        reads(n)
    if prio:
        e(f's_cmp_ge_u32 {S(sW)}, 4')
        e(f's_cbranch_scc0 L_{name}_np')
        e('s_setprio 1')
        k.label(f'L_{name}_np')
    for n in range(N):
        ks, fb, p = order[n]
        if n % rgroup == 0:
            for q in range(rgroup):
                if n + PF + q < N:
                    reads(n + PF + q)
        assert not any(q[2] == 'tok' and q[3][0] <= ks for q in pend), ('tok late', ks)
        ops = side.get(n, []) if not no_side else []
        h = (len(ops) + 1) // 2
        for tb in range(2):
            a0 = ACC(fb, p, tb)
            c = '0' if ks == 0 else V(a0, 4)
            e(f'v_mfma_f32_16x16x32_bf16 {V(a0,4)}, {WR(wf+(n%WF)*4,4)}, {TOK(ks,tb)}, {c}')
            for o in (ops[:h] if tb == 0 else ops[h:]):
                e(o)
        if n % vm_every == 0:
            pop_issue(n + 1, 1)
        if pf_loads and not pend and pf_at is not None and n >= pf_at:
            e('\n'.join(pf_loads)); pf_loads = []
            if code_pf:
                from pf import pf_code
                e(f's_lshr_b32 {S(sT2)}, s2, 3')
                e(f's_lshl_b32 {S(sT2)}, {S(sT2)}, 3')
                e(f's_add_u32 {S(sT2)}, {S(sT2)}, {S(sW)}')
                e(f's_and_b32 {S(sT2)}, {S(sT2)}, 31')
                pf_code(k, code_pf[0], code_pf[1], s_wg, sT2, sT, s_wg + 2, vdma)
    for n in sorted(side):
        if n >= N:
            for o in side[n]:
                e(o)
    assert not pend, pend
    stamp()
    for o in interleave(epi_ops(4, 0), epi_ops(4, 1)):
        e(o)
    if stamps:
        stamp()
        e('s_waitcnt vmcnt(0)')
        stamp()
        emit_stamp_dump(k, e, sStamp, nst, srdW, s_wg, sT, sW, tmp, int(stamps) - 1)
    k.label(f'L_{name}_end')
    e('s_endpgm')
    return k
```

```python
from asmb import *
from layout import *
from k4 import F, emit_stamp_dump

PP8 = PP + 64 * 4 * 4 * 8 * 1024


def build_k5c(name='k5_kernel', WF=8, PF=7, TF=12, stamps=False, pre_ks=3, DIST=4, BAR=2):
    assert PP8 + 64 * 4 * 4 * 1024 <= WS_USED
    k = Kernel(name)
    NKS = 36
    RING = 16
    k.lds = RING * 9216
    k.ns = 3
    s_wd = k.s(4, 4)
    s_ws = k.s(2, 2)
    srdW = k.s(4, 4); srdS = k.s(4, 4); srdO = k.s(4, 4)
    sW = k.s(); sM = k.s(); sN = k.s(); sS = k.s(); sT = k.s(); sT2 = k.s()
    sM0 = k.s(); sM8 = k.s(); sTok0 = k.s(); sTok1 = k.s(); sRow = k.s(); sRow2 = k.s(); sTile = k.s()
    sPub = k.s(); sPub8 = k.s(); sFl = k.s(); sH = k.s(); sOut = k.s()
    k.nv = 1
    vL16 = k.v(); vL8 = k.v()
    vA = k.v(5 * 3)
    vdma = k.v(6)
    acc = k.v(72, 4)
    hres = k.v(12, 2)
    tmp = k.v(64, 4)
    wf = k.a(WF * 4, 4)
    tok = k.a(TF * 8, 4)
    e = k.e
    sStamp = k.s(24, 2) if stamps else None
    nst = [0]

    def stamp():
        if stamps:
            e(f's_memtime {S(sStamp + 2*nst[0], 2)}'); e('s_waitcnt lgkmcnt(0)'); nst[0] += 1

    def ACC(fb, tb):
        return acc + (fb * 2 + tb) * 4
    e(f'''
    s_cmp_ge_u32 s2, 256
    s_cbranch_scc1 L_{name}_end
    s_load_dwordx4 {S(s_wd,4)}, s[0:1], {KA_WD}
    s_load_dwordx2 {S(s_ws,2)}, s[0:1], {KA_WS}
    v_lshrrev_b32 {V(tmp)}, 6, v0
    v_and_b32 v0, 63, v0
    v_readfirstlane_b32 {S(sW)}, {V(tmp)}
    v_lshlrev_b32 {V(vL16)}, 4, v0
    v_lshlrev_b32 {V(vL8)}, 3, v0
    s_and_b32 {S(sS)}, s2, 3
    s_bfe_u32 {S(sT)}, s2, 0x10002
    s_lshl_b32 {S(sM)}, {S(sT)}, 3
    s_bfe_u32 {S(sT)}, s2, 0x30003
    s_add_u32 {S(sM)}, {S(sM)}, {S(sT)}
    s_lshr_b32 {S(sN)}, s2, 6
    ''')
    stamp()
    if stamps:
        e(f's_memrealtime {S(sStamp+20,2)}')
    e(f'''
    s_lshl_b32 {S(sT)}, {S(sW)}, 6
    v_add_u32 {V(tmp)}, {S(sT)}, v0
    s_lshl_b32 {S(sT)}, {S(sW)}, 4
    v_add_u32 {V(tmp+3)}, {S(sT)}, v0
    s_lshl_b32 {S(sM8)}, {S(sW)}, 8
    s_lshl_b32 {S(sM0)}, {S(sW)}, 10
    s_mul_i32 {S(sRow)}, {S(sS)}, {1152*1152}
    s_mul_i32 {S(sT2)}, {S(sN)}, 288
    s_add_u32 {S(sRow)}, {S(sRow)}, {S(sT2)}
    s_mul_i32 {S(sTok0)}, {S(sS)}, {36*1024}
    s_lshl_b32 {S(sT)}, {S(sM)}, 2
    s_add_u32 {S(sT)}, {S(sT)}, {S(sW)}
    s_mul_i32 {S(sT)}, {S(sT)}, {2*144*1024}
    s_add_u32 {S(sTok0)}, {S(sTok0)}, {S(sT)}
    s_add_u32 {S(sTok0)}, {S(sTok0)}, {HH}
    s_add_u32 {S(sTok1)}, {S(sTok0)}, {144*1024}
    ''')

    def dma_voff(i):
        d = vdma + i
        return [f'v_add_u32 {V(tmp+1)}, {256*i}, {V(tmp)}' if i < 2 else f'v_add_u32 {V(tmp+1)}, 512, {V(tmp+3)}',
                f'v_mul_u32_u24 {V(tmp+2)}, 3641, {V(tmp+1)}',
                f'v_lshrrev_b32 {V(tmp+2)}, 16, {V(tmp+2)}',
                f'v_lshrrev_b32 {V(tmp+4)}, 4, {V(tmp+2)}',
                f'v_mul_u32_u24 {V(tmp+2)}, {1152-288}, {V(tmp+2)}',
                f'v_lshl_add_u32 {V(d)}, {V(tmp+1)}, 4, {V(tmp+2)}',
                f'v_mul_u32_u24 {V(tmp+4)}, {128*1152}, {V(tmp+4)}',
                f'v_add_u32 {V(d+3)}, {V(d)}, {V(tmp+4)}']
    for i in range(3):
        e('\n'.join(dma_voff(i)))
    e(f'''
    s_waitcnt lgkmcnt(0)
    s_mov_b32 {S(srdW)}, {S(s_wd)}
    s_mov_b32 {S(srdW+1)}, {S(s_wd+1)}
    s_mov_b32 {S(srdW+2)}, {4608*1152}
    s_mov_b32 {S(srdW+3)}, 0x00020000
    s_mov_b32 {S(srdS)}, {S(s_ws)}
    s_mov_b32 {S(srdS+1)}, {S(s_ws+1)}
    s_mov_b32 {S(srdS+2)}, {WS_USED}
    s_mov_b32 {S(srdS+3)}, 0x00020000
    s_mov_b32 {S(srdO)}, {S(s_wd+2)}
    s_mov_b32 {S(srdO+1)}, {S(s_wd+3)}
    s_mov_b32 {S(srdO+2)}, {2048*1152}
    s_mov_b32 {S(srdO+3)}, 0x00020000
    ''')
    order = [(ks, fb) for ks in range(NKS) for fb in range(9)]
    N = len(order)
    pend = []
    for ks in range(NKS):
        for i in range(3):
            pend.append(((ks // BAR) * BAR * 9 - PF, 0, 'dma', (ks, i)))
        for tb in range(2):
            pend.append((ks * 9, 1 + tb, 'tok', (ks, tb)))
    pend.sort(key=lambda x: (x[0], x[1], x[3]))
    bar_ks = [-1]
    tok_sbase = [0, 0]

    def row0(ks):
        P, i = divmod(ks, 9)
        return 288 * P + (32 * i if i < 4 else 144 + 32 * (i - 4) if i < 8 else 128)

    def eligible(p, n):
        ks = p[3][0]
        if ks * 9 > max(n, 0) + DIST * 9:
            return False
        if p[2] == 'dma':
            return ks < RING or bar_ks[0] - 2 * BAR >= ks - RING
        return ks < TF or (ks - TF) * 9 + 8 < n

    def issue(p):
        if p[2] == 'dma':
            ks, i = p[3]
            slot = ks % RING
            if i < 2:
                e(f's_add_u32 m0, {S(sM0)}, {slot * 9216 + i * 4096}')
            else:
                e(f's_add_u32 m0, {S(sM8)}, {slot * 9216 + 8192}')
            if i == 0:
                e(f's_add_u32 {S(sRow2)}, {S(sRow)}, {row0(ks)*1152}')
            if i == 2:
                e('s_mov_b64 exec, 0xffff')
            vv = vdma + i + (3 if ks % 9 == 8 else 0)
            e(f'buffer_load_dwordx4 {V(vv)}, {S(srdW,4)}, {S(sRow2)} offen lds', tag=f'st{ks}')
            if i == 2:
                e('s_mov_b64 exec, -1')
        else:
            ks, tb = p[3]
            sT_ = sTok1 if tb else sTok0
            while ks - tok_sbase[tb] >= 4:
                e(f's_add_u32 {S(sT_)}, {S(sT_)}, 4096'); tok_sbase[tb] += 4
            e(f'buffer_load_dwordx4 {A(tok + (ks % TF) * 8 + 4 * tb, 4)}, {V(vL16)}, {S(srdS,4)}, {S(sT_)} offen offset:{(ks - tok_sbase[tb]) * 1024}')

    def pop_issue(n, maxn=1):
        c = 0
        while pend and c < maxn:
            for q, p in enumerate(pend):
                if eligible(p, n):
                    if any(pp[2] == p[2] for pp in pend[:q]):
                        continue
                    issue(p); pend.pop(q); c += 1
                    break
            else:
                break
    pop_issue(-1, 5 * pre_ks)
    e(f'''
    v_lshrrev_b32 {V(tmp+4)}, 2, v0
    v_mul_u32_u24 {V(tmp+6)}, 288, {V(tmp+4)}
    v_and_b32 {V(tmp+5)}, 3, v0
    v_lshl_add_u32 {V(tmp+6)}, {V(tmp+5)}, 3, {V(tmp+6)}
    ''')
    for p in range(5):
        if p < 4:
            e(f's_xor_b32 {S(sT)}, {S(sS)}, {p}')
            e(f's_lshl_b32 {S(sT)}, {S(sT)}, 6')
            e(f'v_add_u32 {V(vA+3*p)}, {S(sT)}, {V(tmp+6)}')
        else:
            e(f'v_add_u32 {V(vA+3*p)}, 256, {V(tmp+6)}')
        e(f'v_add_u32 {V(vA+3*p+1)}, {6*9216}, {V(vA+3*p)}')
        e(f'v_add_u32 {V(vA+3*p+2)}, {12*9216}, {V(vA+3*p)}')
    e(f'''
    s_lshl_b32 {S(sTile)}, {S(sM)}, 2
    s_add_u32 {S(sTile)}, {S(sTile)}, {S(sN)}
    s_lshl_b32 {S(sFl)}, {S(sTile)}, 7
    s_add_u32 {S(sFl)}, {S(sFl)}, {FL}
    s_lshl_b32 {S(sPub)}, {S(sTile)}, 17
    s_lshl_b32 {S(sT)}, {S(sW)}, 11
    s_add_u32 {S(sPub)}, {S(sPub)}, {S(sT)}
    s_add_u32 {S(sPub)}, {S(sPub)}, {PP}
    s_lshl_b32 {S(sPub8)}, {S(sTile)}, 14
    s_lshl_b32 {S(sT)}, {S(sW)}, 12
    s_add_u32 {S(sPub8)}, {S(sPub8)}, {S(sT)}
    s_add_u32 {S(sPub8)}, {S(sPub8)}, {PP8}
    s_lshl_b32 {S(sT)}, {S(sM)}, 3
    s_lshl_b32 {S(sT2)}, {S(sW)}, 1
    s_add_u32 {S(sT)}, {S(sT)}, {S(sT2)}
    s_mul_i32 {S(sH)}, {S(sT)}, {18*1024}
    s_add_u32 {S(sH)}, {S(sH)}, {HF}
    s_mul_i32 {S(sOut)}, {S(sT)}, {16*1152}
    s_mul_i32 {S(sT2)}, {S(sN)}, 288
    s_add_u32 {S(sOut)}, {S(sOut)}, {S(sT2)}
    ''')

    def reads(n):
        ks, fb = order[n]
        if ks > bar_ks[0]:
            hi = min(ks + BAR - 1, NKS - 1)
            assert not any(q[2] == 'dma' and q[3][0] <= hi for q in pend), ('dma late', ks)
            k.wait_vm([f'st{s}' for s in range(hi + 1)])
            e('s_barrier')
            bar_ks[0] = hi
            if ks in (0, 2, 12, 24):
                stamp()
        slot = ks % RING
        va = vA + 3 * (fb >> 1) + slot // 6
        off = (slot % 6) * 9216 + (fb & 1) * 32
        b = wf + (n % WF) * 4
        e(f'ds_read_b64_tr_b16 {A(b,2)}, {V(va)} offset:{off}')
        e(f'ds_read_b64_tr_b16 {A(b+2,2)}, {V(va)} offset:{off+4608}')

    def h_addr(blk_sgpr_expr):
        pass

    def h_loads():
        for b in range(3):
            if b == 2:
                e(f's_cmp_lg_u32 {S(sW)}, {S(sS)}')
                e(f's_cbranch_scc1 L_{name}_noh')
                k.opt(True)
            e(f's_mul_i32 {S(sT)}, {S(sN)}, 9')
            if b < 2:
                e(f's_lshl_b32 {S(sT2)}, {S(sS)}, 1')
                e(f's_add_u32 {S(sT)}, {S(sT)}, {S(sT2)}')
                if b:
                    e(f's_add_u32 {S(sT)}, {S(sT)}, 1')
            else:
                e(f's_add_u32 {S(sT)}, {S(sT)}, 8')
            e(f's_lshr_b32 {S(sT2)}, {S(sT)}, 1')
            e(f's_lshl_b32 {S(sT2)}, {S(sT2)}, 10')
            e(f's_and_b32 {S(sT)}, {S(sT)}, 1')
            e(f's_lshl_b32 {S(sT)}, {S(sT)}, 3')
            e(f's_add_u32 {S(sT)}, {S(sT)}, {S(sT2)}')
            e(f's_add_u32 {S(sT)}, {S(sT)}, {S(sH)}')
            e(f's_add_u32 {S(sT2)}, {S(sT)}, {18*1024}')
            e(f'buffer_load_dwordx2 {V(hres+4*b,2)}, {V(vL16)}, {S(srdS,4)}, {S(sT)} offen')
            e(f'buffer_load_dwordx2 {V(hres+4*b+2,2)}, {V(vL16)}, {S(srdS,4)}, {S(sT2)} offen')
            if b == 2:
                k.opt(False)
                k.label(f'L_{name}_noh')

    hl_done = [False]
    for n in range(PF):
        reads(n)
    for n in range(N):
        ks, fb = order[n]
        if n + PF < N:
            reads(n + PF)
        assert not any(q[2] == 'tok' and q[3][0] <= ks for q in pend), ('tok late', ks)
        for tb in range(2):
            a0 = ACC(fb, tb)
            c = '0' if ks == 0 else V(a0, 4)
            e(f'v_mfma_f32_16x16x32_bf16 {V(a0,4)}, {A(wf+(n%WF)*4,4)}, {A(tok+(ks%TF)*8+4*tb,4)}, {c}')
        pop_issue(n + 1, 1)
        if not pend and not hl_done[0]:
            h_loads(); hl_done[0] = True
    assert not pend
    stamp()
    pk = tmp
    for p in range(1, 4):
        e(f's_xor_b32 {S(sT)}, {S(sS)}, {p}')
        e(f's_lshl_b32 {S(sT)}, {S(sT)}, 2')
        e(f's_add_u32 {S(sT)}, {S(sT)}, {S(sS)}')
        e(f's_lshl_b32 {S(sT)}, {S(sT)}, 13')
        e(f's_add_u32 {S(sT)}, {S(sT)}, {S(sPub)}')
        for tb in range(2):
            d = pk + ((p - 1) * 2 + tb) * 4
            for hb in range(2):
                a0 = ACC(2 * p + hb, tb)
                e(f'v_cvt_pk_bf16_f32 {V(d+2*hb)}, {V(a0)}, {V(a0+1)}')
                e(f'v_cvt_pk_bf16_f32 {V(d+2*hb+1)}, {V(a0+2)}, {V(a0+3)}')
            e(f'buffer_store_dwordx4 {V(d,4)}, {V(vL16)}, {S(srdS,4)}, {S(sT)} offen offset:{tb*1024} sc1')
    e(f's_cmp_eq_u32 {S(sW)}, {S(sS)}')
    e(f's_cbranch_scc1 L_{name}_np8')
    k.opt(True)
    e(f's_lshl_b32 {S(sT)}, {S(sS)}, 10')
    e(f's_add_u32 {S(sT)}, {S(sT)}, {S(sPub8)}')
    for tb in range(2):
        d = pk + 24 + 2 * tb
        a0 = ACC(8, tb)
        e(f'v_cvt_pk_bf16_f32 {V(d)}, {V(a0)}, {V(a0+1)}')
        e(f'v_cvt_pk_bf16_f32 {V(d+1)}, {V(a0+2)}, {V(a0+3)}')
        e(f'buffer_store_dwordx2 {V(d,2)}, {V(vL8)}, {S(srdS,4)}, {S(sT)} offen offset:{tb*512} sc1')
    k.opt(False)
    k.label(f'L_{name}_np8')
    t2 = tmp + 48
    RS = 112
    e(f'''
    v_and_b32 {V(t2)}, 15, v0
    v_mul_u32_u24 {V(t2)}, {RS}, {V(t2)}
    v_lshrrev_b32 {V(t2+1)}, 4, v0
    v_lshl_add_u32 {V(t2)}, {V(t2+1)}, 3, {V(t2)}
    s_lshl_b32 {S(sT)}, {S(sW)}, 12
    v_add_u32 {V(t2)}, {S(sT)}, {V(t2)}
    v_lshrrev_b32 {V(t2+1)}, 2, v0
    v_and_b32 {V(t2+2)}, 3, v0
    v_mul_u32_u24 {V(t2+3)}, {RS}, {V(t2+1)}
    v_lshl_add_u32 {V(t2+3)}, {V(t2+2)}, 4, {V(t2+3)}
    v_add_u32 {V(t2+3)}, {S(sT)}, {V(t2+3)}
    v_mul_u32_u24 {V(t2+4)}, 1152, {V(t2+1)}
    v_lshl_add_u32 {V(t2+4)}, {V(t2+2)}, 4, {V(t2+4)}
    v_lshrrev_b32 {V(t2+1)}, 1, v0
    v_and_b32 {V(t2+2)}, 1, v0
    v_mul_u32_u24 {V(t2+5)}, {RS}, {V(t2+1)}
    v_lshl_add_u32 {V(t2+5)}, {V(t2+2)}, 4, {V(t2+5)}
    v_add_u32 {V(t2+5)}, {S(sT)}, {V(t2+5)}
    v_mul_u32_u24 {V(t2+6)}, 1152, {V(t2+1)}
    v_lshl_add_u32 {V(t2+6)}, {V(t2+2)}, 4, {V(t2+6)}
    v_mov_b32 {V(t2+8)}, 1
    v_mov_b32 {V(t2+9)}, 0
    s_waitcnt vmcnt(0)
    s_barrier
    s_cmp_lg_u32 {S(sW)}, 0
    s_cbranch_scc1 L_{name}_wait
    s_lshl_b32 {S(sT)}, {S(sS)}, 2
    s_add_u32 {S(sT)}, {S(sT)}, {S(sFl)}
    s_mov_b64 exec, 1
    buffer_store_dword {V(t2+8)}, {V(t2+9)}, {S(srdS,4)}, {S(sT)} offen sc1
    s_mov_b64 exec, -1
    ''')
    k.label(f'L_{name}_spin')
    e(f'''
    buffer_load_dwordx4 {V(t2+12,4)}, {V(t2+9)}, {S(srdS,4)}, {S(sFl)} offen sc1
    s_waitcnt vmcnt(0)
    v_and_b32 {V(t2+12)}, {V(t2+12)}, {V(t2+13)}
    v_and_b32 {V(t2+14)}, {V(t2+14)}, {V(t2+15)}
    v_and_b32 {V(t2+12)}, {V(t2+12)}, {V(t2+14)}
    v_readfirstlane_b32 {S(sT)}, {V(t2+12)}
    s_cmp_eq_u32 {S(sT)}, 1
    s_cbranch_scc0 L_{name}_spin
    ''')
    k.label(f'L_{name}_wait')
    e('s_barrier')
    stamp()
    ld = tmp
    for d in range(1, 4):
        e(f'''
        s_xor_b32 {S(sT)}, {S(sS)}, {d}
        s_lshl_b32 {S(sT2)}, {S(sS)}, 2
        s_add_u32 {S(sT)}, {S(sT)}, {S(sT2)}
        s_lshl_b32 {S(sT)}, {S(sT)}, 13
        s_add_u32 {S(sT)}, {S(sT)}, {S(sPub)}
        ''')
        for tb in range(2):
            e(f'buffer_load_dwordx4 {V(ld+((d-1)*2+tb)*4,4)}, {V(vL16)}, {S(srdS,4)}, {S(sT)} offen offset:{tb*1024} sc1')
    e(f's_cmp_lg_u32 {S(sW)}, {S(sS)}')
    e(f's_cbranch_scc1 L_{name}_ng8')
    k.opt(True)
    for d in range(1, 4):
        e(f's_xor_b32 {S(sT)}, {S(sS)}, {d}')
        e(f's_lshl_b32 {S(sT)}, {S(sT)}, 10')
        e(f's_add_u32 {S(sT)}, {S(sT)}, {S(sPub8)}')
        for tb in range(2):
            e(f'buffer_load_dwordx2 {V(ld+24+((d-1)*2+tb)*2,2)}, {V(vL8)}, {S(srdS,4)}, {S(sT)} offen offset:{tb*512} sc1')
    k.opt(False)
    k.label(f'L_{name}_ng8')
    u0, u1 = t2 + 10, t2 + 11

    def finish_unit(a0, srcs, hr, dst):
        o = []
        for sr in srcs:
            for q in range(2):
                o += [f'v_lshlrev_b32 {V(u0)}, 16, {V(sr+q)}', f'v_and_b32 {V(u1)}, 0xffff0000, {V(sr+q)}',
                      f'v_add_f32 {V(a0+2*q)}, {V(a0+2*q)}, {V(u0)}', f'v_add_f32 {V(a0+2*q+1)}, {V(a0+2*q+1)}, {V(u1)}']
        for q in range(2):
            o += [f'v_cvt_pk_bf16_f32 {V(dst+q)}, {V(a0+2*q)}, {V(a0+2*q+1)}',
                  f'v_lshlrev_b32 {V(a0+2*q)}, 16, {V(dst+q)}', f'v_and_b32 {V(a0+2*q+1)}, 0xffff0000, {V(dst+q)}',
                  f'v_lshlrev_b32 {V(u0)}, 16, {V(hr+q)}', f'v_and_b32 {V(u1)}, 0xffff0000, {V(hr+q)}',
                  f'v_add_f32 {V(a0+2*q)}, {V(a0+2*q)}, {V(u0)}', f'v_add_f32 {V(a0+2*q+1)}, {V(a0+2*q+1)}, {V(u1)}',
                  f'v_cvt_pk_bf16_f32 {V(dst+q)}, {V(a0+2*q)}, {V(a0+2*q+1)}']
        return o
    res = ACC(2, 0)
    for tb in range(2):
        for hb in range(2):
            dst = res + (tb * 2 + hb) * 2
            e('\n'.join(finish_unit(ACC(hb, tb), [ld + ((d - 1) * 2 + tb) * 4 + 2 * hb for d in range(1, 4)], hres + 4 * hb + 2 * tb, dst)))
            e(f'ds_write_b64 {V(t2)}, {V(dst,2)} offset:{tb*16*RS + hb*32}')
    e(f's_lshl_b32 {S(sT)}, {S(sS)}, 6')
    e(f's_add_u32 {S(sT)}, {S(sT)}, {S(sOut)}')
    e(f's_add_u32 {S(sT2)}, {S(sT)}, {16*1152}')
    e('s_waitcnt lgkmcnt(0)')
    e(f'ds_read_b128 {V(res+8,4)}, {V(t2+3)}')
    e(f'ds_read_b128 {V(res+12,4)}, {V(t2+3)} offset:{16*RS}')
    e(f'buffer_store_dwordx4 {V(res+8,4)}, {V(t2+4)}, {S(srdO,4)}, {S(sT)} offen')
    e(f'buffer_store_dwordx4 {V(res+12,4)}, {V(t2+4)}, {S(srdO,4)}, {S(sT2)} offen')
    e(f's_cmp_lg_u32 {S(sW)}, {S(sS)}')
    e(f's_cbranch_scc1 L_{name}_done')
    e('s_waitcnt vmcnt(2)')
    for tb in range(2):
        dst = res + 16 + 2 * tb
        e('\n'.join(finish_unit(ACC(8, tb), [ld + 24 + ((d - 1) * 2 + tb) * 2 for d in range(1, 4)], hres + 8 + 2 * tb, dst)))
        e(f'ds_write_b64 {V(t2)}, {V(dst,2)} offset:{tb*16*RS + 64}')
    e('s_waitcnt lgkmcnt(0)')
    e(f'ds_read_b128 {V(res+20,4)}, {V(t2+5)} offset:64')
    e(f'buffer_store_dwordx4 {V(res+20,4)}, {V(t2+6)}, {S(srdO,4)}, {S(sOut)} offen offset:256')
    k.label(f'L_{name}_done')
    if stamps:
        stamp()
        e('s_waitcnt vmcnt(0)')
        stamp()
        emit_stamp_dump(k, e, sStamp, nst, srdW, s_wd, sT, sW, tmp, int(stamps) - 1)
    k.label(f'L_{name}_end')
    e('s_endpgm')
    return k
```

```python
from asmb import *
from layout import *
from k4 import F, emit_stamp_dump

PP8 = PP + 64 * 4 * 4 * 8 * 1024


def build_k5p(name='k5_kernel', WF=8, PF=7, stamps=False, pre_ks=3, DIST=4, BAR=2, flag_at=0.6, rot=0):
    assert PP8 + 64 * 4 * 4 * 1024 <= WS_USED
    k = Kernel(name)
    NKS = 36
    RING = 12
    RSZ = 7168
    KB = RING * RSZ
    k.lds = KB + 36 * 2048
    k.ns = 3
    s_wd = k.s(4, 4)
    s_ws = k.s(2, 2)
    srdW = k.s(4, 4); srdS = k.s(4, 4); srdO = k.s(4, 4)
    sW = k.s(); sM = k.s(); sN = k.s(); sS = k.s(); sT = k.s(); sT2 = k.s()
    sM0 = k.s(); sM8 = k.s(); sTok0 = k.s(); sTok1 = k.s(); sRow = k.s(); sRow2 = k.s(); sTile = k.s()
    sRowP = k.s(); sTokP = k.s(2); sRot = k.s()
    sPub = k.s(); sPub8 = k.s(); sFl = k.s(); sH = k.s(); sOut = k.s()
    k.nv = 1
    vL16 = k.v(); vL8 = k.v()
    vA = k.v(2)
    vK = k.v(4)
    vdma = k.v(6)
    acc = k.v(72, 4)
    hres = k.v(12, 2)
    tmp = k.v(64, 4)
    tokV = k.v(64, 4)
    wf = k.a(WF * 4, 4)
    tokA = k.a(224, 4)

    def TOK(ks, tb):
        return A(tokA + ks * 8 + 4 * tb, 4) if ks < 28 else V(tokV + (ks - 28) * 8 + 4 * tb, 4)
    e = k.e
    sStamp = k.s(24, 2) if stamps else None
    nst = [0]

    def stamp():
        if stamps:
            e(f's_memtime {S(sStamp + 2*nst[0], 2)}'); e('s_waitcnt lgkmcnt(0)'); nst[0] += 1

    def ACC(fb, tb):
        return acc + (fb * 2 + tb) * 4
    e(f'''
    s_cmp_ge_u32 s2, 256
    s_cbranch_scc1 L_{name}_end
    s_load_dwordx4 {S(s_wd,4)}, s[0:1], {KA_WD}
    s_load_dwordx2 {S(s_ws,2)}, s[0:1], {KA_WS}
    v_lshrrev_b32 {V(tmp)}, 6, v0
    v_and_b32 v0, 63, v0
    v_readfirstlane_b32 {S(sW)}, {V(tmp)}
    v_lshlrev_b32 {V(vL16)}, 4, v0
    v_lshlrev_b32 {V(vL8)}, 3, v0
    s_and_b32 {S(sS)}, s2, 3
    s_bfe_u32 {S(sT)}, s2, 0x10002
    s_lshl_b32 {S(sM)}, {S(sT)}, 3
    s_bfe_u32 {S(sT)}, s2, 0x30003
    s_add_u32 {S(sM)}, {S(sM)}, {S(sT)}
    s_lshr_b32 {S(sN)}, s2, 6
    ''')
    stamp()
    if stamps:
        e(f's_memrealtime {S(sStamp+20,2)}')
    e(f'''
    s_mul_i32 {S(sT)}, {S(sW)}, 112
    v_add_u32 {V(tmp)}, {S(sT)}, v0
    s_lshl_b32 {S(sT)}, {S(sW)}, 5
    v_add_u32 {V(tmp+3)}, {S(sT)}, v0
    s_lshl_b32 {S(sM8)}, {S(sW)}, 9
    s_add_u32 {S(sM8)}, {S(sM8)}, {KB}
    s_mul_i32 {S(sM0)}, {S(sW)}, 1792
    s_mul_i32 {S(sRow)}, {S(sS)}, {1152*1152}
    s_mul_i32 {S(sT2)}, {S(sN)}, 288
    s_add_u32 {S(sRow)}, {S(sRow)}, {S(sT2)}
    s_mul_i32 {S(sTok0)}, {S(sS)}, {36*1024}
    s_lshl_b32 {S(sT)}, {S(sM)}, 2
    s_add_u32 {S(sT)}, {S(sT)}, {S(sW)}
    s_mul_i32 {S(sT)}, {S(sT)}, {2*144*1024}
    s_add_u32 {S(sTok0)}, {S(sTok0)}, {S(sT)}
    s_add_u32 {S(sTok0)}, {S(sTok0)}, {HH}
    s_add_u32 {S(sTok1)}, {S(sTok0)}, {144*1024}
    ''')

    def dma_voff(i):
        d = vdma + i
        if i < 2:
            o = [f'v_add_u32 {V(tmp+1)}, {64*i}, {V(tmp)}',
                 f'v_mul_u32_u24 {V(tmp+2)}, 4682, {V(tmp+1)}',
                 f'v_lshrrev_b32 {V(tmp+2)}, 16, {V(tmp+2)}',
                 f'v_mul_u32_u24 {V(tmp+4)}, 14, {V(tmp+2)}',
                 f'v_sub_u32 {V(tmp+1)}, {V(tmp+1)}, {V(tmp+4)}',
                 f'v_lshrrev_b32 {V(tmp+4)}, 2, {V(tmp+1)}',
                 f'v_add_u32 {V(tmp+4)}, 1, {V(tmp+4)}',
                 f'v_xor_b32 {V(tmp+5)}, {S(sS)}, {V(tmp+4)}',
                 f'v_cmp_gt_u32 vcc, 12, {V(tmp+1)}',
                 f'v_and_b32 {V(tmp+1)}, 3, {V(tmp+1)}',
                 f'v_cndmask_b32 {V(tmp+4)}, {V(tmp+4)}, {V(tmp+5)}, vcc',
                 f'v_lshlrev_b32 {V(tmp+4)}, 6, {V(tmp+4)}',
                 f'v_lshl_add_u32 {V(tmp+4)}, {V(tmp+1)}, 4, {V(tmp+4)}']
        else:
            o = [f'v_lshrrev_b32 {V(tmp+2)}, 2, {V(tmp+3)}',
                 f'v_bfe_u32 {V(tmp+4)}, {V(tmp+3)}, 1, 1',
                 f'v_bfe_u32 {V(tmp+5)}, {V(tmp+3)}, 4, 1',
                 f'v_xor_b32 {V(tmp+4)}, {V(tmp+4)}, {V(tmp+5)}',
                 f'v_lshlrev_b32 {V(tmp+4)}, 5, {V(tmp+4)}',
                 f'v_and_b32 {V(tmp+5)}, 1, {V(tmp+3)}',
                 f'v_lshl_add_u32 {V(tmp+4)}, {V(tmp+5)}, 4, {V(tmp+4)}',
                 f's_lshl_b32 {S(sT)}, {S(sS)}, 6',
                 f'v_add_u32 {V(tmp+4)}, {S(sT)}, {V(tmp+4)}']
        o += [f'v_mul_u32_u24 {V(tmp+5)}, 1152, {V(tmp+2)}',
              f'v_add_u32 {V(d)}, {V(tmp+4)}, {V(tmp+5)}',
              f'v_lshrrev_b32 {V(tmp+4)}, 4, {V(tmp+2)}',
              f'v_mul_u32_u24 {V(tmp+4)}, {128*1152}, {V(tmp+4)}',
              f'v_add_u32 {V(d+3)}, {V(d)}, {V(tmp+4)}']
        return o
    for i in range(3):
        e('\n'.join(dma_voff(i)))
    e(f'''
    s_waitcnt lgkmcnt(0)
    s_mov_b32 {S(srdW)}, {S(s_wd)}
    s_mov_b32 {S(srdW+1)}, {S(s_wd+1)}
    s_mov_b32 {S(srdW+2)}, {4608*1152}
    s_mov_b32 {S(srdW+3)}, 0x00020000
    s_mov_b32 {S(srdS)}, {S(s_ws)}
    s_mov_b32 {S(srdS+1)}, {S(s_ws+1)}
    s_mov_b32 {S(srdS+2)}, {WS_USED}
    s_mov_b32 {S(srdS+3)}, 0x00020000
    s_mov_b32 {S(srdO)}, {S(s_wd+2)}
    s_mov_b32 {S(srdO+1)}, {S(s_wd+3)}
    s_mov_b32 {S(srdO+2)}, {2048*1152}
    s_mov_b32 {S(srdO+3)}, 0x00020000
    ''')
    order = [(ks, fb) for ks in range(NKS) for fb in range(2, 9)]
    N1 = len(order)
    order += [(ks, fb) for ks in range(NKS) for fb in range(2)]
    N = len(order)
    pend = []
    for ks in range(NKS):
        for i in range(3):
            pend.append(((ks // BAR) * BAR * 7 - PF, 0, 'dma', (ks, i)))
        for tb in range(2):
            pend.append((ks * 7, 1 + tb, 'tok', (ks, tb)))
    pend.sort(key=lambda x: (x[0], x[1], x[3]))
    bar_ks = [-1]
    tok_sbase = [0, 0]

    def row0(ks):
        P, i = divmod(ks, 9)
        return (32 * i if i < 4 else 144 + 32 * (i - 4) if i < 8 else 128)

    def eligible(p, n):
        ks = p[3][0]
        if ks * 7 > max(n, 0) + DIST * 7:
            return False
        if p[2] == 'dma':
            return ks < RING or bar_ks[0] - 2 * BAR >= ks - RING
        return True

    def issue(p):
        if p[2] == 'dma':
            ks, i = p[3]
            slot = ks % RING
            if i < 2:
                e(f's_add_u32 m0, {S(sM0)}, {slot * RSZ + i * 1024}')
            else:
                e(f's_add_u32 m0, {S(sM8)}, {ks * 2048}')
            if i == 0:
                if ks % 9 == 0:
                    e(f's_add_u32 {S(sRowP)}, {S(sRot)}, {ks//9}')
                    e(f's_and_b32 {S(sRowP)}, {S(sRowP)}, 3')
                    e(f's_mul_i32 {S(sRowP)}, {S(sRowP)}, {288*1152}')
                    e(f's_add_u32 {S(sRowP)}, {S(sRowP)}, {S(sRow)}')
                e(f's_add_u32 {S(sRow2)}, {S(sRowP)}, {row0(ks)*1152}')
            if i == 1:
                e('s_bfm_b64 exec, 48, 0')
            if i == 2:
                e('s_mov_b64 exec, 0xffffffff')
            vv = vdma + i + (3 if ks % 9 == 8 else 0)
            e(f'buffer_load_dwordx4 {V(vv)}, {S(srdW,4)}, {S(sRow2)} offen lds', tag=f'st{ks}')
            if i >= 1:
                e('s_mov_b64 exec, -1')
        else:
            ks, tb = p[3]
            sT_ = sTok1 if tb else sTok0
            sP_ = sTokP + tb
            i = ks % 9
            if i == 0:
                e(f's_add_u32 {S(sP_)}, {S(sRot)}, {ks//9}')
                e(f's_and_b32 {S(sP_)}, {S(sP_)}, 3')
                e(f's_mul_i32 {S(sP_)}, {S(sP_)}, {9*1024}')
                e(f's_add_u32 {S(sP_)}, {S(sP_)}, {S(sT_)}')
            elif i % 4 == 0:
                e(f's_add_u32 {S(sP_)}, {S(sP_)}, 4096')
            e(f'buffer_load_dwordx4 {TOK(ks, tb)}, {V(vL16)}, {S(srdS,4)}, {S(sP_)} offen offset:{(i % 4) * 1024}')

    def pop_issue(n, maxn=1):
        c = 0
        while pend and c < maxn:
            for q, p in enumerate(pend):
                if eligible(p, n):
                    if any(pp[2] == p[2] for pp in pend[:q]):
                        continue
                    issue(p); pend.pop(q); c += 1
                    break
            else:
                break
    if rot == 1:
        e(f's_mov_b32 {S(sRot)}, {S(sN)}')
    elif rot == 2:
        e(f's_add_u32 {S(sRot)}, {S(sN)}, {S(sM)}')
    else:
        e(f's_mov_b32 {S(sRot)}, 0')
    pop_issue(-1, 5 * pre_ks)
    e(f'''
    v_lshrrev_b32 {V(tmp+4)}, 2, v0
    v_mul_u32_u24 {V(vA)}, 224, {V(tmp+4)}
    v_and_b32 {V(tmp+5)}, 3, v0
    v_lshl_add_u32 {V(vA)}, {V(tmp+5)}, 3, {V(vA)}
    v_add_u32 {V(vA+1)}, {6*RSZ}, {V(vA)}
    v_lshlrev_b32 {V(tmp+6)}, 6, {V(tmp+4)}
    v_lshl_add_u32 {V(tmp+6)}, {V(tmp+5)}, 3, {V(tmp+6)}
    v_add_u32 {V(tmp+6)}, {KB}, {V(tmp+6)}
    v_bfe_u32 {V(tmp+5)}, v0, 4, 1
    v_lshl_add_u32 {V(vK)}, {V(tmp+5)}, 5, {V(tmp+6)}
    v_xor_b32 {V(tmp+5)}, 1, {V(tmp+5)}
    v_lshl_add_u32 {V(vK+2)}, {V(tmp+5)}, 5, {V(tmp+6)}
    v_add_u32 {V(vK+1)}, {18*2048}, {V(vK)}
    v_add_u32 {V(vK+3)}, {18*2048}, {V(vK+2)}
    ''')
    e(f'''
    s_lshl_b32 {S(sTile)}, {S(sM)}, 2
    s_add_u32 {S(sTile)}, {S(sTile)}, {S(sN)}
    s_lshl_b32 {S(sFl)}, {S(sTile)}, 7
    s_add_u32 {S(sFl)}, {S(sFl)}, {FL}
    s_lshl_b32 {S(sPub)}, {S(sTile)}, 17
    s_lshl_b32 {S(sT)}, {S(sW)}, 11
    s_add_u32 {S(sPub)}, {S(sPub)}, {S(sT)}
    s_add_u32 {S(sPub)}, {S(sPub)}, {PP}
    s_lshl_b32 {S(sPub8)}, {S(sTile)}, 14
    s_lshl_b32 {S(sT)}, {S(sW)}, 12
    s_add_u32 {S(sPub8)}, {S(sPub8)}, {S(sT)}
    s_add_u32 {S(sPub8)}, {S(sPub8)}, {PP8}
    s_lshl_b32 {S(sT)}, {S(sM)}, 3
    s_lshl_b32 {S(sT2)}, {S(sW)}, 1
    s_add_u32 {S(sT)}, {S(sT)}, {S(sT2)}
    s_mul_i32 {S(sH)}, {S(sT)}, {18*1024}
    s_add_u32 {S(sH)}, {S(sH)}, {HF}
    s_mul_i32 {S(sOut)}, {S(sT)}, {16*1152}
    s_mul_i32 {S(sT2)}, {S(sN)}, 288
    s_add_u32 {S(sOut)}, {S(sOut)}, {S(sT2)}
    ''')

    def reads(n):
        ks, fb = order[n]
        if ks > bar_ks[0]:
            hi = min(ks + BAR - 1, NKS - 1)
            assert not any(q[2] == 'dma' and q[3][0] <= hi for q in pend), ('dma late', ks)
            k.wait_vm([f'st{s}' for s in range(hi + 1)])
            e('s_barrier')
            bar_ks[0] = hi
            if ks in (0, 2, 12, 24):
                stamp()
        slot = ks % RING
        if fb >= 2:
            va = vA + slot // 6
            off = (slot % 6) * RSZ + (fb - 2) * 32
            sec = 16 * 224
        else:
            va = vK + 2 * fb + ks // 18
            off = (ks % 18) * 2048
            sec = 1024
        b = wf + (n % WF) * 4
        e(f'ds_read_b64_tr_b16 {A(b,2)}, {V(va)} offset:{off}')
        e(f'ds_read_b64_tr_b16 {A(b+2,2)}, {V(va)} offset:{off+sec}')

    def h_addr(blk_sgpr_expr):
        pass

    def h_loads():
        for b in range(3):
            if b == 2:
                e(f's_cmp_lg_u32 {S(sW)}, {S(sS)}')
                e(f's_cbranch_scc1 L_{name}_noh')
                k.opt(True)
            e(f's_mul_i32 {S(sT)}, {S(sN)}, 9')
            if b < 2:
                e(f's_lshl_b32 {S(sT2)}, {S(sS)}, 1')
                e(f's_add_u32 {S(sT)}, {S(sT)}, {S(sT2)}')
                if b:
                    e(f's_add_u32 {S(sT)}, {S(sT)}, 1')
            else:
                e(f's_add_u32 {S(sT)}, {S(sT)}, 8')
            e(f's_lshr_b32 {S(sT2)}, {S(sT)}, 1')
            e(f's_lshl_b32 {S(sT2)}, {S(sT2)}, 10')
            e(f's_and_b32 {S(sT)}, {S(sT)}, 1')
            e(f's_lshl_b32 {S(sT)}, {S(sT)}, 3')
            e(f's_add_u32 {S(sT)}, {S(sT)}, {S(sT2)}')
            e(f's_add_u32 {S(sT)}, {S(sT)}, {S(sH)}')
            e(f's_add_u32 {S(sT2)}, {S(sT)}, {18*1024}')
            e(f'buffer_load_dwordx2 {V(hres+4*b,2)}, {V(vL16)}, {S(srdS,4)}, {S(sT)} offen')
            e(f'buffer_load_dwordx2 {V(hres+4*b+2,2)}, {V(vL16)}, {S(srdS,4)}, {S(sT2)} offen')
            if b == 2:
                k.opt(False)
                k.label(f'L_{name}_noh')

    hl_done = [False]
    t2 = tmp + 48
    RS = 112

    def do_publish():
        pk = tmp
        for p in range(1, 4):
            e(f's_xor_b32 {S(sT)}, {S(sS)}, {p}')
            e(f's_lshl_b32 {S(sT)}, {S(sT)}, 2')
            e(f's_add_u32 {S(sT)}, {S(sT)}, {S(sS)}')
            e(f's_lshl_b32 {S(sT)}, {S(sT)}, 13')
            e(f's_add_u32 {S(sT)}, {S(sT)}, {S(sPub)}')
            for tb in range(2):
                d = pk + ((p - 1) * 2 + tb) * 4
                for hb in range(2):
                    a0 = ACC(2 * p + hb, tb)
                    e(f'v_cvt_pk_bf16_f32 {V(d+2*hb)}, {V(a0)}, {V(a0+1)}')
                    e(f'v_cvt_pk_bf16_f32 {V(d+2*hb+1)}, {V(a0+2)}, {V(a0+3)}')
                e(f'buffer_store_dwordx4 {V(d,4)}, {V(vL16)}, {S(srdS,4)}, {S(sT)} offen offset:{tb*1024} sc1')
        e(f's_cmp_eq_u32 {S(sW)}, {S(sS)}')
        e(f's_cbranch_scc1 L_{name}_np8')
        k.opt(True)
        e(f's_lshl_b32 {S(sT)}, {S(sS)}, 10')
        e(f's_add_u32 {S(sT)}, {S(sT)}, {S(sPub8)}')
        for tb in range(2):
            d = pk + 24 + 2 * tb
            a0 = ACC(8, tb)
            e(f'v_cvt_pk_bf16_f32 {V(d)}, {V(a0)}, {V(a0+1)}')
            e(f'v_cvt_pk_bf16_f32 {V(d+1)}, {V(a0+2)}, {V(a0+3)}')
            e(f'buffer_store_dwordx2 {V(d,2)}, {V(vL8)}, {S(srdS,4)}, {S(sT)} offen offset:{tb*512} sc1')
        k.opt(False)
        k.label(f'L_{name}_np8')
        t2 = tmp + 48
        RS = 112
        e(f'''
        v_and_b32 {V(t2)}, 15, v0
        v_mul_u32_u24 {V(t2)}, {RS}, {V(t2)}
        v_lshrrev_b32 {V(t2+1)}, 4, v0
        v_lshl_add_u32 {V(t2)}, {V(t2+1)}, 3, {V(t2)}
        s_lshl_b32 {S(sT)}, {S(sW)}, 12
        v_add_u32 {V(t2)}, {S(sT)}, {V(t2)}
        v_lshrrev_b32 {V(t2+1)}, 2, v0
        v_and_b32 {V(t2+2)}, 3, v0
        v_mul_u32_u24 {V(t2+3)}, {RS}, {V(t2+1)}
        v_lshl_add_u32 {V(t2+3)}, {V(t2+2)}, 4, {V(t2+3)}
        v_add_u32 {V(t2+3)}, {S(sT)}, {V(t2+3)}
        v_mul_u32_u24 {V(t2+4)}, 1152, {V(t2+1)}
        v_lshl_add_u32 {V(t2+4)}, {V(t2+2)}, 4, {V(t2+4)}
        v_lshrrev_b32 {V(t2+1)}, 1, v0
        v_and_b32 {V(t2+2)}, 1, v0
        v_mul_u32_u24 {V(t2+5)}, {RS}, {V(t2+1)}
        v_lshl_add_u32 {V(t2+5)}, {V(t2+2)}, 4, {V(t2+5)}
        v_add_u32 {V(t2+5)}, {S(sT)}, {V(t2+5)}
        v_mul_u32_u24 {V(t2+6)}, 1152, {V(t2+1)}
        v_lshl_add_u32 {V(t2+6)}, {V(t2+2)}, 4, {V(t2+6)}
        v_mov_b32 {V(t2+8)}, 1
        v_mov_b32 {V(t2+9)}, 0
        ''')

    def do_flag():
        e(f'''
        s_waitcnt vmcnt(0)
        s_barrier
        s_cmp_lg_u32 {S(sW)}, 0
        s_cbranch_scc1 L_{name}_nofl
        s_lshl_b32 {S(sT)}, {S(sS)}, 2
        s_add_u32 {S(sT)}, {S(sT)}, {S(sFl)}
        s_mov_b64 exec, 1
        ''')
        k.opt(True)
        e(f'buffer_store_dword {V(t2+8)}, {V(t2+9)}, {S(srdS,4)}, {S(sT)} offen sc1')
        k.opt(False)
        e('s_mov_b64 exec, -1')
        k.label(f'L_{name}_nofl')

    for n in range(PF):
        reads(n)
    n_flag = N1 + int(flag_at * (N - N1))
    for n in range(N):
        ks, fb = order[n]
        if n + PF < N:
            reads(n + PF)
        assert not any(q[2] == 'tok' and q[3][0] <= ks for q in pend), ('tok late', ks)
        for tb in range(2):
            a0 = ACC(fb, tb)
            c = '0' if ks == 0 else V(a0, 4)
            e(f'v_mfma_f32_16x16x32_bf16 {V(a0,4)}, {A(wf+(n%WF)*4,4)}, {TOK(ks,tb)}, {c}')
        pop_issue(n + 1, 1)
        if not pend and not hl_done[0]:
            h_loads(); hl_done[0] = True
        if n == N1 + 1:
            stamp()
            do_publish()
        if n == n_flag:
            do_flag()
    assert not pend
    stamp()
    e(f's_cmp_lg_u32 {S(sW)}, 0')
    e(f's_cbranch_scc1 L_{name}_wait')
    k.label(f'L_{name}_spin')
    e(f'''
    buffer_load_dwordx4 {V(t2+12,4)}, {V(t2+9)}, {S(srdS,4)}, {S(sFl)} offen sc1
    s_waitcnt vmcnt(0)
    v_and_b32 {V(t2+12)}, {V(t2+12)}, {V(t2+13)}
    v_and_b32 {V(t2+14)}, {V(t2+14)}, {V(t2+15)}
    v_and_b32 {V(t2+12)}, {V(t2+12)}, {V(t2+14)}
    v_readfirstlane_b32 {S(sT)}, {V(t2+12)}
    s_cmp_eq_u32 {S(sT)}, 1
    s_cbranch_scc0 L_{name}_spin
    ''')
    k.label(f'L_{name}_wait')
    e('s_barrier')
    stamp()
    ld = tmp
    for d in range(1, 4):
        e(f'''
        s_xor_b32 {S(sT)}, {S(sS)}, {d}
        s_lshl_b32 {S(sT2)}, {S(sS)}, 2
        s_add_u32 {S(sT)}, {S(sT)}, {S(sT2)}
        s_lshl_b32 {S(sT)}, {S(sT)}, 13
        s_add_u32 {S(sT)}, {S(sT)}, {S(sPub)}
        ''')
        for tb in range(2):
            e(f'buffer_load_dwordx4 {V(ld+((d-1)*2+tb)*4,4)}, {V(vL16)}, {S(srdS,4)}, {S(sT)} offen offset:{tb*1024} sc1')
    e(f's_cmp_lg_u32 {S(sW)}, {S(sS)}')
    e(f's_cbranch_scc1 L_{name}_ng8')
    k.opt(True)
    for d in range(1, 4):
        e(f's_xor_b32 {S(sT)}, {S(sS)}, {d}')
        e(f's_lshl_b32 {S(sT)}, {S(sT)}, 10')
        e(f's_add_u32 {S(sT)}, {S(sT)}, {S(sPub8)}')
        for tb in range(2):
            e(f'buffer_load_dwordx2 {V(ld+24+((d-1)*2+tb)*2,2)}, {V(vL8)}, {S(srdS,4)}, {S(sT)} offen offset:{tb*512} sc1')
    k.opt(False)
    k.label(f'L_{name}_ng8')
    u0, u1 = t2 + 10, t2 + 11

    def finish_unit(a0, srcs, hr, dst):
        o = []
        for sr in srcs:
            for q in range(2):
                o += [f'v_lshlrev_b32 {V(u0)}, 16, {V(sr+q)}', f'v_and_b32 {V(u1)}, 0xffff0000, {V(sr+q)}',
                      f'v_add_f32 {V(a0+2*q)}, {V(a0+2*q)}, {V(u0)}', f'v_add_f32 {V(a0+2*q+1)}, {V(a0+2*q+1)}, {V(u1)}']
        for q in range(2):
            o += [f'v_cvt_pk_bf16_f32 {V(dst+q)}, {V(a0+2*q)}, {V(a0+2*q+1)}',
                  f'v_lshlrev_b32 {V(a0+2*q)}, 16, {V(dst+q)}', f'v_and_b32 {V(a0+2*q+1)}, 0xffff0000, {V(dst+q)}',
                  f'v_lshlrev_b32 {V(u0)}, 16, {V(hr+q)}', f'v_and_b32 {V(u1)}, 0xffff0000, {V(hr+q)}',
                  f'v_add_f32 {V(a0+2*q)}, {V(a0+2*q)}, {V(u0)}', f'v_add_f32 {V(a0+2*q+1)}, {V(a0+2*q+1)}, {V(u1)}',
                  f'v_cvt_pk_bf16_f32 {V(dst+q)}, {V(a0+2*q)}, {V(a0+2*q+1)}']
        return o
    res = ACC(2, 0)
    for tb in range(2):
        for hb in range(2):
            dst = res + (tb * 2 + hb) * 2
            e('\n'.join(finish_unit(ACC(hb, tb), [ld + ((d - 1) * 2 + tb) * 4 + 2 * hb for d in range(1, 4)], hres + 4 * hb + 2 * tb, dst)))
            e(f'ds_write_b64 {V(t2)}, {V(dst,2)} offset:{tb*16*RS + hb*32}')
    e(f's_lshl_b32 {S(sT)}, {S(sS)}, 6')
    e(f's_add_u32 {S(sT)}, {S(sT)}, {S(sOut)}')
    e(f's_add_u32 {S(sT2)}, {S(sT)}, {16*1152}')
    e('s_waitcnt lgkmcnt(0)')
    e(f'ds_read_b128 {V(res+8,4)}, {V(t2+3)}')
    e(f'ds_read_b128 {V(res+12,4)}, {V(t2+3)} offset:{16*RS}')
    e(f'buffer_store_dwordx4 {V(res+8,4)}, {V(t2+4)}, {S(srdO,4)}, {S(sT)} offen')
    e(f'buffer_store_dwordx4 {V(res+12,4)}, {V(t2+4)}, {S(srdO,4)}, {S(sT2)} offen')
    e(f's_cmp_lg_u32 {S(sW)}, {S(sS)}')
    e(f's_cbranch_scc1 L_{name}_done')
    e('s_waitcnt vmcnt(2)')
    for tb in range(2):
        dst = res + 16 + 2 * tb
        e('\n'.join(finish_unit(ACC(8, tb), [ld + 24 + ((d - 1) * 2 + tb) * 2 for d in range(1, 4)], hres + 8 + 2 * tb, dst)))
        e(f'ds_write_b64 {V(t2)}, {V(dst,2)} offset:{tb*16*RS + 64}')
    e('s_waitcnt lgkmcnt(0)')
    e(f'ds_read_b128 {V(res+20,4)}, {V(t2+5)} offset:64')
    e(f'buffer_store_dwordx4 {V(res+20,4)}, {V(t2+6)}, {S(srdO,4)}, {S(sOut)} offen offset:256')
    k.label(f'L_{name}_done')
    if stamps:
        stamp()
        e('s_waitcnt vmcnt(0)')
        stamp()
        emit_stamp_dump(k, e, sStamp, nst, srdW, s_wd, sT, sW, tmp, int(stamps) - 1)
    k.label(f'L_{name}_end')
    e('s_endpgm')
    return k
```

```python
S_, D_, F_, H_, DH = 2048, 576, 4608, 32, 18
RQ = 592
HS = 144 * RQ
RV = 144
QF = 0x000000
KF = 0x29A000
VF = 0x534000
VT = 0x734000
OF = 0x780000
HF = 0x9C0000
HH = 0xC00000
HC = 0x1E00000
PP = 0x2040000
ST = 0x2950000
CS = 0x2980000
MX = 0x2980000
WB = 0x2984000
FL = 0x2988000
PPF = 0x3000000
WS_USED = 0x4800000
assert KF == 32 * HS and VF == KF + 32 * HS
KA_X, KA_WQKV, KA_WO, KA_BX, KA_WG, KA_WU, KA_WD, KA_OUT, KA_DBG, KA_WS = [8 * i for i in range(10)]


def hh_block_order():
    out = []
    for P in range(16):
        e, o = 18 * P, 18 * P + 9
        for i in range(4):
            out += [e + 2 * i, e + 2 * i + 1]
        for i in range(4):
            out += [o + 2 * i, o + 2 * i + 1]
        out += [e + 8, o + 8]
    return out


import numpy as np


def to_frag(u16, nks):
    return u16.reshape(128, 16, nks, 2, 4, 4).transpose(0, 2, 4, 1, 3, 5).copy()


def from_frag(u16, nks):
    return u16.reshape(128, nks, 4, 16, 2, 4).transpose(0, 3, 1, 4, 2, 5).reshape(2048, nks * 32)


def head_slots(h):
    return list(range(18)) if h % 2 == 0 else list(range(2, 18)) + [0, 1]


def pack_qk(u16):
    out = np.zeros((32, 128, 288), dtype=np.uint16)
    for h in range(32):
        a = u16[:, 18 * h:18 * h + 18][:, head_slots(h)].reshape(128, 16, 18)
        out[h, :, :256] = a[:, :, :16].reshape(128, 16, 2, 8).transpose(0, 2, 1, 3).reshape(128, 256)
        out[h, :, 256:] = a[:, :, 16:].reshape(128, 32)
    return out


def unpack_qk(arr):
    arr = arr.reshape(32, 128, 288)
    out = np.zeros((2048, 576), dtype=np.uint16)
    for h in range(32):
        a = np.zeros((128, 16, 18), dtype=np.uint16)
        a[:, :, :16] = arr[h, :, :256].reshape(128, 2, 16, 8).transpose(0, 2, 1, 3).reshape(128, 16, 16)
        a[:, :, 16:] = arr[h, :, 256:].reshape(128, 16, 2)
        out[:, [18 * h + d for d in head_slots(h)]] = a.reshape(2048, 18)
    return out


def pack_v(u16):
    v = u16.reshape(64, 2, 4, 4, 32, 18)
    a = v.transpose(4, 0, 2, 5, 1, 3)
    vf = a[:, :, :, :16].copy()
    vt = a[:, :, :, 16:].copy()
    return vf, vt


def unpack_v(vf, vt):
    a = np.concatenate([vf.reshape(32, 64, 4, 16, 2, 4), vt.reshape(32, 64, 4, 2, 2, 4)], axis=3)
    return a.transpose(1, 4, 2, 5, 0, 3).reshape(2048, 576)
```

```python
import sys, os; sys.path.insert(0,'dev')
from asmb import *; from layout import *
import k1, k2, k3, k4, k5, k5s, k5c, k5p
NAME = 'sequential_preLN__sliding_block__glu_gated_glu__prompt'
def build(path, stamps=False, **opt):
    ref = open(f'cdna_kernels/{NAME}.s.ref').read().split('\n')
    hdr = [l for l in ref if l.startswith(';') and '@launch' not in l and 'Override launch' not in l and 'grid=ceil' not in l]
    st = (lambda i: i if stamps else False)
    K1 = k1.build_k1(name=NAME+'_kernel', stamps=st(1), code_pf=(('k2_kernel', 'L_code_end') if opt.get('code_pf', True) else None), **opt.get('k1', {})); K2 = k2.build_k2(stamps=st(2), colsum=False, code_pf=('k3_kernel', 'k5_kernel'), **opt.get('k2', {})); K3 = k3.build_k3(stamps=st(3), **opt.get('k3', {})); K4 = k4.build_k4(stamps=st(4), code_pf=('k5_kernel', 'L_code_end'), **opt.get('k4', {})); K5 = (k5c.build_k5c if opt.get('k5v') == 'c' else k5p.build_k5p)(stamps=st(5), **opt.get('k5', {}))
    K5.label('L_code_end')
    launches = [(K1.name, 256, 256, K1.lds), (K2.name, 256, 256, K2.lds), (K3.name, 240, 320, K3.lds), (K4.name, 256, 512, K4.lds), (K5.name, 256, 256, K5.lds)]
    assemble_file(hdr, launches, [K1, K2, K3, K4, K5], path)
if __name__ == '__main__':
    build(sys.argv[1] if len(sys.argv) > 1 else f'cdna_kernels/{NAME}.s')
```

```python
from asmb import *
from layout import *
from k4 import F, bf16_round, LOG2E
from k4 import emit_stamp_dump
from k3 import row_reduce

QSCALE = 18 ** -0.5 * LOG2E


def build_k1(name='k1_kernel', stamps=False, extra=None, code_pf=None, self_pf=False, pre=2, xmap=0, rot=True, tlb_pf=False):
    k = Kernel(name)
    SLOT = 32768
    STL = 4 * SLOT
    k.lds = STL + 2048
    k.ns = 3
    s_x = k.s(4, 4)
    s_ws = k.s(2, 2)
    srdX = k.s(4, 4); srdW = k.s(4, 4); srdS = k.s(4, 4)
    sW = k.s(); sM = k.s(); sN = k.s(); sT = k.s(); sT2 = k.s(); sTW = k.s(); sCW = k.s(); sC64 = k.s()
    sM0 = k.s(); sXo = k.s(); sWo = k.s(); sTmpO = k.s(); sOne = k.s(); sSt = k.s(); sSec = k.s()
    sMask = k.s(8, 2)
    sO0 = k.s(); sO1 = k.s()
    k.nv = 1
    vDx = k.v(); vDw = k.v()
    vT = k.v(4)
    vWa = k.v(8)
    acc = k.v(64, 4)
    tf = k.v(32, 4)
    wf = k.v(32, 4)
    ssum = k.v(8, 4); ssq = k.v(8, 4); csum = k.v(8, 4); ones = k.v(4, 4)
    adr = k.v(8)
    sDiag = k.s(8, 4)
    tmp = k.v(56, 4)
    e = k.e
    sStamp = k.s(24, 2) if stamps else None
    nst = [0]

    def stamp():
        if stamps:
            e(f's_memtime {S(sStamp + 2*nst[0], 2)}'); e('s_waitcnt lgkmcnt(0)'); nst[0] += 1
    e(f'''
    s_cmp_ge_u32 s2, 256
    s_cbranch_scc1 L_{name}_x
    v_lshrrev_b32 {V(tmp)}, 6, v0
    v_and_b32 v0, 63, v0
    v_readfirstlane_b32 {S(sW)}, {V(tmp)}
    s_cmp_ge_u32 s2, 224
    s_cbranch_scc1 L_{name}_pf
    s_load_dwordx4 {S(s_x,4)}, s[0:1], {KA_X}
    s_load_dwordx2 {S(s_ws,2)}, s[0:1], {KA_WS}
    s_and_b32 {S(sT)}, s2, 7
    s_lshr_b32 {S(sT2)}, s2, 3
    ''' + (f'''
    s_lshl_b32 {S(sM)}, {S(sT)}, 1
    s_and_b32 {S(sT)}, {S(sT2)}, 1
    s_add_u32 {S(sM)}, {S(sM)}, {S(sT)}
    s_lshr_b32 {S(sN)}, {S(sT2)}, 1
    ''' if xmap == 0 else f'''
    s_lshr_b32 {S(sM)}, {S(sT)}, 1
    s_lshl_b32 {S(sM)}, {S(sM)}, 2
    s_and_b32 {S(sN)}, {S(sT2)}, 3
    s_add_u32 {S(sM)}, {S(sM)}, {S(sN)}
    s_and_b32 {S(sN)}, {S(sT)}, 1
    s_mul_i32 {S(sN)}, {S(sN)}, 7
    s_lshr_b32 {S(sT2)}, {S(sT2)}, 2
    s_add_u32 {S(sN)}, {S(sN)}, {S(sT2)}
    ''') + f'''
    s_lshr_b32 {S(sTW)}, {S(sW)}, 1
    s_and_b32 {S(sCW)}, {S(sW)}, 1
    s_lshl_b32 {S(sC64)}, {S(sN)}, 1
    s_add_u32 {S(sC64)}, {S(sC64)}, {S(sCW)}
    ''')
    stamp()
    if stamps:
        e(f's_memrealtime {S(sStamp+20,2)}')
    e(f'''
    v_lshrrev_b32 {V(tmp)}, 3, v0
    v_mul_u32_u24 {V(vDx)}, 1152, {V(tmp)}
    v_lshrrev_b32 {V(tmp+1)}, 4, v0
    s_lshl_b32 {S(sT)}, {S(sCW)}, 2
    v_add_u32 {V(tmp+2)}, {S(sT)}, {V(tmp+1)}
    v_and_b32 {V(tmp+3)}, 7, v0
    v_xor_b32 {V(tmp+2)}, {V(tmp+2)}, {V(tmp+3)}
    v_lshl_add_u32 {V(vDx)}, {V(tmp+2)}, 4, {V(vDx)}
    v_lshrrev_b32 {V(tmp+2)}, 5, v0
    v_lshlrev_b32 {V(tmp+2)}, 3, {V(tmp+2)}
    v_and_b32 {V(tmp)}, 3, {V(tmp)}
    v_add_u32 {V(tmp+2)}, {V(tmp+2)}, {V(tmp)}
    v_mul_u32_u24 {V(vDw)}, 3456, {V(tmp+2)}
    v_lshlrev_b32 {V(tmp+1)}, 1, {V(tmp+1)}
    v_xor_b32 {V(tmp+1)}, {V(tmp+1)}, {V(tmp+3)}
    v_lshl_add_u32 {V(vDw)}, {V(tmp+1)}, 4, {V(vDw)}
    s_lshl_b32 {S(sM0)}, {S(sW)}, 10
    s_lshl_b32 {S(sT)}, {S(sM)}, 7
    s_lshl_b32 {S(sT2)}, {S(sW)}, 3
    s_add_u32 {S(sT)}, {S(sT)}, {S(sT2)}
    s_mul_i32 {S(sXo)}, {S(sT)}, 1152
    s_lshl_b32 {S(sT)}, {S(sTW)}, 4
    s_lshl_b32 {S(sT2)}, {S(sCW)}, 2
    s_add_u32 {S(sT)}, {S(sT)}, {S(sT2)}
    s_mul_i32 {S(sWo)}, {S(sT)}, 3456
    s_lshl_b32 {S(sT)}, {S(sN)}, 8
    s_add_u32 {S(sWo)}, {S(sWo)}, {S(sT)}
    s_mov_b32 {S(sOne)}, 0x3f803f80
    s_waitcnt lgkmcnt(0)
    s_mov_b32 {S(srdX)}, {S(s_x)}
    s_mov_b32 {S(srdX+1)}, {S(s_x+1)}
    s_mov_b32 {S(srdX+2)}, {2048*1152}
    s_mov_b32 {S(srdX+3)}, 0x00020000
    s_mov_b32 {S(srdW)}, {S(s_x+2)}
    s_mov_b32 {S(srdW+1)}, {S(s_x+3)}
    s_mov_b32 {S(srdW+2)}, {576*3456}
    s_mov_b32 {S(srdW+3)}, 0x00020000
    s_mov_b32 {S(srdS)}, {S(s_ws)}
    s_mov_b32 {S(srdS+1)}, {S(s_ws+1)}
    s_mov_b32 {S(srdS+2)}, {WS_USED}
    s_mov_b32 {S(srdS+3)}, 0x00020000
    ''')

    sXc = k.s(); sWc = k.s(); sRot = k.s()
    if rot:
        e(f'''
        s_add_u32 {S(sRot)}, {S(sM)}, {S(sN)}
        s_mul_i32 {S(sT)}, {S(sRot)}, 7282
        s_lshr_b32 {S(sT)}, {S(sT)}, 16
        s_mul_i32 {S(sT)}, {S(sT)}, 9
        s_sub_u32 {S(sRot)}, {S(sRot)}, {S(sT)}
        ''')
    else:
        e(f's_mov_b32 {S(sRot)}, 0')

    def dma(St):
        slot = St % 4
        out = []
        for i in range(4):
            g = []
            if i == 0:
                g += [(f's_lshl_b32 {S(sXc)}, {S(sRot)}, 7', None), (f's_add_u32 {S(sXc)}, {S(sXc)}, {S(sXo)}', None),
                      (f's_mul_i32 {S(sWc)}, {S(sRot)}, {64*3456}', None), (f's_add_u32 {S(sWc)}, {S(sWc)}, {S(sWo)}', None),
                      (f's_add_u32 {S(sRot)}, {S(sRot)}, 1', None), (f's_cmp_eq_u32 {S(sRot)}, 9', None),
                      (f's_cselect_b32 {S(sRot)}, 0, {S(sRot)}', None)]
            out.append(g + [(f's_add_u32 m0, {S(sM0)}, {slot*SLOT + i*4096}', None),
                            (f's_add_u32 {S(sTmpO)}, {S(sXc)}, {i*32*1152}', None),
                            (f'buffer_load_dwordx4 {V(vDx)}, {S(srdX,4)}, {S(sTmpO)} offen lds', f'st{St}')])
            out.append([(f's_add_u32 m0, {S(sM0)}, {slot*SLOT + 16384 + i*4096}', None),
                        (f's_add_u32 {S(sTmpO)}, {S(sWc)}, {(i&1)*32*3456 + (i>>1)*128}', None),
                        (f'buffer_load_dwordx4 {V(vDw)}, {S(srdW,4)}, {S(sTmpO)} offen lds', f'st{St}')])
        return out

    def emit_group(g):
        for t, tag in g:
            e(t, tag=tag)
    for g in dma(0):
        emit_group(g)
    if self_pf:
        vQ = k.v(4)
        e(f'''
        s_lshr_b32 {S(sT)}, s2, 3
        s_lshl_b32 {S(sT)}, {S(sT)}, 2
        s_add_u32 {S(sT)}, {S(sT)}, {S(sW)}
        s_mul_i32 {S(sT2)}, {S(sT)}, 47
        v_add_u32 {V(vQ)}, {S(sT2)}, v0
        v_lshlrev_b32 {V(vQ)}, 7, {V(vQ)}
        v_add_u32 {V(vQ+1)}, {112*47*128}, {V(vQ)}
        v_add_u32 {V(vQ+2)}, {2*112*47*128}, {V(vQ)}
        s_mul_i32 {S(sT2)}, {S(sT)}, 21
        s_and_b32 {S(sT)}, s2, 7
        s_mul_i32 {S(sT)}, {S(sT)}, 2304
        s_add_u32 {S(sT2)}, {S(sT2)}, {S(sT)}
        v_add_u32 {V(vQ+3)}, {S(sT2)}, v0
        v_lshlrev_b32 {V(vQ+3)}, 7, {V(vQ+3)}
        s_bfm_b64 exec, 21, 0
        buffer_load_dword {V(vQ+3)}, {V(vQ+3)}, {S(srdX,4)}, 0 offen
        s_bfm_b64 exec, 47, 0
        buffer_load_dword {V(vQ)}, {V(vQ)}, {S(srdW,4)}, 0 offen
        buffer_load_dword {V(vQ+1)}, {V(vQ+1)}, {S(srdW,4)}, 0 offen
        buffer_load_dword {V(vQ+2)}, {V(vQ+2)}, {S(srdW,4)}, 0 offen
        s_mov_b64 exec, -1
        ''')
    if code_pf:
        from pf import pf_code
        sPa = k.s(2, 2); sPs = k.s(2, 2); vPc = k.v(4, 2)
        pf_code(k, name, code_pf[0], sPa, sW, sT, sPs, vPc)
    for St in range(1, pre):
        for g in dma(St):
            emit_group(g)
    if tlb_pf:
        vTl = k.v()
        e(f'v_lshlrev_b32 {V(vTl)}, 20, v0')
        e(f's_lshr_b32 {S(sT2)}, s2, 3')
        e(f's_lshl_b32 {S(sT2)}, {S(sT2)}, 2')
        e(f's_add_u32 {S(sT2)}, {S(sT2)}, {S(sW)}')
        e(f's_cmp_lg_u32 {S(sT2)}, 33')
        e(f's_cbranch_scc1 L_{name}_notlb')
        k.opt(True)
        e(f's_bfm_b64 exec, 42, 0')
        e(f'buffer_load_dword {V(vTl)}, {V(vTl)}, {S(srdS,4)}, 0 offen')
        e(f's_mov_b64 exec, -1')
        k.opt(False)
        k.label(f'L_{name}_notlb')
    if code_pf:
        e(f's_lshr_b32 {S(sT2)}, s2, 3')
        e(f's_lshl_b32 {S(sT2)}, {S(sT2)}, 2')
        e(f's_add_u32 {S(sT2)}, {S(sT2)}, {S(sW)}')
        e(f's_and_b32 {S(sT2)}, {S(sT2)}, 31')
        pf_code(k, code_pf[0], code_pf[1], sPa, sT2, sT, sPs, vPc + 2)
    e(f'''
    v_and_b32 {V(tmp)}, 15, v0
    v_lshrrev_b32 {V(tmp+1)}, 4, v0
    v_lshrrev_b32 {V(tmp+2)}, 1, {V(tmp)}
    v_xor_b32 {V(tmp+2)}, {V(tmp+2)}, {V(tmp+1)}
    v_lshlrev_b32 {V(tmp+3)}, 7, {V(tmp)}
    v_lshl_add_u32 {V(tmp+3)}, {V(tmp+2)}, 4, {V(tmp+3)}
    s_lshl_b32 {S(sT)}, {S(sTW)}, 13
    v_add_u32 {V(vT)}, {S(sT)}, {V(tmp+3)}
    v_add_u32 {V(vT+1)}, {2*SLOT}, {V(vT)}
    v_xor_b32 {V(vT+2)}, 64, {V(vT)}
    v_add_u32 {V(vT+3)}, {2*SLOT}, {V(vT+2)}
    v_lshrrev_b32 {V(tmp+2)}, 5, v0
    v_lshlrev_b32 {V(tmp+2)}, 4, {V(tmp+2)}
    v_bfe_u32 {V(tmp+3)}, v0, 2, 3
    v_add_u32 {V(tmp+2)}, {V(tmp+2)}, {V(tmp+3)}
    v_lshlrev_b32 {V(tmp+2)}, 7, {V(tmp+2)}
    v_and_b32 {V(tmp+4)}, 3, v0
    v_lshl_add_u32 {V(tmp+2)}, {V(tmp+4)}, 3, {V(tmp+2)}
    s_lshl_b32 {S(sT)}, {S(sCW)}, 13
    s_add_u32 {S(sT)}, {S(sT)}, 16384
    v_add_u32 {V(tmp+2)}, {S(sT)}, {V(tmp+2)}
    v_bfe_u32 {V(tmp+3)}, v0, 3, 2
    ''')
    for fb in range(4):
        e(f'v_xor_b32 {V(tmp+4)}, {fb}, {V(tmp+3)}')
        e(f'v_lshl_add_u32 {V(vWa+2*fb)}, {V(tmp+4)}, 5, {V(tmp+2)}')
        e(f'v_add_u32 {V(vWa+2*fb+1)}, {2*SLOT}, {V(vWa+2*fb)}')
    for r in range(4):
        e(f'v_mov_b32 {V(ones+r)}, 0x3f803f80')
    e(f'''
    v_and_b32 {V(tmp)}, 3, v0
    v_cmp_eq_u32 {S(sDiag,2)}, 1, {V(tmp)}
    v_cmp_eq_u32 {S(sDiag+2,2)}, 2, {V(tmp)}
    v_cmp_eq_u32 {S(sDiag+4,2)}, 3, {V(tmp)}
    v_bfe_u32 {V(tmp)}, v0, 2, 2
    v_lshrrev_b32 {V(tmp+1)}, 4, v0
    v_cmp_eq_u32 {S(sDiag+6,2)}, {V(tmp)}, {V(tmp+1)}
    ''')

    vT2 = k.v(4)
    e(f's_lshl_b32 {S(sT)}, {S(sCW)}, 12')
    e(f's_sub_u32 {S(sT2)}, 4096, {S(sT)}')
    for q in range(4):
        e(f'v_add_u32 {V(vT2+q)}, {S(sT2)}, {V(vT+q)}')
        e(f'v_add_u32 {V(vT+q)}, {S(sT)}, {V(vT+q)}')
    e(f's_cmp_eq_u32 {S(sTW)}, 0')
    e(f's_cbranch_scc1 L_{name}_nosw')
    k.opt(True)
    for q in range(4):
        e(f'v_swap_b32 {V(vWa+q)}, {V(vWa+4+q)}')
    k.opt(False)
    k.label(f'L_{name}_nosw')

    def reads(ks):
        St, s = ks >> 1, ks & 1
        slot = St % 4
        hi = slot >> 1
        o = []
        b = ks % 2
        for i in range(4):
            va = (vT if i < 2 else vT2) + 2 * s + hi
            o.append(f'ds_read_b128 {V(tf+b*16+i*4,4)}, {V(va)} offset:{(slot&1)*SLOT + (i&1)*2048}')
            off = (slot & 1) * SLOT + s * 4096
            o.append(f'ds_read_b64_tr_b16 {V(wf+b*16+i*4,2)}, {V(vWa+2*i+hi)} offset:{off}')
            o.append(f'ds_read_b64_tr_b16 {V(wf+b*16+i*4+2,2)}, {V(vWa+2*i+hi)} offset:{off+1024}')
        return o

    def statops(ks):
        b = ks % 2
        o = []
        for i in range(2):
            T_, W_ = V(tf + b * 16 + i * 4, 4), V(wf + b * 16 + i * 4, 4)
            for (d, x, y) in ((ssum + 4 * i, V(ones, 4), T_), (ssq + 4 * i, T_, T_), (csum + 4 * i, V(ones, 4), W_)):
                c = '0' if ks == 0 else V(d, 4)
                o.append(f'v_mfma_f32_16x16x32_bf16 {V(d,4)}, {x}, {y}, {c}')
        return o

    def mainloop(orient):
        pend = sum((dma(St) for St in range(pre, 4)), [])
        k.wait_vm(['st0'])
        e('s_barrier')
        if orient == 0:
            stamp()
        for o in reads(0):
            e(o)
        for ks in range(18):
            b = ks % 2
            rd = []
            if ks + 1 < 18:
                if (ks + 1) % 2 == 0:
                    St = (ks + 1) // 2
                    assert not any(x[1] == f'st{St}' for g in pend for x in g)
                    k.wait_vm([f'st{St}'])
                    e('s_waitcnt lgkmcnt(0)')
                    e('s_barrier')
                    if St + 3 < 9:
                        pend += dma(St + 3)
                rd = reads(ks + 1)
            so = statops(ks)
            n = 0
            for i in range(4):
                for j in range(4):
                    a0 = acc + (i * 4 + j) * 4
                    c = '0' if ks == 0 else V(a0, 4)
                    T_, W_ = V(tf + b * 16 + i * 4, 4), V(wf + b * 16 + j * 4, 4)
                    if orient == 0:
                        e(f'v_mfma_f32_16x16x32_bf16 {V(a0,4)}, {W_}, {T_}, {c}')
                    else:
                        e(f'v_mfma_f32_16x16x32_bf16 {V(a0,4)}, {T_}, {W_}, {c}')
                    if rd:
                        e(rd.pop(0))
                    if n >= 10 and so:
                        e(so.pop(0))
                    if n % 2 == 1 and pend:
                        emit_group(pend.pop(0))
                    n += 1
            assert not so and not rd
        assert not pend

    def stats_addr():
        t = tmp
        e(f'''
        v_and_b32 {V(t)}, 15, v0
        v_lshlrev_b32 {V(t)}, 2, {V(t)}
        s_lshl_b32 {S(sT)}, {S(sTW)}, 8
        s_lshl_b32 {S(sT2)}, {S(sCW)}, 7
        s_add_u32 {S(sT)}, {S(sT)}, {S(sT2)}
        s_add_u32 {S(sT)}, {S(sT)}, {STL}
        v_add_u32 {V(adr)}, {S(sT)}, {V(t)}
        s_lshl_b32 {S(sT)}, {S(sCW)}, 8
        s_lshl_b32 {S(sT2)}, {S(sTW)}, 7
        s_add_u32 {S(sT)}, {S(sT)}, {S(sT2)}
        s_add_u32 {S(sT)}, {S(sT)}, {STL+1024}
        v_add_u32 {V(adr+1)}, {S(sT)}, {V(t)}
        ''')

    def stats_finish(store_mean=False):
        ops = [[], []]
        for i in range(2):
            m, v = ssum + 4 * i, ssq + 4 * i
            o = ops[i]
            for r in range(1, 4):
                o.append(f'v_cndmask_b32 {V(v)}, {V(v)}, {V(v+r)}, {S(sDiag+2*(r-1),2)}')
            o.append(f'v_mul_f32 {V(m)}, {F(1.0/576)}, {V(m)}')
            o.append(f'v_mov_b32 {V(m+1)}, {V(m)}')
            o.append(f'v_mul_f32 {V(v)}, {F(1.0/576)}, {V(v)}')
            o.append(f'v_fma_f32 {V(v)}, -{V(m)}, {V(m)}, {V(v)}')
            o.append(f'v_max_f32 {V(v)}, 0, {V(v)}')
            o += bf16_round(m, m) + bf16_round(v, v)
            o.append(f'v_add_f32 {V(v)}, {F(1e-5)}, {V(v)}')
            o += bf16_round(v, v)
            o.append(f'v_sqrt_f32 {V(v)}, {V(v)}')
            o += bf16_round(v, v)
            o.append(f'v_rcp_f32 {V(v)}, {V(v)}')
            o.append(f'v_sub_f32 {V(m)}, 0, {V(m)}')
        e('\n'.join(interleave(ops[0], ops[1])))
        e(f'''
        s_mov_b64 exec, {S(sDiag+6,2)}
        ds_write_b32 {V(adr)}, {V(ssum)}
        ds_write_b32 {V(adr)}, {V(ssum+4)} offset:64
        ds_write_b32 {V(adr)}, {V(ssq)} offset:512
        ds_write_b32 {V(adr)}, {V(ssq+4)} offset:576
        ds_write_b32 {V(adr+1)}, {V(csum)}
        ds_write_b32 {V(adr+1)}, {V(csum+4)} offset:64
        ''')
        if store_mean:
            e(f's_cmp_lg_u32 {S(sN)}, 0')
            e(f's_cbranch_scc1 L_{name}_nomx')
            k.opt(True)
            e(f's_lshl_b32 {S(sT)}, {S(sM)}, 9')
            e(f's_add_u32 {S(sT)}, {S(sT)}, {MX-STL}')
            e(f'buffer_store_dword {V(ssum+1)}, {V(adr)}, {S(srdS,4)}, {S(sT)} offen')
            e(f'buffer_store_dword {V(ssum+5)}, {V(adr)}, {S(srdS,4)}, {S(sT)} offen offset:64')
            k.opt(False)
            k.label(f'L_{name}_nomx')
        e(f'''
        s_mov_b64 exec, -1
        s_waitcnt lgkmcnt(0)
        s_barrier
        ''')

    e(f's_cmp_ge_u32 {S(sC64)}, 18')
    e(f's_cbranch_scc1 L_{name}_v')
    k.save_state()
    t = tmp + 40
    e(f'''
    s_cmp_ge_u32 {S(sC64)}, 9
    s_cselect_b32 {S(sSec)}, 9, 0
    s_cselect_b32 {S(sSt)}, {KF}, {QF}
    s_sub_u32 {S(sSec)}, {S(sC64)}, {S(sSec)}
    s_lshl_b32 {S(sSec)}, {S(sSec)}, 4
    s_lshl_b32 {S(sT)}, {S(sM)}, 3
    s_lshl_b32 {S(sT2)}, {S(sTW)}, 2
    s_add_u32 {S(sT)}, {S(sT)}, {S(sT2)}
    s_add_u32 {S(sT)}, {S(sT)}, 16
    s_mul_i32 {S(sT)}, {S(sT)}, {RQ}
    s_add_u32 {S(sSt)}, {S(sSt)}, {S(sT)}
    v_lshrrev_b32 {V(t)}, 4, v0
    v_add_u32 {V(t)}, {S(sSec)}, {V(t)}
    v_and_b32 {V(t+1)}, 15, v0
    s_lshl_b32 {S(sT)}, {S(sTW)}, 3
    ''')
    for j in range(4):
        e(f'''
        s_xor_b32 {S(sT2)}, {S(sT)}, {4*j}
        v_add_u32 {V(t+2)}, {S(sT2)}, {V(t)}
        v_mul_u32_u24 {V(t+3)}, 7282, {V(t+2)}
        v_lshrrev_b32 {V(t+3)}, 16, {V(t+3)}
        v_mul_u32_u24 {V(t+4)}, 9, {V(t+3)}
        v_sub_u32 {V(t+4)}, {V(t+2)}, {V(t+4)}
        v_cmp_lt_u32 vcc, 4, {V(t+4)}
        v_cmp_eq_u32 {S(sMask+2*j,2)}, 4, {V(t+4)}
        v_mul_u32_u24 {V(t+3)}, {2*HS}, {V(t+3)}
        v_subrev_u32 {V(t+5)}, 5, {V(t+4)}
        v_cndmask_b32 {V(t+4)}, {V(t+4)}, {V(t+5)}, vcc
        v_add_u32 {V(t+5)}, {HS}, {V(t+3)}
        v_cndmask_b32 {V(t+6)}, {V(t+3)}, {V(t+5)}, vcc
        v_lshrrev_b32 {V(t+7)}, 1, {V(t+4)}
        v_lshl_add_u32 {V(t+6)}, {V(t+7)}, 8, {V(t+6)}
        v_and_b32 {V(t+7)}, 1, {V(t+4)}
        v_lshl_add_u32 {V(t+6)}, {V(t+7)}, 3, {V(t+6)}
        v_lshl_add_u32 {V(t+6)}, {V(t+1)}, 4, {V(t+6)}
        v_lshl_add_u32 {V(t+3)}, {V(t+1)}, 2, {V(t+3)}
        v_add_u32 {V(t+3)}, 512, {V(t+3)}
        v_cndmask_b32 {V(t+8+2*j)}, {V(t+6)}, {V(t+3)}, {S(sMask+2*j,2)}
        v_add_u32 {V(t+9+2*j)}, {HS}, {V(t+3)}
        ''')
    stats_addr()
    e(f'''
    v_and_b32 {V(tmp)}, 15, v0
    v_lshlrev_b32 {V(tmp)}, 2, {V(tmp)}
    s_lshl_b32 {S(sT)}, {S(sTW)}, 8
    s_lshl_b32 {S(sT2)}, {S(sCW)}, 7
    s_add_u32 {S(sT)}, {S(sT)}, {STL}
    s_add_u32 {S(sTmpO)}, {S(sT)}, {S(sT2)}
    v_add_u32 {V(adr+2)}, {S(sTmpO)}, {V(tmp)}
    s_sub_u32 {S(sT2)}, 128, {S(sT2)}
    s_add_u32 {S(sTmpO)}, {S(sT)}, {S(sT2)}
    v_add_u32 {V(adr+3)}, {S(sTmpO)}, {V(tmp)}
    v_lshrrev_b32 {V(tmp)}, 4, v0
    v_lshlrev_b32 {V(tmp)}, 4, {V(tmp)}
    s_lshl_b32 {S(sT)}, {S(sCW)}, 8
    s_lshl_b32 {S(sT2)}, {S(sTW)}, 7
    s_add_u32 {S(sT)}, {S(sT)}, {STL+1024}
    s_add_u32 {S(sTmpO)}, {S(sT)}, {S(sT2)}
    v_add_u32 {V(adr+4)}, {S(sTmpO)}, {V(tmp)}
    s_sub_u32 {S(sT2)}, 128, {S(sT2)}
    s_add_u32 {S(sTmpO)}, {S(sT)}, {S(sT2)}
    v_add_u32 {V(adr+5)}, {S(sTmpO)}, {V(tmp)}
    ''')
    mainloop(0)
    stamp()
    aQ = t + 8
    stats_finish(True)
    st = tmp
    for i in range(4):
        va = adr + 2 + (i >> 1)
        e(f'ds_read_b32 {V(st+i)}, {V(va)} offset:{(i&1)*64}')
        e(f'ds_read_b32 {V(st+4+i)}, {V(va)} offset:{512+(i&1)*64}')
    for j in range(4):
        va = adr + 4 + (j >> 1)
        e(f'ds_read_b128 {V(st+8+4*j,4)}, {V(va)} offset:{(j&1)*64}')
    e(f's_cmp_ge_u32 {S(sC64)}, 9')
    e(f's_cselect_b32 {S(sT)}, 1.0, {F(QSCALE)}')
    for i in range(4):
        e(f'v_mul_f32 {V(st+4+i)}, {S(sT)}, {V(st+4+i)}')
    e(f'''
    s_mul_i32 {S(sT)}, {S(sCW)}, {2*RQ}
    s_add_u32 {S(sO0)}, {S(sSt)}, {S(sT)}
    s_sub_u32 {S(sT)}, {2*RQ}, {S(sT)}
    s_add_u32 {S(sO1)}, {S(sSt)}, {S(sT)}
    ''')
    for j in range(4):
        for i in range(4):
            a0 = acc + (i * 4 + j) * 4
            for r in range(4):
                e(f'v_fma_f32 {V(a0+r)}, {V(st+8+4*j+r)}, {V(st+i)}, {V(a0+r)}')
            for r in range(4):
                e(f'v_mul_f32 {V(a0+r)}, {V(a0+r)}, {V(st+4+i)}')
            e(f'v_cvt_pk_bf16_f32 {V(a0)}, {V(a0)}, {V(a0+1)}')
            e(f'v_cvt_pk_bf16_f32 {V(a0+1)}, {V(a0+2)}, {V(a0+3)}')
        e(f's_andn2_b64 exec, -1, {S(sMask+2*j,2)}')
        for i in range(4):
            a0 = acc + (i * 4 + j) * 4
            so_ = sO0 if i < 2 else sO1
            e(f'buffer_store_dwordx2 {V(a0,2)}, {V(aQ+2*j)}, {S(srdS,4)}, {S(so_)} offen offset:{(i&1)*RQ}')
        e(f's_mov_b64 exec, {S(sMask+2*j,2)}')
        e(f's_cbranch_execz L_{name}_ns{j}')
        k.opt(True)
        for i in range(4):
            a0 = acc + (i * 4 + j) * 4
            so_ = sO0 if i < 2 else sO1
            e(f'buffer_store_dword {V(a0)}, {V(aQ+2*j)}, {S(srdS,4)}, {S(so_)} offen offset:{(i&1)*RQ}')
            e(f'buffer_store_dword {V(a0+1)}, {V(aQ+2*j+1)}, {S(srdS,4)}, {S(so_)} offen offset:{(i&1)*RQ}')
        k.opt(False)
        k.label(f'L_{name}_ns{j}')
        e('s_mov_b64 exec, -1')
    if stamps:
        stamp()
        e('s_waitcnt vmcnt(0)')
        stamp()
        emit_stamp_dump(k, e, sStamp, nst, srdW, s_x, sT, sW, tmp, int(stamps) - 1)
    e('s_endpgm')

    k.label(f'L_{name}_v')
    k.reset_state()
    t = tmp + 40
    e(f'''
    s_sub_u32 {S(sSec)}, {S(sC64)}, 18
    s_lshl_b32 {S(sSec)}, {S(sSec)}, 6
    v_and_b32 {V(t)}, 15, v0
    v_add_u32 {V(t)}, {S(sSec)}, {V(t)}
    v_lshrrev_b32 {V(t+1)}, 4, v0
    s_lshl_b32 {S(sT)}, {S(sTW)}, 5
    s_lshl_b32 {S(sSt)}, {S(sM)}, 2
    s_lshl_b32 {S(sT2)}, {S(sTW)}, 1
    s_add_u32 {S(sSt)}, {S(sSt)}, {S(sT2)}
    s_add_u32 {S(sO0)}, {S(sSt)}, {S(sCW)}
    s_sub_u32 {S(sO1)}, 1, {S(sCW)}
    s_add_u32 {S(sO1)}, {S(sO1)}, {S(sSt)}
    ''')
    for j in range(4):
        e(f'''
        s_xor_b32 {S(sT2)}, {S(sT)}, {16*j}
        v_add_u32 {V(t+2)}, {S(sT2)}, {V(t)}
        v_mul_u32_u24 {V(t+3)}, 3641, {V(t+2)}
        v_lshrrev_b32 {V(t+3)}, 16, {V(t+3)}
        v_mul_u32_u24 {V(t+4)}, 18, {V(t+3)}
        v_sub_u32 {V(t+4)}, {V(t+2)}, {V(t+4)}
        v_cmp_lt_u32 vcc, 15, {V(t+4)}
        v_lshlrev_b32 {V(t+3)}, 6, {V(t+3)}
        ''')
        for c in range(2):
            sc = sO0 if c == 0 else sO1
            e(f'''
            v_add_u32 {V(t+5)}, {S(sc)}, {V(t+3)}
            v_lshlrev_b32 {V(t+6)}, 10, {V(t+5)}
            v_lshl_add_u32 {V(t+6)}, {V(t+1)}, 8, {V(t+6)}
            v_lshl_add_u32 {V(t+6)}, {V(t+4)}, 4, {V(t+6)}
            v_add_u32 {V(t+6)}, {VF}, {V(t+6)}
            v_mul_u32_u24 {V(t+7)}, {RV}, {V(t+5)}
            v_lshl_add_u32 {V(t+7)}, {V(t+1)}, 5, {V(t+7)}
            v_lshl_add_u32 {V(t+7)}, {V(t+4)}, 4, {V(t+7)}
            v_add_u32 {V(t+7)}, {VT-256}, {V(t+7)}
            v_cndmask_b32 {V(t+8+2*j+c)}, {V(t+6)}, {V(t+7)}, vcc
            ''')
    stats_addr()
    e(f'''
    v_lshrrev_b32 {V(tmp)}, 4, v0
    v_lshlrev_b32 {V(tmp)}, 4, {V(tmp)}
    s_lshl_b32 {S(sT)}, {S(sTW)}, 8
    s_lshl_b32 {S(sT2)}, {S(sCW)}, 7
    s_add_u32 {S(sT)}, {S(sT)}, {STL}
    s_add_u32 {S(sTmpO)}, {S(sT)}, {S(sT2)}
    v_add_u32 {V(adr+2)}, {S(sTmpO)}, {V(tmp)}
    s_sub_u32 {S(sT2)}, 128, {S(sT2)}
    s_add_u32 {S(sTmpO)}, {S(sT)}, {S(sT2)}
    v_add_u32 {V(adr+3)}, {S(sTmpO)}, {V(tmp)}
    v_and_b32 {V(tmp)}, 15, v0
    v_lshlrev_b32 {V(tmp)}, 2, {V(tmp)}
    s_lshl_b32 {S(sT)}, {S(sCW)}, 8
    s_lshl_b32 {S(sT2)}, {S(sTW)}, 7
    s_add_u32 {S(sT)}, {S(sT)}, {STL+1024}
    s_add_u32 {S(sTmpO)}, {S(sT)}, {S(sT2)}
    v_add_u32 {V(adr+4)}, {S(sTmpO)}, {V(tmp)}
    s_sub_u32 {S(sT2)}, 128, {S(sT2)}
    s_add_u32 {S(sTmpO)}, {S(sT)}, {S(sT2)}
    v_add_u32 {V(adr+5)}, {S(sTmpO)}, {V(tmp)}
    ''')
    mainloop(1)
    aV = t + 8
    stats_finish()
    e(f's_cmp_ge_u32 {S(sC64)}, 27')
    e(f's_cbranch_scc1 L_{name}_x')
    st = tmp
    for i in range(4):
        va = adr + 2 + (i >> 1)
        e(f'ds_read_b128 {V(st+4*i,4)}, {V(va)} offset:{(i&1)*64}')
        e(f'ds_read_b128 {V(st+16+4*i,4)}, {V(va)} offset:{512+(i&1)*64}')
    for j in range(4):
        va = adr + 4 + (j >> 1)
        e(f'ds_read_b32 {V(st+32+j)}, {V(va)} offset:{(j&1)*64}')
    for j in range(4):
        for c in range(2):
            pk = wf + (j * 2 + c) * 4
            for hf in range(2):
                i = 2 * c + hf
                a0 = acc + (i * 4 + j) * 4
                for r in range(4):
                    e(f'v_fma_f32 {V(a0+r)}, {V(st+32+j)}, {V(st+4*i+r)}, {V(a0+r)}')
                for r in range(4):
                    e(f'v_mul_f32 {V(a0+r)}, {V(a0+r)}, {V(st+16+4*i+r)}')
                e(f'v_cvt_pk_bf16_f32 {V(pk+2*hf)}, {V(a0)}, {V(a0+1)}')
                e(f'v_cvt_pk_bf16_f32 {V(pk+2*hf+1)}, {V(a0+2)}, {V(a0+3)}')
            e(f'buffer_store_dwordx4 {V(pk,4)}, {V(aV+2*j+c)}, {S(srdS,4)}, 0 offen')
    k.label(f'L_{name}_x')
    e('s_endpgm')
    k.label(f'L_{name}_pf')
    k.clear_state()
    e(f'''
    s_load_dwordx2 {S(s_x,2)}, s[0:1], {KA_WO}
    s_load_dwordx2 {S(s_ws,2)}, s[0:1], {KA_WS}
    s_sub_u32 {S(sT)}, s2, 224
    s_lshl_b32 {S(sT)}, {S(sT)}, 2
    s_add_u32 {S(sT)}, {S(sT)}, {S(sW)}
    v_lshrrev_b32 v1, 3, v0
    v_mul_u32_u24 v2, 1152, v1
    v_and_b32 v3, 7, v0
    v_lshl_add_u32 v2, v3, 4, v2
    s_mul_i32 {S(sT2)}, {S(sT)}, {8*1152}
    s_mov_b32 {S(sOne)}, {16*RQ + 576}
    s_waitcnt lgkmcnt(0)
    s_mov_b32 {S(srdX)}, {S(s_x)}
    s_mov_b32 {S(srdX+1)}, {S(s_x+1)}
    s_mov_b32 {S(srdX+2)}, {576*1152}
    s_mov_b32 {S(srdX+3)}, 0x00020000
    s_mov_b32 {S(srdS)}, {S(s_ws)}
    s_mov_b32 {S(srdS+1)}, {S(s_ws+1)}
    s_mov_b32 {S(srdS+2)}, {WS_USED}
    s_mov_b32 {S(srdS+3)}, 0x00020000
    ''')
    for i in range(9):
        e(f'buffer_load_dwordx4 {V(16+4*i,4)}, v2, {S(srdX,4)}, {S(sT2)} offen offset:{i*128}')
    e(f'''
    v_mov_b32 v60, 0
    v_mov_b32 v61, 0
    v_mov_b32 v62, 0
    v_mov_b32 v63, 0
    v_mov_b32 v64, 0x3f803f80
    v_mov_b32 v65, 0x3f803f80
    v_mov_b32 v66, 0x3f803f80
    v_mov_b32 v67, 0x3f803f80
    s_lshl_b32 {S(sM)}, {S(sT)}, 6
    v_add_u32 v56, {S(sM)}, v0
    v_lshrrev_b32 v57, 7, v56
    v_and_b32 v58, 127, v56
    v_mul_u32_u24 v57, {HS}, v57
    v_mul_u32_u24 v58, {RQ}, v58
    v_add3_u32 v57, v57, v58, {S(sOne)}
    buffer_store_dwordx4 v[60:63], v57, {S(srdS,4)}, 0 offen
    v_mul_u32_u24 v58, {RV}, v56
    v_add_u32 v58, {VT + 128}, v58
    s_cmp_ge_u32 {S(sT)}, 32
    s_cbranch_scc1 L_{name}_nov
    ''')
    k.opt(True)
    e(f'buffer_store_dwordx4 v[64:67], v58, {S(srdS,4)}, 0 offen')
    k.opt(False)
    k.label(f'L_{name}_nov')
    e(f'''
    s_sub_u32 {S(sM)}, s2, 224
    s_mul_i32 {S(sM)}, {S(sM)}, {HS}
    s_add_u32 {S(sM)}, {S(sM)}, {KF}
    s_lshl_b32 {S(sN)}, {S(sW)}, 6
    v_add_u32 v56, {S(sN)}, v0
    v_mov_b32 v69, 0
    v_mov_b32 v70, 0
    v_mov_b32 v71, 0
    v_mov_b32 v73, 0
    v_mov_b32 v74, 0
    v_mov_b32 v75, 0
    v_mov_b32 v77, 0
    v_mov_b32 v78, 0
    v_mov_b32 v79, 0
    v_mov_b32 v59, 0xff7f
    ''')
    for i in range(3):
        e(f'''
        v_mul_u32_u24 v57, 1772, v56
        v_lshrrev_b32 v57, 16, v57
        v_mul_u32_u24 v57, 37, v57
        v_sub_u32 v57, v56, v57
        v_cmp_eq_u32 vcc, 36, v57
        v_cndmask_b32 {V(68+4*i)}, 0, v59, vcc
        v_lshlrev_b32 {V(80+i)}, 4, v56
        v_cmp_gt_u32 vcc, 0x250, v56
        s_and_saveexec_b64 {S(sMask+2,2)}, vcc
        s_cbranch_execz L_{name}_dk{i}
        ''')
        k.opt(True)
        e(f'buffer_store_dwordx4 {V(68+4*i,4)}, {V(80+i)}, {S(srdS,4)}, {S(sM)} offen')
        k.opt(False)
        k.label(f'L_{name}_dk{i}')
        e('s_mov_b64 exec, -1')
        e('v_add_u32 v56, 256, v56')
    e(f's_cmp_ge_u32 {S(sT)}, 72')
    e(f's_cbranch_scc1 L_{name}_x')
    e(f'''
    s_lshl_b32 {S(sT)}, {S(sT)}, 3
    v_add_u32 v1, {S(sT)}, v1
    v_lshrrev_b32 v4, 5, v1
    v_lshlrev_b32 v5, 6, v4
    v_bfe_u32 v4, v1, 2, 2
    v_lshl_add_u32 v5, v4, 4, v5
    v_bfe_u32 v4, v1, 4, 1
    v_lshl_add_u32 v5, v4, 3, v5
    v_and_b32 v4, 3, v1
    v_lshl_add_u32 v5, v4, 1, v5
    v_add_u32 v5, {WB}, v5
    v_mov_b32 v6, 0
    v_mov_b32 v7, 0
    v_cmp_eq_u32 {S(sMask,2)}, 0, v3
    ''')
    for i in range(36):
        e(f'v_lshlrev_b32 v8, 16, {V(16+i)}')
        e(f'v_and_b32 v9, 0xffff0000, {V(16+i)}')
        e(f'v_add_f32 v6, v6, v8')
        e(f'v_add_f32 v7, v7, v9')
    e(f'''
    v_add_f32 v6, v6, v7
    v_add_f32_dpp v7, v6, v6 quad_perm:[1,0,3,2] row_mask:0xf bank_mask:0xf
    v_add_f32_dpp v6, v7, v7 quad_perm:[2,3,0,1] row_mask:0xf bank_mask:0xf
    v_add_f32_dpp v7, v6, v6 row_half_mirror row_mask:0xf bank_mask:0xf
    v_mul_f32 v7, {F(1.0/576)}, v7
    v_cvt_pk_bf16_f32 v8, v7, v7
    v_lshlrev_b32 v9, 16, v8
    v_sub_f32 v7, v7, v9
    v_cvt_pk_bf16_f32 v9, v7, v7
    s_mov_b64 exec, {S(sMask,2)}
    buffer_store_short v8, v5, {S(srdS,4)}, 0 offen
    buffer_store_short v9, v5, {S(srdS,4)}, 0 offen offset:1152
    s_endpgm
    ''')
    return k
```

```python
from asmb import *
from layout import *
from k4 import F
from k4 import emit_stamp_dump
from pf import pf_gate_up

NEG_BIG = 0xFF7FFFFF


def row_max(x, t):
    return [f'v_mov_b32 {V(t)}, {V(x)}',
            f'v_permlane16_swap_b32 {V(x)}, {V(t)}',
            f'v_max_f32 {V(x)}, {V(x)}, {V(t)}',
            f'v_mov_b32 {V(t)}, {V(x)}',
            f'v_permlane32_swap_b32 {V(x)}, {V(t)}',
            f'v_max_f32 {V(x)}, {V(x)}, {V(t)}']


def build_k2(name='k2_kernel', stamps=False, colsum=False, prefetch=True, pf_n=2, pf_lanes=45, pf_late=True, code_pf=None, n_early=0, pf_u=(0, 9), pf_wd=False, fused=False, via_lds=False):
    k = Kernel(name)
    k.lds = 1024
    k.ns = 3
    s_ws = k.s(2, 2)
    s_wg = k.s(4, 4)
    srdS = k.s(4, 4)
    srdW = k.s(4, 4)
    sW = k.s(); sH = k.s(); sQB = k.s(); sT = k.s(); sT2 = k.s()
    sK = k.s(4); sQ = k.s(); sV = k.s(3); sV2 = k.s(); sO = k.s()
    sB = k.s(4)
    s_p8 = k.s(8, 4); srdP = k.s(12, 4)
    k.nv = 1
    vL16 = k.v(); vTail = k.v(); vV2 = k.v()
    vO = k.v(3)
    mdiag = k.v(4, 4); mfirst = k.v(4, 4)
    cq = k.v(12, 4)
    NS = 6
    sb = k.v(NS * 4, 4)
    pb = k.v(8, 4)
    o1 = k.v(4, 4); o2 = k.v(4, 4)
    vm = k.v(2)
    tmp = k.v(8, 4)
    vP = k.v(7)
    ores = k.v(12)
    vPc = k.v(2, 2)
    Kf = k.a(80, 4); V1 = k.a(40, 4); V2 = k.a(40, 4)
    Qf = k.v(16, 4)
    cq2 = k.v(12, 4); sb2 = k.v(NS * 4, 4); tm2 = k.v()
    e = k.e
    sStamp = k.s(24, 2) if stamps else None
    nst = [0]

    def stamp():
        if stamps:
            e(f's_memtime {S(sStamp + 2*nst[0], 2)}'); e('s_waitcnt lgkmcnt(0)'); nst[0] += 1
    e(f'''
    s_cmp_ge_u32 s2, 256
    s_cbranch_scc1 L_{name}_cs
    s_load_dwordx2 {S(s_ws,2)}, s[0:1], {KA_WS}
    s_load_dwordx8 {S(s_p8,8)}, s[0:1], {KA_WG if fused else KA_WO}
    v_lshrrev_b32 {V(tmp)}, 6, v0
    v_and_b32 v0, 63, v0
    v_readfirstlane_b32 {S(sW)}, {V(tmp)}
    v_lshlrev_b32 {V(vL16)}, 4, v0
    s_and_b32 {S(sT)}, s2, 7
    s_lshr_b32 {S(sT2)}, s2, 3
    s_lshl_b32 {S(sH)}, {S(sT)}, 2
    s_and_b32 {S(sT)}, {S(sT2)}, 3
    s_add_u32 {S(sH)}, {S(sH)}, {S(sT)}
    s_lshr_b32 {S(sQB)}, {S(sT2)}, 2
    s_lshl_b32 {S(sQB)}, {S(sQB)}, 2
    s_add_u32 {S(sQB)}, {S(sQB)}, {S(sW)}
    ''')
    stamp()
    if stamps:
        e(f's_memrealtime {S(sStamp+20,2)}')
    e(f'''
    s_mul_i32 {S(sT)}, {S(sH)}, 144
    s_lshl_b32 {S(sT2)}, {S(sQB)}, 2
    s_add_u32 {S(sT)}, {S(sT)}, {S(sT2)}
    s_mul_i32 {S(sQ)}, {S(sT)}, {RQ}
    s_add_u32 {S(sK)}, {S(sQ)}, {KF}
    s_add_u32 {S(sK+1)}, {S(sK)}, {6*RQ}
    s_add_u32 {S(sK+2)}, {S(sK)}, {12*RQ}
    s_add_u32 {S(sK+3)}, {S(sK)}, {18*RQ}
    s_add_u32 {S(sQ)}, {S(sQ)}, {QF + 16*RQ}
    s_lshl_b32 {S(sT)}, {S(sH)}, 6
    s_lshl_b32 {S(sT2)}, {S(sQB)}, 1
    s_add_u32 {S(sT)}, {S(sT)}, {S(sT2)}
    s_lshl_b32 {S(sV)}, {S(sT)}, 10
    s_add_u32 {S(sV)}, {S(sV)}, {VF - 8*1024}
    s_add_u32 {S(sV+1)}, {S(sV)}, 4096
    s_add_u32 {S(sV+2)}, {S(sV)}, 8192
    s_mul_i32 {S(sV2)}, {S(sT)}, {RV}
    s_add_u32 {S(sV2)}, {S(sV2)}, {VT - 8*RV}
    s_mul_i32 {S(sO)}, {S(sQB)}, {4*18*1024}
    s_add_u32 {S(sO)}, {S(sO)}, {OF}
    v_lshlrev_b32 {V(vTail)}, 2, v0
    v_add_u32 {V(vTail)}, {512-128}, {V(vTail)}
    v_min_u32 {V(vTail)}, 576, {V(vTail)}
    v_cmp_gt_u32 vcc, 32, v0
    v_lshrrev_b32 {V(tmp)}, 4, v0
    v_lshlrev_b32 {V(vV2)}, 5, {V(tmp)}
    v_cndmask_b32 {V(vTail)}, {V(vTail)}, {V(vL16)}, vcc
    v_and_b32 {V(tmp+1)}, 1, v0
    v_lshl_add_u32 {V(vV2)}, {V(tmp+1)}, 4, {V(vV2)}
    v_and_b32 {V(tmp+1)}, 14, v0
    v_cmp_eq_u32 vcc, 0, {V(tmp+1)}
    v_mov_b32 {V(tmp+2)}, 128
    s_waitcnt lgkmcnt(0)
    v_cndmask_b32 {V(vV2)}, {V(tmp+2)}, {V(vV2)}, vcc
    s_mov_b32 {S(srdS)}, {S(s_ws)}
    s_mov_b32 {S(srdS+1)}, {S(s_ws+1)}
    s_mov_b32 {S(srdS+2)}, {WS_USED}
    s_mov_b32 {S(srdS+3)}, 0x00020000
    ''')

    def ldK(i):
        so, off = sK + i // 6, (i % 6) * RQ
        return f'buffer_load_dwordx4 {A(Kf+4*i,4)}, {V(vTail)}, {S(srdS,4)}, {S(so)} offen offset:{off}'

    def ldQ(j):
        return f'buffer_load_dwordx4 {V(Qf+4*j,4)}, {V(vTail)}, {S(srdS,4)}, {S(sQ)} offen offset:{j*RQ}'

    def ldV1(c):
        return f'buffer_load_dwordx4 {A(V1+4*c,4)}, {V(vL16)}, {S(srdS,4)}, {S(sV + c//4)} offen offset:{(c%4)*1024}'

    def ldV2(c):
        return f'buffer_load_dwordx4 {A(V2+4*c,4)}, {V(vV2)}, {S(srdS,4)}, {S(sV2)} offen offset:{c*RV}'
    EX_ALL = 's_mov_b64 exec, -1'
    sEx = k.s(4, 2)
    e(f's_mov_b32 {S(sEx)}, 0'); e(f's_mov_b32 {S(sEx+1)}, -1')
    e(f's_mov_b32 {S(sEx+2)}, 0'); e(f's_mov_b32 {S(sEx+3)}, 0xffff0000')
    if via_lds:
        LK, LQ, LV, LT = 0, 19 * 1024, 29 * 1024, 45 * 1024
        k.lds = 48 * 1024
        sG = k.s(4); sMw = k.s()
        e(f'''
        s_mul_i32 {S(sT)}, {S(sW)}, {4*RQ}
        s_lshl_b32 {S(sMw)}, {S(sW)}, 10
        s_sub_u32 {S(sG)}, {S(sK)}, {S(sT)}
        s_add_u32 {S(sG)}, {S(sG)}, {S(sMw)}
        s_sub_u32 {S(sG+1)}, {S(sQ)}, {S(sT)}
        s_add_u32 {S(sG+1)}, {S(sG+1)}, {S(sMw)}
        s_sub_u32 {S(sG+2)}, {S(sV)}, {S(sMw)}
        s_mul_i32 {S(sT2)}, {S(sW)}, {2*RV}
        s_sub_u32 {S(sG+3)}, {S(sV2)}, {S(sT2)}
        s_add_u32 {S(sG+3)}, {S(sG+3)}, {S(sMw)}
        ''')

        def dma(base, lds0, i, tag, limit=None):
            o = [f's_add_u32 m0, {S(sMw)}, {lds0 + i*4096}', f's_add_u32 {S(sO2)}, {S(base)}, {i*4096}']
            for x in o:
                e(x)
            if limit is not None:
                e(f's_cmp_ge_u32 {S(sW)}, {limit}')
                e(f's_cbranch_scc1 L_{name}_d{tag}{i}')
                k.opt(True)
            e(f'buffer_load_dwordx4 {V(vL16)}, {S(srdS,4)}, {S(sO2)} offen lds', tag=tag)
            if limit is not None:
                k.opt(False)
                k.label(f'L_{name}_d{tag}{i}')
        sO2 = k.s()
        dma(sG, LK, 4, 'a', 3)
        dma(sG + 1, LQ, 2, 'a', 2)
        for i in range(4):
            dma(sG, LK, i, 'a')
        for i in range(2):
            dma(sG + 1, LQ, i, 'a')
        dma(sG + 3, LT, 0, 'b', 3)
        for i in range(4):
            dma(sG + 2, LV, i, 'b')
        vKm = k.v(); vKt = k.v(); vVm = k.v(); vVt = k.v()
        e(f'''
        s_mul_i32 {S(sT)}, {S(sW)}, {4*RQ}
        v_cmp_gt_u32 vcc, 32, v0
        v_mov_b32 {V(tmp+2)}, 576
        v_cndmask_b32 {V(vKm)}, {V(tmp+2)}, {V(vL16)}, vcc
        v_add_u32 {V(vKm)}, {S(sT)}, {V(vKm)}
        v_add_u32 {V(vKt)}, {S(sT)}, {V(vTail)}
        s_lshl_b32 {S(sT)}, {S(sW)}, 11
        v_add_u32 {V(vVm)}, {S(sT)}, {V(vL16)}
        s_mul_i32 {S(sT)}, {S(sW)}, {2*RV}
        v_add_u32 {V(vVt)}, {S(sT)}, {V(vV2)}
        s_mov_b32 {S(sEx+1)}, 0xffff
        ''')
        rdA = [f'ds_read_b128 {V(Qf+4*j,4)}, {V(vKm)} offset:{LQ + j*RQ}' for j in range(4)]
        rdA += [f'ds_read_b128 {A(Kf+4*i,4)}, {V(vKm)} offset:{LK + i*RQ}' for i in range(20)]
        rdA += ['s_waitcnt lgkmcnt(0)', f's_mov_b64 exec, {S(sEx,2)}']
        rdA += [f'ds_read_b32 {V(Qf+4*j)}, {V(vKt)} offset:{LQ + j*RQ}' for j in range(4)]
        rdA += [f'ds_read_b32 {A(Kf+4*i)}, {V(vKt)} offset:{LK + i*RQ}' for i in range(20)]
        rdA += [f's_mov_b64 exec, {S(sEx+2,2)}'] + [f'v_mov_b32 {V(Qf+4*j)}, 0x3f80' for j in range(4)] + [EX_ALL]
        rdB = []
        for c in range(10):
            rdB += [f'ds_read_b128 {A(V1+4*c,4)}, {V(vVm)} offset:{LV + c*1024}', f'ds_read_b128 {A(V2+4*c,4)}, {V(vVt)} offset:{LT + c*RV}']
        rest = []
    else:
        for j in range(4):
            e(ldQ(j))
        for i in range(17):
            e(ldK(i))
        rest = []
        for c in range(9):
            rest += [ldV1(c), ldV2(c)]
            if c == 1:
                rest.append(ldK(17))
        rest += [ldK(18), ldK(19), ldV1(9), ldV2(9)]
        for r_ in rest[:n_early]:
            e(r_)
        rest = rest[n_early:]
    e(f'''
    v_lshrrev_b32 {V(tmp)}, 4, v0
    v_lshlrev_b32 {V(tmp)}, 2, {V(tmp)}
    v_and_b32 {V(tmp+1)}, 15, v0
    v_mov_b32 {V(tmp+2)}, {hex(NEG_BIG)}
    ''')
    for r in range(4):
        e(f'v_add_u32 {V(tmp+3)}, {r}, {V(tmp)}')
        e(f'v_cmp_gt_u32 vcc, {V(tmp+3)}, {V(tmp+1)}')
        e(f'v_cndmask_b32 {V(mdiag+r)}, 0, {V(tmp+2)}, vcc')
        e(f'v_cndmask_b32 {V(mfirst+r)}, {V(tmp+2)}, {V(tmp+4)}, vcc' if False else f'v_sub_f32 {V(mfirst+r)}, {V(tmp+2)}, {V(mdiag+r)}')
    e(f's_mul_i32 {S(sT)}, {S(sH)}, 18')
    for i in range(3):
        if i < 2:
            e(f'v_add_u32 {V(tmp+3)}, {S(sT)}, {V(tmp)}')
            if i:
                e(f'v_add_u32 {V(tmp+3)}, 2, {V(tmp+3)}')
        else:
            e(f's_add_u32 {S(sT)}, {S(sT)}, 16')
            e(f'v_mov_b32 {V(tmp+3)}, {S(sT)}')
        e(f'''
        v_lshrrev_b32 {V(tmp+4)}, 5, {V(tmp+3)}
        v_lshlrev_b32 {V(vO+i)}, 10, {V(tmp+4)}
        v_bfe_u32 {V(tmp+4)}, {V(tmp+3)}, 2, 2
        v_lshl_add_u32 {V(vO+i)}, {V(tmp+4)}, 8, {V(vO+i)}
        v_lshl_add_u32 {V(vO+i)}, {V(tmp+1)}, 4, {V(vO+i)}
        v_bfe_u32 {V(tmp+4)}, {V(tmp+3)}, 4, 1
        v_lshl_add_u32 {V(vO+i)}, {V(tmp+4)}, 3, {V(vO+i)}
        v_bfe_u32 {V(tmp+4)}, {V(tmp+3)}, 1, 1
        v_lshl_add_u32 {V(vO+i)}, {V(tmp+4)}, 2, {V(vO+i)}
        ''')
    qpatch = [f's_mov_b64 exec, {S(sEx,2)}']
    for j in range(4):
        qpatch += [f'v_mov_b32 {V(Qf+4*j+r)}, 0' for r in (1, 2, 3)]
    qpatch += [f's_mov_b64 exec, {S(sEx+2,2)}'] + [f'v_mov_b32 {V(Qf+4*j)}, 0x3f80' for j in range(4)] + [EX_ALL]
    late = []
    if prefetch:
        from pf import pf_fused
        if fused:
            su, pl = pf_fused(k, sW, 4, s_p8, srdP, sT, sT2, vP, pf_u[0], pf_u[1], pf_wd, 128)
        else:
            su, pl = pf_gate_up(k, sW, s_p8, srdP, sT, sT2, vP, pf_n, pf_lanes)
        e(su)
        if not pf_late:
            late += pl; pl = []

    stamp()
    sidx = [0]
    CQ = [cq, cq2]

    def pass1(j):
        ops = []
        pendv = []
        for i in range(17):
            b = sb2 + (i % NS) * 4
            c = V(mfirst, 4) if i == 0 else V(mdiag, 4) if i == 16 else '0'
            ops.append(f'v_mfma_f32_16x16x32_bf16 {V(b,4)}, {A(Kf+4*(j+i),4)}, {V(Qf+4*j,4)}, {c}')
            m = vm + (i & 1)
            if i < 2:
                va = [f'v_max3_f32 {V(m)}, {V(b)}, {V(b+1)}, {V(b+2)}', f'v_max_f32 {V(m)}, {V(m)}, {V(b+3)}']
            else:
                va = [f'v_max3_f32 {V(m)}, {V(m)}, {V(b)}, {V(b+1)}', f'v_max3_f32 {V(m)}, {V(m)}, {V(b+2)}, {V(b+3)}']
            pendv.append(va)
            if len(pendv) > 3:
                ops += pendv.pop(0)
        for va in pendv:
            ops += va
        ops.append(f'v_max_f32 {V(vm)}, {V(vm)}, {V(vm+1)}')
        ops += row_max(vm, tm2)
        cq = CQ[j % 2]
        for r in range(4):
            ops.append(f'v_sub_f32 {V(cq+r)}, 0, {V(vm)}')
        for r in range(4):
            ops.append(f'v_sub_f32 {V(cq+4+r)}, {V(mdiag+r)}, {V(vm)}')
            ops.append(f'v_sub_f32 {V(cq+8+r)}, {V(mfirst+r)}, {V(vm)}')
        return ops

    def pass2(j):
        ops = []
        c0 = j // 2
        cq = CQ[j % 2]
        stages = []
        for ci in range(9):
            c = c0 + ci
            sm, va = [], []
            p = pb + (ci % 2) * 4
            for hf in range(2):
                kb = 2 * c + hf
                i = kb - j
                if i < 0 or i > 16:
                    va += [f'v_mov_b32 {V(p+2*hf)}, 0', f'v_mov_b32 {V(p+2*hf+1)}, 0']
                    continue
                b = sb + (sidx[0] % NS) * 4; sidx[0] += 1
                cc = cq + (8 if i == 0 else 4 if i == 16 else 0)
                sm.append(f'v_mfma_f32_16x16x32_bf16 {V(b,4)}, {A(Kf+4*kb,4)}, {V(Qf+4*j,4)}, {V(cc,4)}')
                va += [f'v_exp_f32 {V(b+r)}, {V(b+r)}' for r in range(4)]
                va += [f'v_cvt_pk_bf16_f32 {V(p+2*hf+q)}, {V(b+2*q)}, {V(b+2*q+1)}' for q in range(2)]
            ca = '0' if ci == 0 else V(o1, 4)
            cb = '0' if ci == 0 else V(o2, 4)
            pv = [f'v_mfma_f32_16x16x32_bf16 {V(o1,4)}, {A(V1+4*c,4)}, {V(p,4)}, {ca}',
                  f'v_mfma_f32_16x16x32_bf16 {V(o2,4)}, {A(V2+4*c,4)}, {V(p,4)}, {cb}']
            stages.append((sm, va, pv))
        ops += stages[0][0]
        for ci in range(9):
            if ci + 1 < 9:
                ops += stages[ci + 1][0]
            va = list(stages[ci][1])
            if ci > 0:
                ops += va[:2] + stages[ci - 1][2] + va[2:]
            else:
                ops += va
        ops += ['s_nop 1'] + stages[8][2]
        return ops

    def final(j):
        t = tmp
        r0 = ores + 3 * j
        ops = [f'v_rcp_f32 {V(t)}, {V(o2+2)}']
        ops += [f'v_mul_f32 {V(o1+r)}, {V(o1+r)}, {V(t)}' for r in range(4)]
        ops += [f'v_mul_f32 {V(o2+r)}, {V(o2+r)}, {V(t)}' for r in range(2)]
        ops += [f'v_cvt_pk_bf16_f32 {V(r0)}, {V(o1)}, {V(o1+1)}', f'v_cvt_pk_bf16_f32 {V(r0+1)}, {V(o1+2)}, {V(o1+3)}',
                f'v_cvt_pk_bf16_f32 {V(r0+2)}, {V(o2)}, {V(o2+1)}']
        return ops

    def stores():
        ops = []
        for j in range(4):
            ops.append(f's_add_u32 {S(sK+0)}, {S(sO)}, {18*1024*j}')
            ops += [f'buffer_store_dword {V(ores+3*j)}, {V(vO)}, {S(srdS,4)}, {S(sK)} offen',
                    f'buffer_store_dword {V(ores+3*j+1)}, {V(vO+1)}, {S(srdS,4)}, {S(sK)} offen']
        ops.append('s_mov_b64 exec, 0xffff')
        for j in range(4):
            ops.append(f's_add_u32 {S(sK+0)}, {S(sO)}, {18*1024*j}')
            ops.append(f'buffer_store_dword {V(ores+3*j+2)}, {V(vO+2)}, {S(srdS,4)}, {S(sK)} offen')
        ops.append(EX_ALL)
        return ops

    if via_lds:
        k.wait_vm(['a'])
        e('s_barrier')
        e('\n'.join(rdA))
        p1 = pass1(0)
        e('\n'.join(p1[:24]))
        k.wait_vm(['b'])
        e('s_barrier')
        e('\n'.join(interleave(p1[24:60], rdB) + p1[60:]))
    else:
        e('\n'.join(qpatch))
        e('\n'.join(interleave(pass1(0)[:50], rest) + pass1(0)[50:]))
    stamp()
    for j in range(4):
        p2 = pass2(j)
        if j > 0:
            p2 = p2[:3] + final(j - 1) + p2[3:]
        if j < 3:
            p2 = interleave(p2, pass1(j + 1))
        e('\n'.join(p2))
        if j == 0:
            stamp()
            if prefetch and pl:
                e('s_waitcnt vmcnt(0)')
                if code_pf:
                    from pf import pf_code
                    e(f's_lshr_b32 {S(sT2)}, s2, 3')
                    e(f's_lshl_b32 {S(sT2)}, {S(sT2)}, 2')
                    e(f's_add_u32 {S(sT2)}, {S(sT2)}, {S(sW)}')
                    e(f's_and_b32 {S(sT2)}, {S(sT2)}, 15')
                    pf_code(k, code_pf[0], code_pf[1], s_wg, sT2, sT, s_wg + 2, vPc)
                e('\n'.join(pl))
    e('\n'.join(final(3)))
    e('\n'.join(stores()))
    if stamps:
        stamp()
        e('s_waitcnt vmcnt(0)')
        stamp()
        emit_stamp_dump(k, e, sStamp, nst, srdW, s_wg, sT, sW, tmp, int(stamps) - 1)
    e('s_endpgm')

    k.label(f'L_{name}_cs')
    if not colsum:
        e('s_endpgm')
        return k
    ld = 4
    e(f'''
    s_sub_u32 {S(sT)}, s2, 256
    s_cmp_ge_u32 {S(sT)}, 144
    s_cbranch_scc1 L_{name}_end
    s_load_dwordx2 {S(s_ws,2)}, s[0:1], {KA_WS}
    s_load_dwordx4 {S(s_wg,4)}, s[0:1], {KA_WG}
    v_lshrrev_b32 v1, 6, v0
    v_and_b32 v0, 63, v0
    v_readfirstlane_b32 {S(sW)}, v1
    s_and_b32 {S(sT2)}, {S(sT)}, 3
    s_mul_i32 {S(sT2)}, {S(sT2)}, 18
    s_lshr_b32 {S(sH)}, {S(sT)}, 3
    s_add_u32 {S(sT2)}, {S(sT2)}, {S(sH)}
    s_bfe_u32 {S(sH)}, {S(sT)}, 0x10002
    v_lshrrev_b32 v1, 3, v0
    v_mul_u32_u24 v1, 9216, v1
    v_and_b32 v2, 7, v0
    v_lshl_add_u32 v1, v2, 4, v1
    s_mul_i32 {S(sQ)}, {S(sW)}, {144*9216}
    s_lshl_b32 {S(sT)}, {S(sT2)}, 7
    s_add_u32 {S(sQ)}, {S(sQ)}, {S(sT)}
    s_waitcnt lgkmcnt(0)
    s_cmp_eq_u32 {S(sH)}, 0
    s_cselect_b32 {S(srdW)}, {S(s_wg)}, {S(s_wg+2)}
    s_cselect_b32 {S(srdW+1)}, {S(s_wg+1)}, {S(s_wg+3)}
    s_mov_b32 {S(srdW+2)}, {576*9216}
    s_mov_b32 {S(srdW+3)}, 0x00020000
    s_mov_b32 {S(srdS)}, {S(s_ws)}
    s_mov_b32 {S(srdS+1)}, {S(s_ws+1)}
    s_mov_b32 {S(srdS+2)}, {WS_USED}
    s_mov_b32 {S(srdS+3)}, 0x00020000
    ''')
    for i in range(18):
        e(f'buffer_load_dwordx4 {A(4*i,4)}, v1, {S(srdW,4)}, {S(sQ)} offen')
        if i < 17:
            e(f's_add_u32 {S(sQ)}, {S(sQ)}, {8*9216}')
    ac = 8
    for q in range(8):
        e(f'v_mov_b32 {V(ac+q)}, 0')
    for i in range(18):
        for q in range(4):
            e(f'v_accvgpr_read_b32 {V(16+q)}, {A(4*i+q)}')
        for q in range(4):
            e(f'v_lshlrev_b32 {V(20+q)}, 16, {V(16+q)}')
            e(f'v_and_b32 {V(16+q)}, 0xffff0000, {V(16+q)}')
        for q in range(4):
            e(f'v_add_f32 {V(ac+2*q)}, {V(ac+2*q)}, {V(20+q)}')
            e(f'v_add_f32 {V(ac+2*q+1)}, {V(ac+2*q+1)}, {V(16+q)}')
    for q in range(8):
        e(f'v_add_f32_dpp {V(16+q)}, {V(ac+q)}, {V(ac+q)} row_ror:8 row_mask:0xf bank_mask:0xf')
    for q in range(8):
        x, t = 16 + q, 24 + q
        e(f'''
        v_mov_b32 {V(t)}, {V(x)}
        v_permlane16_swap_b32 {V(x)}, {V(t)}
        v_add_f32 {V(x)}, {V(x)}, {V(t)}
        v_mov_b32 {V(t)}, {V(x)}
        v_permlane32_swap_b32 {V(x)}, {V(t)}
        v_add_f32 {V(x)}, {V(x)}, {V(t)}
        ''')
    e(f'''
    v_lshlrev_b32 v1, 5, v2
    s_lshl_b32 {S(sT)}, {S(sW)}, 8
    v_add_u32 v1, {S(sT)}, v1
    s_mov_b64 exec, 0xff
    ds_write_b128 v1, v[16:19]
    ds_write_b128 v1, v[20:23] offset:16
    s_mov_b64 exec, -1
    s_waitcnt lgkmcnt(0)
    s_barrier
    s_cmp_lg_u32 {S(sW)}, 0
    s_cbranch_scc1 L_{name}_end
    v_lshlrev_b32 v1, 2, v0
    ds_read_b32 v4, v1
    ds_read_b32 v5, v1 offset:256
    ds_read_b32 v6, v1 offset:512
    ds_read_b32 v7, v1 offset:768
    s_mul_i32 {S(sT)}, {S(sH)}, {4608*4}
    s_lshl_b32 {S(sT2)}, {S(sT2)}, 8
    s_add_u32 {S(sT)}, {S(sT)}, {S(sT2)}
    s_add_u32 {S(sT)}, {S(sT)}, {CS}
    v_add_f32 v4, v4, v5
    v_add_f32 v6, v6, v7
    v_add_f32 v4, v4, v6
    buffer_store_dword v4, v1, {S(srdS,4)}, {S(sT)} offen
    ''')
    k.label(f'L_{name}_end')
    e('s_endpgm')
    return k
```

```python
from asmb import *
from layout import *
from k4 import F, bf16_round
from k4 import emit_stamp_dump


def row_reduce(x, t):
    return [f'v_mov_b32 {V(t)}, {V(x)}',
            f'v_permlane16_swap_b32 {V(x)}, {V(t)}',
            f'v_add_f32 {V(x)}, {V(x)}, {V(t)}',
            f'v_mov_b32 {V(t)}, {V(x)}',
            f'v_permlane32_swap_b32 {V(x)}, {V(t)}',
            f'v_add_f32 {V(x)}, {V(x)}, {V(t)}']


def build_k3(name='k3_kernel', stamps=False, extra=None, pf_u=(9, 9), pf_wd=False, pf_rest=None, early1=False):
    k = Kernel(name)
    XL = 75 * 1024
    WBL = XL + 10 * 1024
    k.lds = WBL + 3 * 1024
    k.ns = 3
    s_x = k.s(2, 2); s_wo = k.s(2, 2); s_ws = k.s(2, 2)
    s_p8 = k.s(8, 4)
    srdW = k.s(4, 4); srdS = k.s(4, 4); srdX = k.s(4, 4); srdH = k.s(4, 4)
    sW = k.s(); sM = k.s(); sN = k.s(); sT = k.s(); sT2 = k.s(); sTb = k.s()
    sM0 = k.s(); sRow = k.s(); sTok = k.s()
    k.nv = 1
    vL16 = k.v(); vDma = k.v(); vX = k.v()
    vA = k.v(4)
    acc = k.v(16, 4)
    accm = k.v(4, 4)
    wb = k.v(8, 4)
    vWb = k.v(); vMx = k.v()
    wf = k.v(32, 4)
    tmp = k.v(24, 4)
    tok = k.v(72, 4)
    e = k.e
    sStamp = k.s(24, 2) if stamps else None
    nst = [0]

    def stamp():
        if stamps:
            e(f's_memtime {S(sStamp + 2*nst[0], 2)}'); e('s_waitcnt lgkmcnt(0)'); nst[0] += 1
    e(f'''
    s_and_b32 {S(sT)}, s2, 7
    s_lshr_b32 {S(sT2)}, s2, 3
    s_mul_i32 {S(sT)}, {S(sT)}, 30
    s_add_u32 {S(sT)}, {S(sT)}, {S(sT2)}
    s_cmp_ge_u32 s2, 240
    s_cbranch_scc1 L_{name}_x
    s_cmp_ge_u32 {S(sT)}, 234
    s_cbranch_scc1 L_{name}_end
    s_load_dwordx2 {S(s_x,2)}, s[0:1], {KA_X}
    s_load_dwordx2 {S(s_wo,2)}, s[0:1], {KA_WO}
    s_load_dwordx2 {S(s_ws,2)}, s[0:1], {KA_WS}
    s_load_dwordx8 {S(s_p8,8)}, s[0:1], {KA_WG}
    v_lshrrev_b32 {V(tmp)}, 6, v0
    v_and_b32 v0, 63, v0
    v_readfirstlane_b32 {S(sW)}, {V(tmp)}
    v_lshlrev_b32 {V(vL16)}, 4, v0
    s_mul_i32 {S(sM)}, {S(sT)}, 7282
    s_lshr_b32 {S(sM)}, {S(sM)}, 16
    s_mul_i32 {S(sT2)}, {S(sM)}, 9
    s_sub_u32 {S(sN)}, {S(sT)}, {S(sT2)}
    ''')
    stamp()
    if stamps:
        e(f's_memrealtime {S(sStamp+20,2)}')
    e(f'''
    v_lshrrev_b32 {V(tmp)}, 3, v0
    v_mul_u32_u24 {V(vDma)}, 1152, {V(tmp)}
    v_lshrrev_b32 {V(tmp)}, 4, v0
    v_lshlrev_b32 {V(tmp)}, 1, {V(tmp)}
    v_and_b32 {V(tmp+1)}, 7, v0
    v_xor_b32 {V(tmp)}, {V(tmp)}, {V(tmp+1)}
    v_lshl_add_u32 {V(vDma)}, {V(tmp)}, 4, {V(vDma)}
    s_lshl_b32 {S(sM0)}, {S(sW)}, 10
    s_mul_i32 {S(sRow)}, {S(sW)}, {8*1152}
    s_lshl_b32 {S(sT)}, {S(sN)}, 7
    s_add_u32 {S(sRow)}, {S(sRow)}, {S(sT)}
    s_mul_i32 {S(sTb)}, {S(sM)}, 5
    s_add_u32 {S(sTb)}, {S(sTb)}, {S(sW)}
    s_mul_i32 {S(sTok)}, {S(sTb)}, {18*1024}
    s_waitcnt lgkmcnt(0)
    s_mov_b32 {S(srdW)}, {S(s_wo)}
    s_mov_b32 {S(srdW+1)}, {S(s_wo+1)}
    s_mov_b32 {S(srdW+2)}, {576*1152}
    s_mov_b32 {S(srdW+3)}, 0x00020000
    s_add_u32 {S(srdS)}, {S(s_ws)}, {OF}
    s_addc_u32 {S(srdS+1)}, {S(s_ws+1)}, 0
    s_mov_b32 {S(srdS+2)}, {128*18*1024}
    s_mov_b32 {S(srdS+3)}, 0x00020000
    s_mov_b32 {S(srdX)}, {S(s_x)}
    s_mov_b32 {S(srdX+1)}, {S(s_x+1)}
    s_mov_b32 {S(srdX+2)}, {2048*1152}
    s_mov_b32 {S(srdX+3)}, 0x00020000
    s_mov_b32 {S(srdH)}, {S(s_ws)}
    s_mov_b32 {S(srdH+1)}, {S(s_ws+1)}
    s_mov_b32 {S(srdH+2)}, {WS_USED}
    s_mov_b32 {S(srdH+3)}, 0x00020000
    ''')
    def chunk(c):
        out = []
        for i in range(5 * c, 5 * c + 5):
            g = [(f's_add_u32 m0, {S(sM0)}, {i*5*1024}', None)]
            if i:
                g.append((f's_add_u32 {S(sRow)}, {S(sRow)}, {5*8*1152}', None))
            g.append((f'buffer_load_dwordx4 {V(vDma)}, {S(srdW,4)}, {S(sRow)} offen lds', f'c{c}'))
            out.append(g)
        for ks in range(6 * c, 6 * c + 6):
            g = []
            if ks % 4 == 0 and ks:
                g.append((f's_add_u32 {S(sTok)}, {S(sTok)}, 4096', None))
            g.append((f'buffer_load_dwordx4 {V(tok+ks*4,4)}, {V(vL16)}, {S(srdS,4)}, {S(sTok)} offen offset:{(ks%4)*1024}', None))
            out.append(g)
        return out

    def emit_group(g):
        for t, tag in g:
            e(t, tag=tag)
    e(f'''
    s_min_u32 {S(sT)}, {S(sW)}, 2
    s_lshl_b32 {S(sT)}, {S(sT)}, 10
    s_add_u32 m0, {S(sT)}, {WBL}
    s_add_u32 {S(sT)}, {S(sT)}, {WB}
    ''')
    e(f'buffer_load_dwordx4 {V(vL16)}, {S(srdH,4)}, {S(sT)} offen lds', tag='c0')
    for g in chunk(0):
        emit_group(g)
    e(f'''
    v_lshrrev_b32 {V(tmp)}, 2, v0
    v_lshlrev_b32 {V(tmp+1)}, 7, {V(tmp)}
    v_and_b32 {V(tmp+2)}, 3, v0
    v_lshl_add_u32 {V(tmp+1)}, {V(tmp+2)}, 3, {V(tmp+1)}
    v_bfe_u32 {V(tmp+2)}, v0, 3, 2
    ''')
    for fb in range(4):
        e(f'v_xor_b32 {V(tmp+3)}, {fb}, {V(tmp+2)}')
        e(f'v_lshl_add_u32 {V(vA+fb)}, {V(tmp+3)}, 5, {V(tmp+1)}')
    if early1:
        for g in chunk(1):
            emit_group(g)
        late = chunk(2)
    else:
        late = chunk(1) + chunk(2)
    sXa = k.s(); sXb = k.s(); sXm = k.s()
    e(f'''
    s_mul_i32 {S(sXa)}, {S(sTb)}, {16*1152}
    s_lshl_b32 {S(sT2)}, {S(sN)}, 7
    s_add_u32 {S(sXa)}, {S(sXa)}, {S(sT2)}
    s_add_u32 {S(sXb)}, {S(sXa)}, {8*1152}
    s_lshl_b32 {S(sT2)}, {S(sW)}, 11
    s_lshl_b32 {S(sXm)}, {S(sTb)}, 6
    s_add_u32 {S(sXm)}, {S(sXm)}, {MX}
    v_and_b32 {V(tmp)}, 15, v0
    v_lshlrev_b32 {V(vX)}, 7, {V(tmp)}
    v_lshlrev_b32 {V(vMx)}, 2, {V(tmp)}
    v_lshrrev_b32 {V(tmp+1)}, 4, v0
    v_lshl_add_u32 {V(vX)}, {V(tmp+1)}, 3, {V(vX)}
    v_add_u32 {V(vX)}, {S(sT2)}, {V(vX)}
    v_add_u32 {V(vX)}, {XL}, {V(vX)}
    v_and_b32 {V(tmp)}, 1, v0
    v_mul_u32_u24 {V(vWb)}, 1152, {V(tmp)}
    v_lshl_add_u32 {V(vWb)}, {V(tmp+1)}, 4, {V(vWb)}
    v_add_u32 {V(vWb)}, {WBL}, {V(vWb)}
    ''')
    late.append([(f's_add_u32 m0, {S(sT2)}, {XL}', None), ('s_nop 0', None),
                 (f'buffer_load_dwordx4 {V(vDma)}, {S(srdX,4)}, {S(sXa)} offen lds', 'x')])
    late.append([(f's_add_u32 m0, {S(sT2)}, {XL+1024}', None), ('s_nop 0', None),
                 (f'buffer_load_dwordx4 {V(vDma)}, {S(srdX,4)}, {S(sXb)} offen lds', 'x')])
    late.append([(f'buffer_load_dword {V(vMx)}, {V(vMx)}, {S(srdH,4)}, {S(sXm)} offen', None)])
    e(f's_cmp_lg_u32 s2, 0')
    e(f's_cbranch_scc1 L_{name}_nofl')
    k.opt(True)
    e(f's_lshl_b32 {S(sT)}, {S(sW)}, 10')
    e(f's_add_u32 {S(sT)}, {S(sT)}, {FL}')
    for q in range(4):
        e(f'v_mov_b32 {V(acc+q)}, 0')
    e(f'buffer_store_dwordx4 {V(acc,4)}, {V(vL16)}, {S(srdH,4)}, {S(sT)} offen')
    e('s_nop 1')
    k.opt(False)
    k.label(f'L_{name}_nofl')
    if pf_rest is not None:
        from pf import pf_gu_rest
        srdP = k.s(4, 4); vP = k.v(6); sT3 = k.s()
        su, pl = pf_gu_rest(k, sW, 5, s_p8, srdP, sT, sT3, vP, pf_rest, 120)
        e(su)
        late.append([(x, None) for x in pl])
    if pf_wd or pf_u[1] > pf_u[0]:
        from pf import pf_fused
        srdP = k.s(12, 4); vP = k.v(6); sT3 = k.s()
        su, pl = pf_fused(k, sW, 5, s_p8, srdP, sT, sT3, vP, pf_u[0], pf_u[1], pf_wd, 120)
        e(su)
        late.append([(x, None) for x in pl])

    def reads(ks):
        o = []
        for fb in range(4):
            b = wf + (ks % 2) * 16 + fb * 4
            hi = ks >= 15
            off = (ks - (15 if hi else 0)) * 4096
            va = (tmp + 4 + fb) if hi else (vA + fb)
            o.append(f'ds_read_b64_tr_b16 {V(b,2)}, {V(va)} offset:{off}')
            o.append(f'ds_read_b64_tr_b16 {V(b+2,2)}, {V(va)} offset:{off+2048}')
        o.append(f'ds_read_b128 {V(wb+(ks%2)*4,4)}, {V(vWb)} offset:{ks*64}')
        return o
    for fb in range(4):
        e(f'v_add_u32 {V(tmp+4+fb)}, {15*4096}, {V(vA+fb)}')

    k.wait_vm(['c0'])
    e('s_barrier')
    stamp()
    for o in reads(0):
        e(o)
    for ks in range(18):
        rd = []
        if ks + 1 < 18:
            if (ks + 1) % 6 == 0:
                k.wait_vm([f'c{(ks+1)//6}'])
                e('s_barrier')
            rd = reads(ks + 1)
        for fb in range(4):
            for _ in range(2):
                if rd:
                    e(rd.pop(0))
            c = '0' if ks == 0 else V(acc + fb * 4, 4)
            e(f'v_mfma_f32_16x16x32_bf16 {V(acc+fb*4,4)}, {V(wf+(ks%2)*16+fb*4,4)}, {V(tok+ks*4,4)}, {c}')
            if late:
                emit_group(late.pop(0))
        if rd:
            e(rd.pop(0))
        c = '0' if ks == 0 else V(accm, 4)
        e(f'v_mfma_f32_16x16x32_bf16 {V(accm,4)}, {V(wb+(ks%2)*4,4)}, {V(tok+ks*4,4)}, {c}')
    stamp()
    k.wait_vm(['x'])
    xr = tmp + 8
    e(f'v_bfe_u32 {V(tmp)}, v0, 1, 2')
    for fb in range(4):
        e(f'v_xor_b32 {V(tmp+1)}, {fb}, {V(tmp)}')
        e(f'v_lshl_add_u32 {V(tmp+1)}, {V(tmp+1)}, 5, {V(vX)}')
        e(f'ds_read_b64 {V(xr+2*fb,2)}, {V(tmp+1)}')
    pk = wf
    xf = wf + 8
    for q in range(8):
        e(f'v_cvt_pk_bf16_f32 {V(pk+q)}, {V(acc+2*q)}, {V(acc+2*q+1)}')
    for q in range(8):
        e(f'v_lshlrev_b32 {V(acc+2*q)}, 16, {V(pk+q)}')
        e(f'v_and_b32 {V(acc+2*q+1)}, 0xffff0000, {V(pk+q)}')
        e(f'v_lshlrev_b32 {V(xf+2*q)}, 16, {V(xr+q)}')
        e(f'v_and_b32 {V(xf+2*q+1)}, 0xffff0000, {V(xr+q)}')
    for q in range(16):
        e(f'v_add_f32 {V(acc+q)}, {V(acc+q)}, {V(xf+q)}')
    for q in range(8):
        e(f'v_cvt_pk_bf16_f32 {V(pk+q)}, {V(acc+2*q)}, {V(acc+2*q+1)}')
    e(f'''
    s_cmp_ge_u32 {S(sTb)}, 128
    s_cbranch_scc1 L_{name}_end
    s_mul_i32 {S(sT)}, {S(sTb)}, 18
    s_lshl_b32 {S(sT2)}, {S(sN)}, 1
    s_add_u32 {S(sT)}, {S(sT)}, {S(sT2)}
    s_lshl_b32 {S(sT)}, {S(sT)}, 10
    s_add_u32 {S(sT)}, {S(sT)}, {HF}
    buffer_store_dwordx4 {V(pk,4)}, {V(vL16)}, {S(srdH,4)}, {S(sT)} offen
    buffer_store_dwordx4 {V(pk+4,4)}, {V(vL16)}, {S(srdH,4)}, {S(sT)} offen offset:1024
    ''')
    for q in range(8):
        e(f'v_lshlrev_b32 {V(acc+2*q)}, 16, {V(pk+q)}')
        e(f'v_and_b32 {V(acc+2*q+1)}, 0xffff0000, {V(pk+q)}')
    e(f'v_add_f32 {V(accm)}, {V(accm)}, {V(accm+1)}')
    e(f'v_add_f32 {V(accm)}, {V(accm)}, {V(vMx)}')
    e('\n'.join(bf16_round(accm, accm)))
    for q in range(16):
        e(f'v_sub_f32 {V(xf+q)}, {V(acc+q)}, {V(accm)}')
    hp = tok
    for q in range(8):
        e(f'v_cvt_pk_bf16_f32 {V(hp+q)}, {V(xf+2*q)}, {V(xf+2*q+1)}')
    e(f'''
    s_add_u32 {S(sT)}, {S(sT)}, {HC-HF}
    buffer_store_dwordx4 {V(hp,4)}, {V(vL16)}, {S(srdH,4)}, {S(sT)} offen
    buffer_store_dwordx4 {V(hp+4,4)}, {V(vL16)}, {S(srdH,4)}, {S(sT)} offen offset:1024
    ''')
    sm = tmp + 16
    e(f'v_add_f32 {V(sm)}, {V(acc)}, {V(acc+1)}')
    e(f'v_add_f32 {V(tmp)}, {V(acc+2)}, {V(acc+3)}')
    for q in range(4, 16, 2):
        e(f'v_add_f32 {V(sm)}, {V(sm)}, {V(acc+q)}')
        e(f'v_add_f32 {V(tmp)}, {V(tmp)}, {V(acc+q+1)}')
    e(f'v_add_f32 {V(sm)}, {V(sm)}, {V(tmp)}')
    e('\n'.join(row_reduce(sm, tmp)))
    e(f'v_mul_f32 {V(tmp+1)}, {F(1.0/64)}, {V(sm)}')
    for q in range(16):
        e(f'v_sub_f32 {V(acc+q)}, {V(acc+q)}, {V(tmp+1)}')
    e(f'v_mul_f32 {V(sm+1)}, {V(acc)}, {V(acc)}')
    e(f'v_mul_f32 {V(tmp)}, {V(acc+1)}, {V(acc+1)}')
    for q in range(2, 16, 2):
        e(f'v_fmac_f32 {V(sm+1)}, {V(acc+q)}, {V(acc+q)}')
        e(f'v_fmac_f32 {V(tmp)}, {V(acc+q+1)}, {V(acc+q+1)}')
    e(f'v_add_f32 {V(sm+1)}, {V(sm+1)}, {V(tmp)}')
    e('\n'.join(row_reduce(sm + 1, tmp)))
    e(f'''
    v_lshlrev_b32 {V(tmp)}, 3, v0
    s_lshl_b32 {S(sT)}, {S(sTb)}, 7
    s_lshl_b32 {S(sT2)}, {S(sN)}, 14
    s_add_u32 {S(sT)}, {S(sT)}, {S(sT2)}
    s_add_u32 {S(sT)}, {S(sT)}, {ST}
    s_mov_b64 exec, 0xffff
    buffer_store_dwordx2 {V(sm,2)}, {V(tmp)}, {S(srdH,4)}, {S(sT)} offen
    s_mov_b64 exec, -1
    ''')
    if stamps:
        stamp()
        e('s_waitcnt vmcnt(0)')
        stamp()
        emit_stamp_dump(k, e, sStamp, nst, srdW, s_x, sT, sW, tmp, int(stamps) - 1)
    k.label(f'L_{name}_end')
    e('s_endpgm')
    k.label(f'L_{name}_x')
    k.extra_entry = True
    e('s_endpgm')
    return k
```

```python
from asmb import *
from layout import *
import struct

LOG2E = 1.4426950408889634


def F(x):
    return hex(struct.unpack('<I', struct.pack('<f', x))[0])


def emit_stamp_dump(k, e, sStamp, nst, srd, sp, sT, sW, vt, region=0):
    e(f's_memrealtime {S(sStamp+22,2)}')
    e(f's_load_dwordx2 {S(sp,2)}, s[0:1], {KA_BX}')
    e('s_waitcnt lgkmcnt(0)')
    e(f's_mov_b32 {S(srd)}, {S(sp)}'); e(f's_mov_b32 {S(srd+1)}, {S(sp+1)}'); e(f's_mov_b32 {S(srd+2)}, 0x100000'); e(f's_mov_b32 {S(srd+3)}, 0x00020000')
    e(f's_lshl_b32 {S(sT)}, s2, 3'); e(f's_add_u32 {S(sT)}, {S(sT)}, {S(sW)}'); e(f's_lshl_b32 {S(sT)}, {S(sT)}, 6')
    e(f's_add_u32 {S(sT)}, {S(sT)}, {region*0x20000}')
    e(f'v_mov_b32 {V(vt)}, 0')
    for i in range(12):
        e(f'v_mov_b32 {V(vt+1)}, {S(sStamp+2*i)}')
        e(f'buffer_store_dword {V(vt+1)}, {V(vt)}, {S(srd,4)}, {S(sT)} offen offset:{4*i}')
        e('s_waitcnt vmcnt(0)')


def bf16_round(dst, src):
    return [f'v_cvt_pk_bf16_f32 {V(dst)}, {V(src)}, {V(src)}', f'v_lshlrev_b32 {V(dst)}, 16, {V(dst)}']


def ln_stats_ops(st, nparts, npart_elems, t0, t1, s_inv, s_n):
    o = []
    so = o.append
    so(f'v_add_f32 {V(t0)}, {V(st)}, {V(st+2)}')
    for nt in range(2, nparts):
        so(f'v_add_f32 {V(t0)}, {V(t0)}, {V(st+2*nt)}')
    so(f'v_mul_f32 {V(t0)}, {F(1.0/576)}, {V(t0)}')
    so(f'v_mov_b32 {V(t1)}, 0')
    for nt in range(nparts):
        so(f'v_fma_f32 {V(st+2*nt)}, {V(st+2*nt)}, {S(s_inv)}, -{V(t0)}')
        so(f'v_mul_f32 {V(st+2*nt)}, {V(st+2*nt)}, {V(st+2*nt)}')
        so(f'v_add_f32 {V(t1)}, {V(t1)}, {V(st+2*nt+1)}')
        so(f'v_fma_f32 {V(t1)}, {V(st+2*nt)}, {S(s_n)}, {V(t1)}')
    so(f'v_mul_f32 {V(t1)}, {F(1.0/576)}, {V(t1)}')
    o += bf16_round(t0, t0)
    o += bf16_round(t1, t1)
    so(f'v_add_f32 {V(t1)}, {F(1e-5)}, {V(t1)}')
    o += bf16_round(t1, t1)
    so(f'v_sqrt_f32 {V(t1)}, {V(t1)}')
    o += bf16_round(t1, t1)
    return o


def build_k4(TAIL=6, WF=6, PF=5, use_pk=False, name='k4_kernel', vm_every=2, pre_stages=2, stamps=False,
             no_mfma=False, no_lds=False, no_store=False, no_vm=False, no_bar=False, prefetch_code=None, pf_at=18*13, DIST=6, code_pf=None, st_flags='', wgroup=1, late_stats=False, no_side=False, rgroup=1, prio=False, rd128=False, wf_v=False, half_reads=False):
    assert not use_pk
    k = Kernel(name)
    NKS = 18
    RING = 8
    PART = RING * 9216
    UOFF = PART
    CSL = 2 * PART
    k.lds = CSL
    k.ns = 3
    s_wg = k.s(4, 4)
    s_ws = k.s(2, 2)
    s_wd = k.s(2, 2)
    srdP = k.s(4, 4)
    srdW = k.s(4, 4)
    srdS = k.s(4, 4)
    sW = k.s(); sPart = k.s(); sJ = k.s(); sM = k.s(); sN = k.s(); sT = k.s(); sT2 = k.s()
    sM8 = k.s(); sM0 = k.s(); sTok0 = k.s(); sTok1 = k.s(); sGrp = k.s(); sSt = k.s(); sSt8 = k.s()
    k.nv = 1
    vL16 = k.v()
    vSt = k.v()
    vP = k.v()
    acc = k.v(144, 4)
    vA = k.v(4)
    vAa = k.v(2); vSs = k.v(2)
    vdma = k.v(3)
    tmp = k.v(20, 4)
    wf = k.v(WF * 4, 4) if wf_v else k.a(WF * 4, 4)
    WR = V if wf_v else A
    ntokA = (256 - ((k.nv + 3) // 4 * 4) - k.na) // 8
    tokA = k.a(ntokA * 8, 4)
    TF = ntokA
    assert (k.nv + 3) // 4 * 4 + k.na <= 256, (k.nv, k.na)

    def ACC(fb, part, tb):
        return acc + ((fb * 2 + part) * 2 + tb) * 4

    main_ks = NKS - TAIL
    tokbuf = {}
    extra = [('v', tmp + 4), ('v', tmp + 12)]
    n_extra = 2
    ring_ks = [ks for ks in range(NKS - n_extra)]
    for i, ks in enumerate(ring_ks):
        tokbuf[ks] = ('a', tokA + (i % TF) * 8)
    for i in range(n_extra):
        tokbuf[NKS - n_extra + i] = extra[i]

    def TOK(ks, tb):
        kind, b = tokbuf[ks]
        return R(kind, b + 4 * tb, 4)

    e = k.e
    sStamp = k.s(24, 2) if stamps else None
    nst = [0]

    def stamp():
        if stamps:
            e(f's_memtime {S(sStamp + 2*nst[0], 2)}'); e('s_waitcnt lgkmcnt(0)'); nst[0] += 1
    e(f'''
    s_cmp_ge_u32 s2, 256
    s_cbranch_scc1 L_{name}_end
    s_load_dwordx4 {S(s_wg,4)}, s[0:1], {KA_WG}
    s_load_dwordx2 {S(s_ws,2)}, s[0:1], {KA_WS}
    s_load_dwordx2 {S(s_wd,2)}, s[0:1], {KA_WD}
    v_lshrrev_b32 {V(tmp)}, 6, v0
    v_and_b32 v0, 63, v0
    v_readfirstlane_b32 {S(sW)}, {V(tmp)}
    v_lshlrev_b32 {V(vL16)}, 4, v0
    s_and_b32 {S(sT)}, s2, 7
    s_lshr_b32 {S(sT2)}, s2, 3
    s_lshr_b32 {S(sM)}, {S(sT)}, 2
    s_lshl_b32 {S(sM)}, {S(sM)}, 2
    s_and_b32 {S(sN)}, {S(sT2)}, 3
    s_add_u32 {S(sM)}, {S(sM)}, {S(sN)}
    s_and_b32 {S(sN)}, {S(sT)}, 3
    s_lshl_b32 {S(sN)}, {S(sN)}, 3
    s_lshr_b32 {S(sT2)}, {S(sT2)}, 2
    s_add_u32 {S(sN)}, {S(sN)}, {S(sT2)}
    s_lshr_b32 {S(sPart)}, {S(sW)}, 2
    s_and_b32 {S(sJ)}, {S(sW)}, 3
    ''')
    stamp()
    if stamps:
        e(f's_memrealtime {S(sStamp+20,2)}')
    e(f'''
    s_lshl_b32 {S(sT)}, {S(sJ)}, 6
    v_add_u32 {V(tmp)}, {S(sT)}, v0
    s_lshl_b32 {S(sT)}, {S(sJ)}, 4
    v_add_u32 {V(tmp+3)}, {S(sT)}, v0
    s_mul_i32 {S(sM8)}, {S(sPart)}, {UOFF}
    s_lshl_b32 {S(sT)}, {S(sJ)}, 8
    s_add_u32 {S(sM8)}, {S(sM8)}, {S(sT)}
    s_mul_i32 {S(sGrp)}, {S(sN)}, 288
    s_mul_i32 {S(sM0)}, {S(sPart)}, {UOFF}
    s_lshl_b32 {S(sT)}, {S(sJ)}, 10
    s_add_u32 {S(sM0)}, {S(sM0)}, {S(sT)}
    s_lshl_b32 {S(sT)}, {S(sM)}, 3
    s_add_u32 {S(sT)}, {S(sT)}, {S(sW)}
    s_mul_i32 {S(sTok0)}, {S(sT)}, {36*1024}
    s_add_u32 {S(sTok0)}, {S(sTok0)}, {HC}
    s_add_u32 {S(sTok1)}, {S(sTok0)}, {18*1024}
    s_mul_i32 {S(sSt)}, {S(sT)}, {2*144*1024}
    s_add_u32 {S(sSt)}, {S(sSt)}, {HH}
    s_lshr_b32 {S(sT2)}, {S(sN)}, 1
    s_mul_i32 {S(sT2)}, {S(sT2)}, {9*1024}
    s_add_u32 {S(sSt)}, {S(sSt)}, {S(sT2)}
    s_and_b32 {S(sT2)}, {S(sN)}, 1
    s_lshl_b32 {S(sSt8)}, {S(sT2)}, 3
    s_add_u32 {S(sSt8)}, {S(sSt8)}, {S(sSt)}
    s_add_u32 {S(sSt8)}, {S(sSt8)}, {8*1024}
    s_lshl_b32 {S(sT2)}, {S(sT2)}, 12
    s_add_u32 {S(sSt)}, {S(sSt)}, {S(sT2)}
    ''')

    def dma_voff(i):
        d = vdma + i
        return [f'v_add_u32 {V(tmp+1)}, {256*i}, {V(tmp)}' if i < 2 else f'v_add_u32 {V(tmp+1)}, 512, {V(tmp+3)}',
                f'v_mul_u32_u24 {V(tmp+2)}, 3641, {V(tmp+1)}',
                f'v_lshrrev_b32 {V(tmp+2)}, 16, {V(tmp+2)}',
                f'v_mul_u32_u24 {V(tmp+2)}, {9216-288}, {V(tmp+2)}',
                f'v_lshl_add_u32 {V(d)}, {V(tmp+1)}, 4, {V(tmp+2)}']
    for i in range(3):
        e('\n'.join(dma_voff(i)))
    e(f'''
    s_waitcnt lgkmcnt(0)
    s_cmp_eq_u32 {S(sPart)}, 0
    s_cselect_b32 {S(srdW)}, {S(s_wg)}, {S(s_wg+2)}
    s_cselect_b32 {S(srdW+1)}, {S(s_wg+1)}, {S(s_wg+3)}
    s_mov_b32 {S(srdW+2)}, {576*9216}
    s_mov_b32 {S(srdW+3)}, 0x00020000
    s_mov_b32 {S(srdS)}, {S(s_ws)}
    s_mov_b32 {S(srdS+1)}, {S(s_ws+1)}
    s_mov_b32 {S(srdS+2)}, {WS_USED}
    s_mov_b32 {S(srdS+3)}, 0x00020000
    ''')

    order = [(ks, fb, p) for ks in range(main_ks) for fb in range(9) for p in range(2)]
    groups = [(0, 1), (2, 3), (4, 5), (6, 7), (8,)]
    grp_last = {}
    for gi, g in enumerate(groups):
        for ks in range(main_ks, NKS):
            for fb in g:
                for p in range(2):
                    order.append((ks, fb, p))
        grp_last[gi] = len(order) - 1
    N = len(order)
    first_use, last_use = {}, {}
    for n, (ks, fb, p) in enumerate(order):
        first_use.setdefault(ks, n)
        last_use[ks] = n
    dmas = [dict(G=G, i=i, smin=G, smax=G) for G in range(18) for i in range(3)]
    pend = []
    for d in dmas:
        pend.append((first_use[d['smin']] - PF, 0, 'dma', d))
    for ks in range(NKS):
        for tb in range(2):
            pend.append((first_use[ks], 1 + tb, 'tok', (ks, tb)))
    pend.sort(key=lambda x: (x[0], x[1]))
    barrier_passed = [-1]
    tok_sbase = [0, 0]
    grp_cur = [0]
    voff_done = set(range(3))
    corr_end = [10 ** 9]

    def eligible(p, n):
        if p[0] > max(n, 0) + DIST * 18:
            return False
        if p[2] == 'dma':
            d = p[3]
            return d['smax'] < RING or barrier_passed[0] >= d['smax'] - 6
        ks, tb = p[3]
        if tokbuf[ks][0] == 'v':
            return n > corr_end[0]
        return ks < TF or last_use[ks - TF] < n

    def issue(p):
        if no_vm and not ((p[2] == 'dma' and p[3]['smin'] < 1) or (p[2] == 'tok' and p[3][0] < TF)):
            return
        if p[2] == 'dma':
            d = p[3]
            slot = d['G'] % RING
            if d['i'] < 2:
                e(f's_add_u32 m0, {S(sM0)}, {slot * 9216 + d["i"] * 4096}')
            else:
                e(f's_add_u32 m0, {S(sM8)}, {slot * 9216 + 8192}')
            while grp_cur[0] < d['G']:
                e(f's_add_u32 {S(sGrp)}, {S(sGrp)}, {32*9216}'); grp_cur[0] += 1
            if d['i'] == 2:
                e('s_mov_b64 exec, 0xffff')
            e(f'buffer_load_dwordx4 {V(vdma+d["i"])}, {S(srdW,4)}, {S(sGrp)} offen lds', tag=f'st{d["smin"]}')
            if d['i'] == 2:
                e('s_mov_b64 exec, -1')
        else:
            ks, tb = p[3]
            sT_ = sTok1 if tb else sTok0
            while ks - tok_sbase[tb] >= 4:
                e(f's_add_u32 {S(sT_)}, {S(sT_)}, 4096'); tok_sbase[tb] += 4
            off = (ks - tok_sbase[tb]) * 1024
            e(f'buffer_load_dwordx4 {TOK(ks, tb)}, {V(vL16)}, {S(srdS,4)}, {S(sT_)} offen offset:{off}')

    def pop_issue(n, maxn=1):
        c = 0
        while pend and c < maxn:
            for q, p in enumerate(pend):
                if eligible(p, n):
                    if any(pp[2] == p[2] for pp in pend[:q]):
                        continue
                    issue(p); pend.pop(q); c += 1
                    break
            else:
                break

    npre = sum(1 for p in pend if (p[2] == 'dma' and p[3]['smin'] < pre_stages) or (p[2] == 'tok' and p[3][0] < pre_stages))
    pop_issue(-1, npre)
    e(f'''
    v_lshrrev_b32 {V(tmp+4)}, 2, v0
    v_mul_u32_u24 {V(vA)}, 288, {V(tmp+4)}
    v_and_b32 {V(tmp+5)}, 3, v0
    v_lshl_add_u32 {V(vA)}, {V(tmp+5)}, 3, {V(vA)}
    v_add_u32 {V(vA+1)}, {4*9216}, {V(vA)}
    v_add_u32 {V(vA+2)}, {UOFF}, {V(vA)}
    v_add_u32 {V(vA+3)}, {UOFF+4*9216}, {V(vA)}
    v_add_u32 {V(vSt)}, {144*1024}, {V(vL16)}
    ''')
    e(f'''
    v_and_b32 {V(tmp)}, 31, v0
    v_lshlrev_b32 {V(tmp)}, 3, {V(tmp)}
    s_lshl_b32 {S(sT)}, {S(sT)}, 8
    s_add_u32 {S(sT)}, {S(sT)}, {ST}
    ''')
    sStt = k.s()
    e(f's_mov_b32 {S(sStt)}, {S(sT)}')
    stat_loads = []
    for nt in range(9):
        stat_loads.append(f'buffer_load_dwordx2 {V(tmp+2+2*nt,2)}, {V(tmp)}, {S(srdS,4)}, {S(sStt)} offen')
        if nt < 8:
            stat_loads.append(f's_add_u32 {S(sStt)}, {S(sStt)}, 16384')
    if not late_stats:
        e('\n'.join(stat_loads)); stat_loads = []
    e(f's_lshl_b32 {S(sT)}, s2, 3')
    e(f's_add_u32 {S(sT)}, {S(sT)}, {S(sW)}')
    e(f's_cmp_ge_u32 {S(sT)}, 8')
    e(f's_cbranch_scc1 L_{name}_nofl')
    k.opt(True)
    e(f's_lshl_b32 {S(sT)}, {S(sT)}, 10')
    e(f's_add_u32 {S(sT)}, {S(sT)}, {FL}')
    for q in range(4):
        e(f'v_mov_b32 {V(acc+q)}, 0')
    e(f'buffer_store_dwordx4 {V(acc,4)}, {V(vL16)}, {S(srdS,4)}, {S(sT)} offen')
    e('s_nop 1')
    k.opt(False)
    k.label(f'L_{name}_nofl')
    from pf import pf_down
    su, pf_loads = pf_down(k, sW, s_wd, srdP, sT, sT2, vP)
    e(su)

    stats_ops = ln_stats_ops(tmp + 2, 9, 64, tmp, tmp + 1, sJ, sT2)
    so = stats_ops.append
    so(f'v_mov_b32 {V(vSs)}, {V(tmp+1)}')
    so(f'v_mov_b32 {V(vSs+1)}, {V(tmp+1)}')
    so(f'v_rcp_f32 {V(vAa)}, {V(tmp+1)}')
    so(f'v_mul_f32 {V(vAa)}, {F(-LOG2E)}, {V(vAa)}')
    so(f'v_mov_b32 {V(vAa+1)}, {V(vAa)}')
    for r in (vSs, vAa):
        so(f'v_permlane16_swap_b32 {V(r)}, {V(r+1)}')

    def corr_read(fb, p, t):
        return [f'ds_read_b128 {V(t,4)}, {V(vCs)} offset:{fb*64+p*1024}']

    def corr_ops(fb, p, t):
        o = []
        for tb in range(2):
            a0 = ACC(fb, p, tb)
            if use_pk:
                o += [f'v_pk_fma_f32 {V(a0+2*q,2)}, {V(t+2*q,2)}, {V(vNegM+2*tb,2)}, {V(a0+2*q,2)}' for q in range(2)]
            else:
                o += [f'v_fma_f32 {V(a0+q)}, {V(t+q)}, {V(vNegM+tb)}, {V(a0+q)}' for q in range(4)]
        return o

    def epi_ops(gi, tb):
        g = groups[gi]
        o = []
        Gs = [ACC(fb, 0, tb) for fb in g]
        Us = [ACC(fb, 1, tb) for fb in g]
        aa, ss = vAa + tb, vSs + tb
        for G in Gs:
            if use_pk:
                o += [f'v_pk_mul_f32 {V(G+2*q,2)}, {V(G+2*q,2)}, {V(aa,2)}' for q in range(2)]
            else:
                o += [f'v_mul_f32 {V(G+q)}, {V(G+q)}, {V(aa)}' for q in range(4)]
        for G in Gs:
            o += [f'v_exp_f32 {V(G+q)}, {V(G+q)}' for q in range(4)]
        for G in Gs:
            if use_pk:
                o += [f'v_pk_fma_f32 {V(G+2*q,2)}, {V(G+2*q,2)}, {V(ss,2)}, {V(ss,2)}' for q in range(2)]
            else:
                o += [f'v_fma_f32 {V(G+q)}, {V(G+q)}, {V(ss)}, {V(ss)}' for q in range(4)]
        for G in Gs:
            o += [f'v_rcp_f32 {V(G+q)}, {V(G+q)}' for q in range(4)]
        for G, U in zip(Gs, Us):
            if use_pk:
                o += [f'v_pk_mul_f32 {V(U+2*q,2)}, {V(U+2*q,2)}, {V(G+2*q,2)}' for q in range(2)]
            else:
                o += [f'v_mul_f32 {V(U+q)}, {V(U+q)}, {V(G+q)}' for q in range(4)]
        D = Gs[0]
        for bi, U in enumerate(Us):
            o += [f'v_cvt_pk_bf16_f32 {V(D+2*bi+q)}, {V(U+2*q)}, {V(U+2*q+1)}' for q in range(2)]
        va = vSt if tb else vL16
        if not no_store:
            if len(g) == 2:
                o += [f'buffer_store_dwordx4 {V(D,4)}, {V(va)}, {S(srdS,4)}, {S(sSt)} offen offset:{gi*1024} {st_flags}']
            else:
                o += [f'buffer_store_dwordx2 {V(D,2)}, {V(va)}, {S(srdS,4)}, {S(sSt8)} offen {st_flags}']
        return o

    e(f's_mov_b32 {S(sJ)}, {F(1.0/64)}')
    e(f's_mov_b32 {S(sT2)}, {F(64.0)}')

    side = {}

    def spread(ops, n0, n1):
        cnt = n1 - n0
        for i, o in enumerate(ops):
            side.setdefault(n0 + i * cnt // len(ops), []).append(o)
    if stat_loads:
        spread(stat_loads, 18 * 3, 18 * 4)
    spread(stats_ops, 18 * 6, 18 * 8)
    corr_end[0] = 18 * 8
    for gi in range(4):
        nd = grp_last[gi]
        span = grp_last[gi + 1] - nd
        ops = epi_ops(gi, 0) + epi_ops(gi, 1)
        spread(ops, nd + 2, nd + max(span, 8))

    def reads(n):
        ks, fb, p = order[n]
        if ks > barrier_passed[0]:
            assert not any(q[2] == 'dma' and q[3]['smin'] <= ks for q in pend), ('dma late', ks)
            k.wait_vm([f'st{s}' for s in range(ks + 1)])
            if not no_bar or ks == 0:
                e('s_barrier')
            barrier_passed[0] = ks
            if ks in (0, 1, 4, 8, main_ks):
                stamp()
        slot = ks % RING
        va = vA + 2 * p + (slot >> 2)
        off = (slot & 3) * 9216 + fb * 32
        b = wf + (n % WF) * 4
        if half_reads and n >= WF and n % 2:
            return
        if not no_lds or n < WF:
            if rd128:
                e(f'ds_read_b128 {WR(b,4)}, {V(vL16)} offset:{(off//1024)*1024}')
            else:
                e(f'ds_read_b64_tr_b16 {WR(b,2)}, {V(va)} offset:{off}')
                e(f'ds_read_b64_tr_b16 {WR(b+2,2)}, {V(va)} offset:{off+4608}')

    for n in range(PF):
        reads(n)
    if prio:
        e(f's_cmp_ge_u32 {S(sW)}, 4')
        e(f's_cbranch_scc0 L_{name}_np')
        e('s_setprio 1')
        k.label(f'L_{name}_np')
    for n in range(N):
        ks, fb, p = order[n]
        if n % rgroup == 0:
            for q in range(rgroup):
                if n + PF + q < N:
                    reads(n + PF + q)
        assert not any(q[2] == 'tok' and q[3][0] <= ks for q in pend), ('tok late', ks)
        if wgroup > 1 and n % wgroup == 0 and n + PF < N:
            e(f's_waitcnt lgkmcnt({2 * (PF - wgroup + 1)})')
        ops = side.get(n, []) if not no_side else []
        h = (len(ops) + 1) // 2
        for tb in range(2):
            a0 = ACC(fb, p, tb)
            c = '0' if ks == 0 else V(a0, 4)
            e(f'v_mfma_f32_16x16x32_bf16 {V(a0,4)}, {WR(wf+(n%WF)*4,4)}, {TOK(ks,tb)}, {c}')
            for o in (ops[:h] if tb == 0 else ops[h:]):
                e(o)
        if n % vm_every == 0:
            pop_issue(n + 1, 1)
        if pf_loads and not pend and pf_at is not None and n >= pf_at:
            e('\n'.join(pf_loads)); pf_loads = []
            if code_pf:
                from pf import pf_code
                e(f's_lshr_b32 {S(sT2)}, s2, 3')
                e(f's_lshl_b32 {S(sT2)}, {S(sT2)}, 3')
                e(f's_add_u32 {S(sT2)}, {S(sT2)}, {S(sW)}')
                e(f's_and_b32 {S(sT2)}, {S(sT2)}, 31')
                pf_code(k, code_pf[0], code_pf[1], s_wg, sT2, sT, s_wg + 2, vdma + (vdma & 1))
    for n in sorted(side):
        if n >= N:
            for o in side[n]:
                e(o)
    assert not pend, pend
    stamp()
    for o in interleave(epi_ops(4, 0), epi_ops(4, 1)):
        e(o)
    if stamps:
        stamp()
        e('s_waitcnt vmcnt(0)')
        stamp()
        emit_stamp_dump(k, e, sStamp, nst, srdW, s_wg, sT, sW, tmp, int(stamps) - 1)
    k.label(f'L_{name}_end')
    e('s_endpgm')
    return k
```

```python
from asmb import *
from layout import *
from k4 import F, emit_stamp_dump

PP8 = PP + 64 * 4 * 4 * 8 * 1024


def build_k5p(name='k5_kernel', WF=8, PF=7, stamps=False, pre_ks=3, DIST=4, BAR=2, flag_at=0.6, rot=0, late_kept=False, KG=9):
    assert PP8 + 64 * 4 * 4 * 1024 <= WS_USED
    k = Kernel(name)
    NKS = 36
    RING = 12
    RSZ = 7168
    KB = RING * RSZ
    k.lds = KB + 36 * 2048
    k.ns = 3
    s_wd = k.s(4, 4)
    s_ws = k.s(2, 2)
    srdW = k.s(4, 4); srdS = k.s(4, 4); srdO = k.s(4, 4)
    sW = k.s(); sM = k.s(); sN = k.s(); sS = k.s(); sT = k.s(); sT2 = k.s()
    sM0 = k.s(); sM8 = k.s(); sTok0 = k.s(); sTok1 = k.s(); sRow = k.s(); sRow2 = k.s(); sTile = k.s()
    sRowP = k.s(); sTokP = k.s(2); sRot = k.s()
    sPub = k.s(); sPub8 = k.s(); sFl = k.s(); sH = k.s(); sOut = k.s()
    k.nv = 1
    vL16 = k.v(); vL8 = k.v()
    vA = k.v(2)
    vK = k.v(4)
    vdma = k.v(6)
    acc = k.v(72, 4)
    hres = k.v(12, 2)
    tmp = k.v(64, 4)
    tokV = k.v(64, 4)
    wf = k.a(WF * 4, 4)
    tokA = k.a(224, 4)

    def TOK(ks, tb):
        return A(tokA + ks * 8 + 4 * tb, 4) if ks < 28 else V(tokV + (ks - 28) * 8 + 4 * tb, 4)
    e = k.e
    sStamp = k.s(24, 2) if stamps else None
    nst = [0]

    def stamp():
        if stamps:
            e(f's_memtime {S(sStamp + 2*nst[0], 2)}'); e('s_waitcnt lgkmcnt(0)'); nst[0] += 1

    def ACC(fb, tb):
        return acc + (fb * 2 + tb) * 4
    e(f'''
    s_cmp_ge_u32 s2, 256
    s_cbranch_scc1 L_{name}_end
    s_load_dwordx4 {S(s_wd,4)}, s[0:1], {KA_WD}
    s_load_dwordx2 {S(s_ws,2)}, s[0:1], {KA_WS}
    v_lshrrev_b32 {V(tmp)}, 6, v0
    v_and_b32 v0, 63, v0
    v_readfirstlane_b32 {S(sW)}, {V(tmp)}
    v_lshlrev_b32 {V(vL16)}, 4, v0
    v_lshlrev_b32 {V(vL8)}, 3, v0
    s_and_b32 {S(sS)}, s2, 3
    s_bfe_u32 {S(sT)}, s2, 0x10002
    s_lshl_b32 {S(sM)}, {S(sT)}, 3
    s_bfe_u32 {S(sT)}, s2, 0x30003
    s_add_u32 {S(sM)}, {S(sM)}, {S(sT)}
    s_lshr_b32 {S(sN)}, s2, 6
    ''')
    stamp()
    if stamps:
        e(f's_memrealtime {S(sStamp+20,2)}')
    e(f'''
    s_mul_i32 {S(sT)}, {S(sW)}, 112
    v_add_u32 {V(tmp)}, {S(sT)}, v0
    s_lshl_b32 {S(sT)}, {S(sW)}, 5
    v_add_u32 {V(tmp+3)}, {S(sT)}, v0
    s_lshl_b32 {S(sM8)}, {S(sW)}, 9
    s_add_u32 {S(sM8)}, {S(sM8)}, {KB}
    s_mul_i32 {S(sM0)}, {S(sW)}, 1792
    s_mul_i32 {S(sRow)}, {S(sS)}, {1152*1152}
    s_mul_i32 {S(sT2)}, {S(sN)}, 288
    s_add_u32 {S(sRow)}, {S(sRow)}, {S(sT2)}
    s_mul_i32 {S(sTok0)}, {S(sS)}, {36*1024}
    s_lshl_b32 {S(sT)}, {S(sM)}, 2
    s_add_u32 {S(sT)}, {S(sT)}, {S(sW)}
    s_mul_i32 {S(sT)}, {S(sT)}, {2*144*1024}
    s_add_u32 {S(sTok0)}, {S(sTok0)}, {S(sT)}
    s_add_u32 {S(sTok0)}, {S(sTok0)}, {HH}
    s_add_u32 {S(sTok1)}, {S(sTok0)}, {144*1024}
    ''')

    def dma_voff(i):
        d = vdma + i
        if i < 2:
            o = [f'v_add_u32 {V(tmp+1)}, {64*i}, {V(tmp)}',
                 f'v_mul_u32_u24 {V(tmp+2)}, 4682, {V(tmp+1)}',
                 f'v_lshrrev_b32 {V(tmp+2)}, 16, {V(tmp+2)}',
                 f'v_mul_u32_u24 {V(tmp+4)}, 14, {V(tmp+2)}',
                 f'v_sub_u32 {V(tmp+1)}, {V(tmp+1)}, {V(tmp+4)}',
                 f'v_lshrrev_b32 {V(tmp+4)}, 2, {V(tmp+1)}',
                 f'v_add_u32 {V(tmp+4)}, 1, {V(tmp+4)}',
                 f'v_xor_b32 {V(tmp+5)}, {S(sS)}, {V(tmp+4)}',
                 f'v_cmp_gt_u32 vcc, 12, {V(tmp+1)}',
                 f'v_and_b32 {V(tmp+1)}, 3, {V(tmp+1)}',
                 f'v_cndmask_b32 {V(tmp+4)}, {V(tmp+4)}, {V(tmp+5)}, vcc',
                 f'v_lshlrev_b32 {V(tmp+4)}, 6, {V(tmp+4)}',
                 f'v_lshl_add_u32 {V(tmp+4)}, {V(tmp+1)}, 4, {V(tmp+4)}']
        else:
            o = [f'v_lshrrev_b32 {V(tmp+2)}, 2, {V(tmp+3)}',
                 f'v_bfe_u32 {V(tmp+4)}, {V(tmp+3)}, 1, 1',
                 f'v_bfe_u32 {V(tmp+5)}, {V(tmp+3)}, 4, 1',
                 f'v_xor_b32 {V(tmp+4)}, {V(tmp+4)}, {V(tmp+5)}',
                 f'v_lshlrev_b32 {V(tmp+4)}, 5, {V(tmp+4)}',
                 f'v_and_b32 {V(tmp+5)}, 1, {V(tmp+3)}',
                 f'v_lshl_add_u32 {V(tmp+4)}, {V(tmp+5)}, 4, {V(tmp+4)}',
                 f's_lshl_b32 {S(sT)}, {S(sS)}, 6',
                 f'v_add_u32 {V(tmp+4)}, {S(sT)}, {V(tmp+4)}']
        o += [f'v_mul_u32_u24 {V(tmp+5)}, 1152, {V(tmp+2)}',
              f'v_add_u32 {V(d)}, {V(tmp+4)}, {V(tmp+5)}',
              f'v_lshrrev_b32 {V(tmp+4)}, 4, {V(tmp+2)}',
              f'v_mul_u32_u24 {V(tmp+4)}, {128*1152}, {V(tmp+4)}',
              f'v_add_u32 {V(d+3)}, {V(d)}, {V(tmp+4)}']
        return o
    for i in range(3):
        e('\n'.join(dma_voff(i)))
    e(f'''
    s_waitcnt lgkmcnt(0)
    s_mov_b32 {S(srdW)}, {S(s_wd)}
    s_mov_b32 {S(srdW+1)}, {S(s_wd+1)}
    s_mov_b32 {S(srdW+2)}, {4608*1152}
    s_mov_b32 {S(srdW+3)}, 0x00020000
    s_mov_b32 {S(srdS)}, {S(s_ws)}
    s_mov_b32 {S(srdS+1)}, {S(s_ws+1)}
    s_mov_b32 {S(srdS+2)}, {WS_USED}
    s_mov_b32 {S(srdS+3)}, 0x00020000
    s_mov_b32 {S(srdO)}, {S(s_wd+2)}
    s_mov_b32 {S(srdO+1)}, {S(s_wd+3)}
    s_mov_b32 {S(srdO+2)}, {2048*1152}
    s_mov_b32 {S(srdO+3)}, 0x00020000
    ''')
    order = [(ks, fb) for ks in range(NKS) for fb in range(2, 9)]
    N1 = len(order)
    order += [(ks, fb) for ks in range(NKS) for fb in range(2)]
    N = len(order)
    pend = []
    for ks in range(NKS):
        for i in range(3):
            if i == 2 and late_kept:
                pend.append((10 ** 6 + ks, 0, 'kept', (ks, i)))
            else:
                pend.append(((ks // BAR) * BAR * 7 - PF, 0, 'dma', (ks, i)))
        for tb in range(2):
            pend.append((ks * 7, 1 + tb, 'tok', (ks, tb)))
    pend.sort(key=lambda x: (x[0], x[1], x[3]))
    kbar = [-1]
    bar_ks = [-1]
    tok_sbase = [0, 0]

    def row0(ks):
        P, i = divmod(ks, 9)
        return (32 * i if i < 4 else 144 + 32 * (i - 4) if i < 8 else 128)

    def eligible(p, n):
        ks = p[3][0]
        if p[2] == 'kept':
            return all(q[2] == 'kept' for q in pend)
        if ks * 7 > max(n, 0) + DIST * 7:
            return False
        if p[2] == 'dma':
            return ks < RING or bar_ks[0] - 2 * BAR >= ks - RING
        return True

    def issue(p):
        if p[2] in ('dma', 'kept'):
            ks, i = p[3]
            slot = ks % RING
            if i < 2:
                e(f's_add_u32 m0, {S(sM0)}, {slot * RSZ + i * 1024}')
            else:
                e(f's_add_u32 m0, {S(sM8)}, {ks * 2048}')
            if i == 0 or p[2] == 'kept':
                if ks % 9 == 0:
                    e(f's_add_u32 {S(sRowP)}, {S(sRot)}, {ks//9}')
                    e(f's_and_b32 {S(sRowP)}, {S(sRowP)}, 3')
                    e(f's_mul_i32 {S(sRowP)}, {S(sRowP)}, {288*1152}')
                    e(f's_add_u32 {S(sRowP)}, {S(sRowP)}, {S(sRow)}')
                e(f's_add_u32 {S(sRow2)}, {S(sRowP)}, {row0(ks)*1152}')
            if i == 1:
                e('s_bfm_b64 exec, 48, 0')
            if i == 2:
                e('s_mov_b64 exec, 0xffffffff')
            vv = vdma + i + (3 if ks % 9 == 8 else 0)
            e(f'buffer_load_dwordx4 {V(vv)}, {S(srdW,4)}, {S(sRow2)} offen lds', tag=f'st{ks}' if p[2] == 'dma' else f'kp{ks}')
            if i >= 1:
                e('s_mov_b64 exec, -1')
        else:
            ks, tb = p[3]
            sT_ = sTok1 if tb else sTok0
            sP_ = sTokP + tb
            i = ks % 9
            if i == 0:
                e(f's_add_u32 {S(sP_)}, {S(sRot)}, {ks//9}')
                e(f's_and_b32 {S(sP_)}, {S(sP_)}, 3')
                e(f's_mul_i32 {S(sP_)}, {S(sP_)}, {9*1024}')
                e(f's_add_u32 {S(sP_)}, {S(sP_)}, {S(sT_)}')
            elif i % 4 == 0:
                e(f's_add_u32 {S(sP_)}, {S(sP_)}, 4096')
            e(f'buffer_load_dwordx4 {TOK(ks, tb)}, {V(vL16)}, {S(srdS,4)}, {S(sP_)} offen offset:{(i % 4) * 1024}')

    def pop_issue(n, maxn=1):
        c = 0
        while pend and c < maxn:
            for q, p in enumerate(pend):
                if eligible(p, n):
                    if any(pp[2] == p[2] for pp in pend[:q]):
                        continue
                    issue(p); pend.pop(q); c += 1
                    break
            else:
                break
    if rot == 1:
        e(f's_mov_b32 {S(sRot)}, {S(sN)}')
    elif rot == 2:
        e(f's_add_u32 {S(sRot)}, {S(sN)}, {S(sM)}')
    else:
        e(f's_mov_b32 {S(sRot)}, 0')
    pop_issue(-1, (4 if late_kept else 5) * pre_ks)
    e(f'''
    v_lshrrev_b32 {V(tmp+4)}, 2, v0
    v_mul_u32_u24 {V(vA)}, 224, {V(tmp+4)}
    v_and_b32 {V(tmp+5)}, 3, v0
    v_lshl_add_u32 {V(vA)}, {V(tmp+5)}, 3, {V(vA)}
    v_add_u32 {V(vA+1)}, {6*RSZ}, {V(vA)}
    v_lshlrev_b32 {V(tmp+6)}, 6, {V(tmp+4)}
    v_lshl_add_u32 {V(tmp+6)}, {V(tmp+5)}, 3, {V(tmp+6)}
    v_add_u32 {V(tmp+6)}, {KB}, {V(tmp+6)}
    v_bfe_u32 {V(tmp+5)}, v0, 4, 1
    v_lshl_add_u32 {V(vK)}, {V(tmp+5)}, 5, {V(tmp+6)}
    v_xor_b32 {V(tmp+5)}, 1, {V(tmp+5)}
    v_lshl_add_u32 {V(vK+2)}, {V(tmp+5)}, 5, {V(tmp+6)}
    v_add_u32 {V(vK+1)}, {18*2048}, {V(vK)}
    v_add_u32 {V(vK+3)}, {18*2048}, {V(vK+2)}
    ''')
    e(f'''
    s_lshl_b32 {S(sTile)}, {S(sM)}, 2
    s_add_u32 {S(sTile)}, {S(sTile)}, {S(sN)}
    s_lshl_b32 {S(sFl)}, {S(sTile)}, 7
    s_add_u32 {S(sFl)}, {S(sFl)}, {FL}
    s_lshl_b32 {S(sPub)}, {S(sTile)}, 17
    s_lshl_b32 {S(sT)}, {S(sW)}, 11
    s_add_u32 {S(sPub)}, {S(sPub)}, {S(sT)}
    s_add_u32 {S(sPub)}, {S(sPub)}, {PP}
    s_lshl_b32 {S(sPub8)}, {S(sTile)}, 14
    s_lshl_b32 {S(sT)}, {S(sW)}, 12
    s_add_u32 {S(sPub8)}, {S(sPub8)}, {S(sT)}
    s_add_u32 {S(sPub8)}, {S(sPub8)}, {PP8}
    s_lshl_b32 {S(sT)}, {S(sM)}, 3
    s_lshl_b32 {S(sT2)}, {S(sW)}, 1
    s_add_u32 {S(sT)}, {S(sT)}, {S(sT2)}
    s_mul_i32 {S(sH)}, {S(sT)}, {18*1024}
    s_add_u32 {S(sH)}, {S(sH)}, {HF}
    s_mul_i32 {S(sOut)}, {S(sT)}, {16*1152}
    s_mul_i32 {S(sT2)}, {S(sN)}, 288
    s_add_u32 {S(sOut)}, {S(sOut)}, {S(sT2)}
    ''')

    def reads(n):
        ks, fb = order[n]
        if ks > bar_ks[0]:
            hi = min(ks + BAR - 1, NKS - 1)
            assert not any(q[2] == 'dma' and q[3][0] <= hi for q in pend), ('dma late', ks)
            k.wait_vm([f'st{s}' for s in range(hi + 1)])
            e('s_barrier')
            bar_ks[0] = hi
            if ks in (0, 2, 12, 24):
                stamp()
        if fb < 2 and late_kept and ks > kbar[0]:
            hi = min(ks + KG - 1, NKS - 1)
            while any(q[2] == 'kept' and q[3][0] <= hi for q in pend):
                pop_issue(10 ** 7, 1)
            k.wait_vm([f'kp{s}' for s in range(hi + 1)])
            e('s_barrier')
            kbar[0] = hi
        slot = ks % RING
        if fb >= 2:
            va = vA + slot // 6
            off = (slot % 6) * RSZ + (fb - 2) * 32
            sec = 16 * 224
        else:
            va = vK + 2 * fb + ks // 18
            off = (ks % 18) * 2048
            sec = 1024
        b = wf + (n % WF) * 4
        e(f'ds_read_b64_tr_b16 {A(b,2)}, {V(va)} offset:{off}')
        e(f'ds_read_b64_tr_b16 {A(b+2,2)}, {V(va)} offset:{off+sec}')

    def h_addr(blk_sgpr_expr):
        pass

    def h_loads():
        for b in range(3):
            if b == 2:
                e(f's_cmp_lg_u32 {S(sW)}, {S(sS)}')
                e(f's_cbranch_scc1 L_{name}_noh')
                k.opt(True)
            e(f's_mul_i32 {S(sT)}, {S(sN)}, 9')
            if b < 2:
                e(f's_lshl_b32 {S(sT2)}, {S(sS)}, 1')
                e(f's_add_u32 {S(sT)}, {S(sT)}, {S(sT2)}')
                if b:
                    e(f's_add_u32 {S(sT)}, {S(sT)}, 1')
            else:
                e(f's_add_u32 {S(sT)}, {S(sT)}, 8')
            e(f's_lshr_b32 {S(sT2)}, {S(sT)}, 1')
            e(f's_lshl_b32 {S(sT2)}, {S(sT2)}, 10')
            e(f's_and_b32 {S(sT)}, {S(sT)}, 1')
            e(f's_lshl_b32 {S(sT)}, {S(sT)}, 3')
            e(f's_add_u32 {S(sT)}, {S(sT)}, {S(sT2)}')
            e(f's_add_u32 {S(sT)}, {S(sT)}, {S(sH)}')
            e(f's_add_u32 {S(sT2)}, {S(sT)}, {18*1024}')
            e(f'buffer_load_dwordx2 {V(hres+4*b,2)}, {V(vL16)}, {S(srdS,4)}, {S(sT)} offen')
            e(f'buffer_load_dwordx2 {V(hres+4*b+2,2)}, {V(vL16)}, {S(srdS,4)}, {S(sT2)} offen')
            if b == 2:
                k.opt(False)
                k.label(f'L_{name}_noh')

    hl_done = [False]
    t2 = tmp + 48
    RS = 112

    def do_publish():
        pk = tmp
        for p in range(1, 4):
            e(f's_xor_b32 {S(sT)}, {S(sS)}, {p}')
            e(f's_lshl_b32 {S(sT)}, {S(sT)}, 2')
            e(f's_add_u32 {S(sT)}, {S(sT)}, {S(sS)}')
            e(f's_lshl_b32 {S(sT)}, {S(sT)}, 13')
            e(f's_add_u32 {S(sT)}, {S(sT)}, {S(sPub)}')
            for tb in range(2):
                d = pk + ((p - 1) * 2 + tb) * 4
                for hb in range(2):
                    a0 = ACC(2 * p + hb, tb)
                    e(f'v_cvt_pk_bf16_f32 {V(d+2*hb)}, {V(a0)}, {V(a0+1)}')
                    e(f'v_cvt_pk_bf16_f32 {V(d+2*hb+1)}, {V(a0+2)}, {V(a0+3)}')
                e(f'buffer_store_dwordx4 {V(d,4)}, {V(vL16)}, {S(srdS,4)}, {S(sT)} offen offset:{tb*1024} sc1')
        e(f's_cmp_eq_u32 {S(sW)}, {S(sS)}')
        e(f's_cbranch_scc1 L_{name}_np8')
        k.opt(True)
        e(f's_lshl_b32 {S(sT)}, {S(sS)}, 10')
        e(f's_add_u32 {S(sT)}, {S(sT)}, {S(sPub8)}')
        for tb in range(2):
            d = pk + 24 + 2 * tb
            a0 = ACC(8, tb)
            e(f'v_cvt_pk_bf16_f32 {V(d)}, {V(a0)}, {V(a0+1)}')
            e(f'v_cvt_pk_bf16_f32 {V(d+1)}, {V(a0+2)}, {V(a0+3)}')
            e(f'buffer_store_dwordx2 {V(d,2)}, {V(vL8)}, {S(srdS,4)}, {S(sT)} offen offset:{tb*512} sc1')
        k.opt(False)
        k.label(f'L_{name}_np8')
        t2 = tmp + 48
        RS = 112
        e(f'''
        v_and_b32 {V(t2)}, 15, v0
        v_mul_u32_u24 {V(t2)}, {RS}, {V(t2)}
        v_lshrrev_b32 {V(t2+1)}, 4, v0
        v_lshl_add_u32 {V(t2)}, {V(t2+1)}, 3, {V(t2)}
        s_lshl_b32 {S(sT)}, {S(sW)}, 12
        v_add_u32 {V(t2)}, {S(sT)}, {V(t2)}
        v_lshrrev_b32 {V(t2+1)}, 2, v0
        v_and_b32 {V(t2+2)}, 3, v0
        v_mul_u32_u24 {V(t2+3)}, {RS}, {V(t2+1)}
        v_lshl_add_u32 {V(t2+3)}, {V(t2+2)}, 4, {V(t2+3)}
        v_add_u32 {V(t2+3)}, {S(sT)}, {V(t2+3)}
        v_mul_u32_u24 {V(t2+4)}, 1152, {V(t2+1)}
        v_lshl_add_u32 {V(t2+4)}, {V(t2+2)}, 4, {V(t2+4)}
        v_lshrrev_b32 {V(t2+1)}, 1, v0
        v_and_b32 {V(t2+2)}, 1, v0
        v_mul_u32_u24 {V(t2+5)}, {RS}, {V(t2+1)}
        v_lshl_add_u32 {V(t2+5)}, {V(t2+2)}, 4, {V(t2+5)}
        v_add_u32 {V(t2+5)}, {S(sT)}, {V(t2+5)}
        v_mul_u32_u24 {V(t2+6)}, 1152, {V(t2+1)}
        v_lshl_add_u32 {V(t2+6)}, {V(t2+2)}, 4, {V(t2+6)}
        v_mov_b32 {V(t2+8)}, 1
        v_mov_b32 {V(t2+9)}, 0
        ''')

    def do_flag():
        e(f'''
        s_waitcnt vmcnt(0)
        s_barrier
        s_cmp_lg_u32 {S(sW)}, 0
        s_cbranch_scc1 L_{name}_nofl
        s_lshl_b32 {S(sT)}, {S(sS)}, 2
        s_add_u32 {S(sT)}, {S(sT)}, {S(sFl)}
        s_mov_b64 exec, 1
        ''')
        k.opt(True)
        e(f'buffer_store_dword {V(t2+8)}, {V(t2+9)}, {S(srdS,4)}, {S(sT)} offen sc1')
        k.opt(False)
        e('s_mov_b64 exec, -1')
        k.label(f'L_{name}_nofl')

    for n in range(PF):
        reads(n)
    n_flag = N1 + int(flag_at * (N - N1))
    for n in range(N):
        ks, fb = order[n]
        if n + PF < N:
            reads(n + PF)
        assert not any(q[2] == 'tok' and q[3][0] <= ks for q in pend), ('tok late', ks)
        for tb in range(2):
            a0 = ACC(fb, tb)
            c = '0' if ks == 0 else V(a0, 4)
            e(f'v_mfma_f32_16x16x32_bf16 {V(a0,4)}, {A(wf+(n%WF)*4,4)}, {TOK(ks,tb)}, {c}')
        pop_issue(n + 1, 2 if (pend and pend[0][2] == 'kept') else 1)
        if not pend and not hl_done[0]:
            h_loads(); hl_done[0] = True
        if n == N1 + 1:
            stamp()
            do_publish()
        if n == n_flag:
            do_flag()
    assert not pend
    stamp()
    e(f's_cmp_lg_u32 {S(sW)}, 0')
    e(f's_cbranch_scc1 L_{name}_wait')
    k.label(f'L_{name}_spin')
    e(f'''
    buffer_load_dwordx4 {V(t2+12,4)}, {V(t2+9)}, {S(srdS,4)}, {S(sFl)} offen sc1
    s_waitcnt vmcnt(0)
    v_and_b32 {V(t2+12)}, {V(t2+12)}, {V(t2+13)}
    v_and_b32 {V(t2+14)}, {V(t2+14)}, {V(t2+15)}
    v_and_b32 {V(t2+12)}, {V(t2+12)}, {V(t2+14)}
    v_readfirstlane_b32 {S(sT)}, {V(t2+12)}
    s_cmp_eq_u32 {S(sT)}, 1
    s_cbranch_scc0 L_{name}_spin
    ''')
    k.label(f'L_{name}_wait')
    e('s_barrier')
    stamp()
    ld = tmp
    for d in range(1, 4):
        e(f'''
        s_xor_b32 {S(sT)}, {S(sS)}, {d}
        s_lshl_b32 {S(sT2)}, {S(sS)}, 2
        s_add_u32 {S(sT)}, {S(sT)}, {S(sT2)}
        s_lshl_b32 {S(sT)}, {S(sT)}, 13
        s_add_u32 {S(sT)}, {S(sT)}, {S(sPub)}
        ''')
        for tb in range(2):
            e(f'buffer_load_dwordx4 {V(ld+((d-1)*2+tb)*4,4)}, {V(vL16)}, {S(srdS,4)}, {S(sT)} offen offset:{tb*1024} sc1')
    e(f's_cmp_lg_u32 {S(sW)}, {S(sS)}')
    e(f's_cbranch_scc1 L_{name}_ng8')
    k.opt(True)
    for d in range(1, 4):
        e(f's_xor_b32 {S(sT)}, {S(sS)}, {d}')
        e(f's_lshl_b32 {S(sT)}, {S(sT)}, 10')
        e(f's_add_u32 {S(sT)}, {S(sT)}, {S(sPub8)}')
        for tb in range(2):
            e(f'buffer_load_dwordx2 {V(ld+24+((d-1)*2+tb)*2,2)}, {V(vL8)}, {S(srdS,4)}, {S(sT)} offen offset:{tb*512} sc1')
    k.opt(False)
    k.label(f'L_{name}_ng8')
    u0, u1 = t2 + 10, t2 + 11

    def finish_unit(a0, srcs, hr, dst):
        o = []
        for sr in srcs:
            for q in range(2):
                o += [f'v_lshlrev_b32 {V(u0)}, 16, {V(sr+q)}', f'v_and_b32 {V(u1)}, 0xffff0000, {V(sr+q)}',
                      f'v_add_f32 {V(a0+2*q)}, {V(a0+2*q)}, {V(u0)}', f'v_add_f32 {V(a0+2*q+1)}, {V(a0+2*q+1)}, {V(u1)}']
        for q in range(2):
            o += [f'v_cvt_pk_bf16_f32 {V(dst+q)}, {V(a0+2*q)}, {V(a0+2*q+1)}',
                  f'v_lshlrev_b32 {V(a0+2*q)}, 16, {V(dst+q)}', f'v_and_b32 {V(a0+2*q+1)}, 0xffff0000, {V(dst+q)}',
                  f'v_lshlrev_b32 {V(u0)}, 16, {V(hr+q)}', f'v_and_b32 {V(u1)}, 0xffff0000, {V(hr+q)}',
                  f'v_add_f32 {V(a0+2*q)}, {V(a0+2*q)}, {V(u0)}', f'v_add_f32 {V(a0+2*q+1)}, {V(a0+2*q+1)}, {V(u1)}',
                  f'v_cvt_pk_bf16_f32 {V(dst+q)}, {V(a0+2*q)}, {V(a0+2*q+1)}']
        return o
    res = ACC(2, 0)
    for tb in range(2):
        for hb in range(2):
            dst = res + (tb * 2 + hb) * 2
            e('\n'.join(finish_unit(ACC(hb, tb), [ld + ((d - 1) * 2 + tb) * 4 + 2 * hb for d in range(1, 4)], hres + 4 * hb + 2 * tb, dst)))
            e(f'ds_write_b64 {V(t2)}, {V(dst,2)} offset:{tb*16*RS + hb*32}')
    e(f's_lshl_b32 {S(sT)}, {S(sS)}, 6')
    e(f's_add_u32 {S(sT)}, {S(sT)}, {S(sOut)}')
    e(f's_add_u32 {S(sT2)}, {S(sT)}, {16*1152}')
    e('s_waitcnt lgkmcnt(0)')
    e(f'ds_read_b128 {V(res+8,4)}, {V(t2+3)}')
    e(f'ds_read_b128 {V(res+12,4)}, {V(t2+3)} offset:{16*RS}')
    e(f'buffer_store_dwordx4 {V(res+8,4)}, {V(t2+4)}, {S(srdO,4)}, {S(sT)} offen')
    e(f'buffer_store_dwordx4 {V(res+12,4)}, {V(t2+4)}, {S(srdO,4)}, {S(sT2)} offen')
    e(f's_cmp_lg_u32 {S(sW)}, {S(sS)}')
    e(f's_cbranch_scc1 L_{name}_done')
    e('s_waitcnt vmcnt(2)')
    for tb in range(2):
        dst = res + 16 + 2 * tb
        e('\n'.join(finish_unit(ACC(8, tb), [ld + 24 + ((d - 1) * 2 + tb) * 2 for d in range(1, 4)], hres + 8 + 2 * tb, dst)))
        e(f'ds_write_b64 {V(t2)}, {V(dst,2)} offset:{tb*16*RS + 64}')
    e('s_waitcnt lgkmcnt(0)')
    e(f'ds_read_b128 {V(res+20,4)}, {V(t2+5)} offset:64')
    e(f'buffer_store_dwordx4 {V(res+20,4)}, {V(t2+6)}, {S(srdO,4)}, {S(sOut)} offen offset:256')
    k.label(f'L_{name}_done')
    if stamps:
        stamp()
        e('s_waitcnt vmcnt(0)')
        stamp()
        emit_stamp_dump(k, e, sStamp, nst, srdW, s_wd, sT, sW, tmp, int(stamps) - 1)
    k.label(f'L_{name}_end')
    e('s_endpgm')
    return k
```

```python
from asmb import *
from layout import *


def pf_gate_up(k, sW, s_ptr8, srdP, sT, sT2, vP, nload=3, lanes=54):
    def lines(dst, first):
        return (f'' if first else f'v_add_u32 {V(vP+5)}, {lanes}, {V(vP+5)}\n') + f'''
        v_mul_u32_u24 {V(vP+6)}, 3641, {V(vP+5)}
        v_lshrrev_b32 {V(vP+6)}, 16, {V(vP+6)}
        v_mul_u32_u24 {V(vP+6)}, {9216-18*128}, {V(vP+6)}
        v_lshl_add_u32 {V(dst)}, {V(vP+5)}, 7, {V(vP+6)}
        v_add_u32 {V(dst)}, {S(sT)}, {V(dst)}
        '''
    setup = f'''
        s_lshr_b32 {S(sT)}, s2, 3
        s_lshl_b32 {S(sT)}, {S(sT)}, 2
        s_add_u32 {S(sT)}, {S(sT)}, {S(sW)}
        s_cmp_lt_u32 {S(sT)}, 64
        s_cselect_b32 {S(srdP)}, {S(s_ptr8+4)}, {S(s_ptr8+6)}
        s_cselect_b32 {S(srdP+1)}, {S(s_ptr8+5)}, {S(s_ptr8+7)}
        s_mov_b32 {S(srdP+2)}, {576*9216}
        s_mov_b32 {S(srdP+3)}, 0x00020000
        s_mov_b32 {S(srdP+4)}, {S(s_ptr8)}
        s_mov_b32 {S(srdP+5)}, {S(s_ptr8+1)}
        s_mov_b32 {S(srdP+6)}, {576*1152}
        s_mov_b32 {S(srdP+7)}, 0x00020000
        s_lshl_b32 {S(sT2)}, {S(sT)}, 6
        v_add_u32 {V(vP+4)}, {S(sT2)}, v0
        v_lshlrev_b32 {V(vP+4)}, 7, {V(vP+4)}
        s_and_b32 {S(sT)}, {S(sT)}, 63
        s_mul_i32 {S(sT)}, {S(sT)}, {nload*lanes}
        v_add_u32 {V(vP+5)}, {S(sT)}, v0
        s_and_b32 {S(sT)}, s2, 3
        s_mul_i32 {S(sT)}, {S(sT)}, 2304
        ''' + ''.join(lines(vP + i, i == 0) for i in range(nload))
    loads = [f'buffer_load_dword {V(vP+4)}, {V(vP+4)}, {S(srdP+4,4)}, 0 offen', f's_bfm_b64 exec, {lanes}, 0' if lanes < 64 else 's_nop 0']
    loads += [f'buffer_load_dword {V(vP+i)}, {V(vP+i)}, {S(srdP,4)}, 0 offen' for i in range(nload)]
    loads += ['s_mov_b64 exec, -1']
    return setup, loads


def pf_down(k, sW, s_wd, srdP, sT, sT2, vP):
    setup = f'''
        s_lshr_b32 {S(sT)}, s2, 3
        s_lshl_b32 {S(sT)}, {S(sT)}, 3
        s_add_u32 {S(sT)}, {S(sT)}, {S(sW)}
        s_mul_i32 {S(sT)}, {S(sT)}, 41
        s_and_b32 {S(sT2)}, s2, 3
        s_mul_i32 {S(sT2)}, {S(sT2)}, 10368
        s_add_u32 {S(sT)}, {S(sT)}, {S(sT2)}
        v_add_u32 {V(vP)}, {S(sT)}, v0
        v_lshlrev_b32 {V(vP)}, 7, {V(vP)}
        s_mov_b32 {S(srdP)}, {S(s_wd)}
        s_mov_b32 {S(srdP+1)}, {S(s_wd+1)}
        s_mov_b32 {S(srdP+2)}, {4608*1152}
        s_mov_b32 {S(srdP+3)}, 0x00020000
        '''
    loads = ['s_bfm_b64 exec, 41, 0', f'buffer_load_dword {V(vP)}, {V(vP)}, {S(srdP,4)}, 0 offen', 's_mov_b64 exec, -1']
    return setup, loads


_pfc = [0]


def pf_code(k, start, end, sA, sShare, sT, sSave, vT):
    _pfc[0] += 1
    L = f'L_pfc{_pfc[0]}'
    e = k.e
    assert vT % 2 == 0
    e(f's_getpc_b64 {S(sA,2)}')
    k.label(L)
    e(f'''
    s_add_u32 {S(sA)}, {S(sA)}, {start}-{L}
    s_addc_u32 {S(sA+1)}, {S(sA+1)}, ({start}-{L})>>32
    s_lshl_b32 {S(sT)}, {S(sShare)}, 6
    v_add_u32 {V(vT)}, {S(sT)}, v0
    v_lshlrev_b32 {V(vT)}, 7, {V(vT)}
    s_mov_b32 {S(sT)}, {end}-{start}
    v_cmp_gt_u32 {S(sSave,2)}, {S(sT)}, {V(vT)}
    v_mov_b32 {V(vT+1)}, {S(sA+1)}
    v_add_co_u32 {V(vT)}, vcc, {S(sA)}, {V(vT)}
    v_addc_co_u32 {V(vT+1)}, vcc, 0, {V(vT+1)}, vcc
    s_mov_b64 exec, {S(sSave,2)}
    s_cbranch_execz {L}_s
    ''')
    k.opt(True)
    e(f'global_load_dword {V(vT)}, {V(vT,2)}, off')
    k.opt(False)
    k.label(L + '_s')
    e('s_mov_b64 exec, -1')


def pf_fused(k, sW, nwav_log2, s_ptrs, srdP, sT, sT2, vP, u0, u1, with_wd, nwaves_xcd):
    nu = u1 - u0
    half = nwaves_xcd // 2
    per = -(-576 * nu // half)
    nld = -(-per // 64)
    lanes = -(-per // nld) if nld else 0
    setup = f'''
        s_lshr_b32 {S(sT)}, s2, 3
        s_mul_i32 {S(sT)}, {S(sT)}, {nwav_log2}
        s_add_u32 {S(sT)}, {S(sT)}, {S(sW)}
        s_cmp_lt_u32 {S(sT)}, {half}
        s_cselect_b32 {S(srdP)}, {S(s_ptrs)}, {S(s_ptrs+2)}
        s_cselect_b32 {S(srdP+1)}, {S(s_ptrs+1)}, {S(s_ptrs+3)}
        s_cselect_b32 {S(sT2)}, 0, {half}
        s_mov_b32 {S(srdP+2)}, {576*9216}
        s_mov_b32 {S(srdP+3)}, 0x00020000
        s_mov_b32 {S(srdP+4)}, {S(s_ptrs+4)}
        s_mov_b32 {S(srdP+5)}, {S(s_ptrs+5)}
        s_mov_b32 {S(srdP+6)}, {4608*1152}
        s_mov_b32 {S(srdP+7)}, 0x00020000
        '''
    loads = []
    if with_wd:
        perd = -(-5184 // nwaves_xcd)
        assert perd <= 64
        setup += f'''
        s_mul_i32 {S(srdP+8)}, {S(sT)}, {perd}
        v_add_u32 {V(vP+3)}, {S(srdP+8)}, v0
        v_min_u32 {V(vP+3)}, 5183, {V(vP+3)}
        s_and_b32 {S(srdP+8)}, s2, 7
        s_mul_i32 {S(srdP+8)}, {S(srdP+8)}, 5184
        v_add_u32 {V(vP+3)}, {S(srdP+8)}, {V(vP+3)}
        v_lshlrev_b32 {V(vP+3)}, 7, {V(vP+3)}
        '''
    if nu:
        magic = -(-65536 // nu)
        assert all((x * magic) >> 16 == x // nu for x in range(576 * nu + 200))
        setup += f'''
        s_sub_u32 {S(sT)}, {S(sT)}, {S(sT2)}
        s_mul_i32 {S(sT)}, {S(sT)}, {nld*lanes}
        v_add_u32 {V(vP+4)}, {S(sT)}, v0
        s_and_b32 {S(sT)}, s2, 7
        s_mul_i32 {S(sT)}, {S(sT)}, 1152
        s_add_u32 {S(sT)}, {S(sT)}, {u0*128}
        '''
        for i in range(nld):
            setup += (f'v_add_u32 {V(vP+4)}, {lanes}, {V(vP+4)}\n' if i else '') + f'''
            v_mul_u32_u24 {V(vP+5)}, {magic}, {V(vP+4)}
            v_lshrrev_b32 {V(vP+5)}, 16, {V(vP+5)}
            v_mul_u32_u24 {V(vP+5)}, {9216-nu*128}, {V(vP+5)}
            v_lshl_add_u32 {V(vP+i)}, {V(vP+4)}, 7, {V(vP+5)}
            v_add_u32 {V(vP+i)}, {S(sT)}, {V(vP+i)}
            '''
        assert nld <= 3
        loads += [f's_bfm_b64 exec, {lanes}, 0' if lanes < 64 else 's_nop 0']
        loads += [f'buffer_load_dword {V(vP+i)}, {V(vP+i)}, {S(srdP,4)}, 0 offen' for i in range(nld)]
    if with_wd:
        loads += [f's_bfm_b64 exec, {perd}, 0' if perd < 64 else 's_mov_b64 exec, -1', f'buffer_load_dword {V(vP+3)}, {V(vP+3)}, {S(srdP+4,4)}, 0 offen']
    loads += ['s_mov_b64 exec, -1']
    return setup, loads


def pf_gu_rest(k, sW, wpw, s_ptrs, srdP, sT, sT2, vP, line0, nwaves_xcd):
    half = nwaves_xcd // 2
    per = -(-(10368 - line0) // half)
    nld = -(-per // 64)
    lanes = -(-per // nld)
    setup = f'''
        s_lshr_b32 {S(sT)}, s2, 3
        s_mul_i32 {S(sT)}, {S(sT)}, {wpw}
        s_add_u32 {S(sT)}, {S(sT)}, {S(sW)}
        s_cmp_lt_u32 {S(sT)}, {half}
        s_cselect_b32 {S(srdP)}, {S(s_ptrs)}, {S(s_ptrs+2)}
        s_cselect_b32 {S(srdP+1)}, {S(s_ptrs+1)}, {S(s_ptrs+3)}
        s_cselect_b32 {S(sT2)}, 0, {half}
        s_mov_b32 {S(srdP+2)}, {576*9216}
        s_mov_b32 {S(srdP+3)}, 0x00020000
        s_sub_u32 {S(sT)}, {S(sT)}, {S(sT2)}
        s_mul_i32 {S(sT)}, {S(sT)}, {nld*lanes}
        s_add_u32 {S(sT)}, {S(sT)}, {line0}
        v_add_u32 {V(vP+4)}, {S(sT)}, v0
        s_and_b32 {S(sT)}, s2, 3
        s_mul_i32 {S(sT)}, {S(sT)}, 2304
        '''
    for i in range(nld):
        setup += (f'v_add_u32 {V(vP+4)}, {lanes}, {V(vP+4)}\n' if i else '') + f'''
        v_mul_u32_u24 {V(vP+5)}, 3641, {V(vP+4)}
        v_lshrrev_b32 {V(vP+5)}, 16, {V(vP+5)}
        v_mul_u32_u24 {V(vP+5)}, {9216-18*128}, {V(vP+5)}
        v_lshl_add_u32 {V(vP+i)}, {V(vP+4)}, 7, {V(vP+5)}
        v_add_u32 {V(vP+i)}, {S(sT)}, {V(vP+i)}
        '''
    loads = [f's_bfm_b64 exec, {lanes}, 0' if lanes < 64 else 's_nop 0']
    loads += [f'buffer_load_dword {V(vP+i)}, {V(vP+i)}, {S(srdP,4)}, 0 offen' for i in range(nld)]
    loads += ['s_mov_b64 exec, -1']
    return setup, loads
```

```python
from asmb import *
from layout import *
from k4 import F, bf16_round, LOG2E
from k4 import emit_stamp_dump
from k3 import row_reduce

QSCALE = 18 ** -0.5 * LOG2E


def build_k1(name='k1_kernel', stamps=False, extra=None, code_pf=None, self_pf=False, pre=2, xmap=0, rot=True, tlb_pf=False):
    k = Kernel(name)
    SLOT = 32768
    STL = 4 * SLOT
    k.lds = STL + 2048
    k.ns = 3
    s_x = k.s(4, 4)
    s_ws = k.s(2, 2)
    srdX = k.s(4, 4); srdW = k.s(4, 4); srdS = k.s(4, 4)
    sW = k.s(); sM = k.s(); sN = k.s(); sT = k.s(); sT2 = k.s(); sTW = k.s(); sCW = k.s(); sC64 = k.s()
    sM0 = k.s(); sXo = k.s(); sWo = k.s(); sTmpO = k.s(); sOne = k.s(); sSt = k.s(); sSec = k.s()
    sMask = k.s(8, 2)
    sO0 = k.s(); sO1 = k.s()
    k.nv = 1
    vDx = k.v(); vDw = k.v()
    vT = k.v(4)
    vWa = k.v(8)
    acc = k.v(64, 4)
    tf = k.v(32, 4)
    wf = k.v(32, 4)
    ssum = k.v(8, 4); ssq = k.v(8, 4); csum = k.v(8, 4); ones = k.v(4, 4)
    adr = k.v(8)
    sDiag = k.s(8, 4)
    tmp = k.v(56, 4)
    e = k.e
    sStamp = k.s(24, 2) if stamps else None
    nst = [0]

    def stamp():
        if stamps:
            e(f's_memtime {S(sStamp + 2*nst[0], 2)}'); e('s_waitcnt lgkmcnt(0)'); nst[0] += 1
    e(f'''
    s_cmp_ge_u32 s2, 256
    s_cbranch_scc1 L_{name}_x
    v_lshrrev_b32 {V(tmp)}, 6, v0
    v_and_b32 v0, 63, v0
    v_readfirstlane_b32 {S(sW)}, {V(tmp)}
    s_cmp_ge_u32 s2, 224
    s_cbranch_scc1 L_{name}_pf
    s_load_dwordx4 {S(s_x,4)}, s[0:1], {KA_X}
    s_load_dwordx2 {S(s_ws,2)}, s[0:1], {KA_WS}
    s_and_b32 {S(sT)}, s2, 7
    s_lshr_b32 {S(sT2)}, s2, 3
    ''' + (f'''
    s_lshl_b32 {S(sM)}, {S(sT)}, 1
    s_and_b32 {S(sT)}, {S(sT2)}, 1
    s_add_u32 {S(sM)}, {S(sM)}, {S(sT)}
    s_lshr_b32 {S(sN)}, {S(sT2)}, 1
    ''' if xmap == 0 else f'''
    s_lshr_b32 {S(sM)}, {S(sT)}, 1
    s_lshl_b32 {S(sM)}, {S(sM)}, 2
    s_and_b32 {S(sN)}, {S(sT2)}, 3
    s_add_u32 {S(sM)}, {S(sM)}, {S(sN)}
    s_and_b32 {S(sN)}, {S(sT)}, 1
    s_mul_i32 {S(sN)}, {S(sN)}, 7
    s_lshr_b32 {S(sT2)}, {S(sT2)}, 2
    s_add_u32 {S(sN)}, {S(sN)}, {S(sT2)}
    ''') + f'''
    s_lshr_b32 {S(sTW)}, {S(sW)}, 1
    s_and_b32 {S(sCW)}, {S(sW)}, 1
    s_lshl_b32 {S(sC64)}, {S(sN)}, 1
    s_add_u32 {S(sC64)}, {S(sC64)}, {S(sCW)}
    ''')
    stamp()
    if stamps:
        e(f's_memrealtime {S(sStamp+20,2)}')
    e(f'''
    v_lshrrev_b32 {V(tmp)}, 3, v0
    v_mul_u32_u24 {V(vDx)}, 1152, {V(tmp)}
    v_lshrrev_b32 {V(tmp+1)}, 4, v0
    s_lshl_b32 {S(sT)}, {S(sCW)}, 2
    v_add_u32 {V(tmp+2)}, {S(sT)}, {V(tmp+1)}
    v_and_b32 {V(tmp+3)}, 7, v0
    v_xor_b32 {V(tmp+2)}, {V(tmp+2)}, {V(tmp+3)}
    v_lshl_add_u32 {V(vDx)}, {V(tmp+2)}, 4, {V(vDx)}
    v_lshrrev_b32 {V(tmp+2)}, 5, v0
    v_lshlrev_b32 {V(tmp+2)}, 3, {V(tmp+2)}
    v_and_b32 {V(tmp)}, 3, {V(tmp)}
    v_add_u32 {V(tmp+2)}, {V(tmp+2)}, {V(tmp)}
    v_mul_u32_u24 {V(vDw)}, 3456, {V(tmp+2)}
    v_lshlrev_b32 {V(tmp+1)}, 1, {V(tmp+1)}
    v_xor_b32 {V(tmp+1)}, {V(tmp+1)}, {V(tmp+3)}
    v_lshl_add_u32 {V(vDw)}, {V(tmp+1)}, 4, {V(vDw)}
    s_lshl_b32 {S(sM0)}, {S(sW)}, 10
    s_lshl_b32 {S(sT)}, {S(sM)}, 7
    s_lshl_b32 {S(sT2)}, {S(sW)}, 3
    s_add_u32 {S(sT)}, {S(sT)}, {S(sT2)}
    s_mul_i32 {S(sXo)}, {S(sT)}, 1152
    s_lshl_b32 {S(sT)}, {S(sTW)}, 4
    s_lshl_b32 {S(sT2)}, {S(sCW)}, 2
    s_add_u32 {S(sT)}, {S(sT)}, {S(sT2)}
    s_mul_i32 {S(sWo)}, {S(sT)}, 3456
    s_lshl_b32 {S(sT)}, {S(sN)}, 8
    s_add_u32 {S(sWo)}, {S(sWo)}, {S(sT)}
    s_mov_b32 {S(sOne)}, 0x3f803f80
    s_waitcnt lgkmcnt(0)
    s_mov_b32 {S(srdX)}, {S(s_x)}
    s_mov_b32 {S(srdX+1)}, {S(s_x+1)}
    s_mov_b32 {S(srdX+2)}, {2048*1152}
    s_mov_b32 {S(srdX+3)}, 0x00020000
    s_mov_b32 {S(srdW)}, {S(s_x+2)}
    s_mov_b32 {S(srdW+1)}, {S(s_x+3)}
    s_mov_b32 {S(srdW+2)}, {576*3456}
    s_mov_b32 {S(srdW+3)}, 0x00020000
    s_mov_b32 {S(srdS)}, {S(s_ws)}
    s_mov_b32 {S(srdS+1)}, {S(s_ws+1)}
    s_mov_b32 {S(srdS+2)}, {WS_USED}
    s_mov_b32 {S(srdS+3)}, 0x00020000
    ''')

    sXc = k.s(); sWc = k.s(); sRot = k.s()
    if rot:
        e(f'''
        s_add_u32 {S(sRot)}, {S(sM)}, {S(sN)}
        s_mul_i32 {S(sT)}, {S(sRot)}, 7282
        s_lshr_b32 {S(sT)}, {S(sT)}, 16
        s_mul_i32 {S(sT)}, {S(sT)}, 9
        s_sub_u32 {S(sRot)}, {S(sRot)}, {S(sT)}
        ''')
    else:
        e(f's_mov_b32 {S(sRot)}, 0')

    def dma(St):
        slot = St % 4
        out = []
        for i in range(4):
            g = []
            if i == 0:
                g += [(f's_lshl_b32 {S(sXc)}, {S(sRot)}, 7', None), (f's_add_u32 {S(sXc)}, {S(sXc)}, {S(sXo)}', None),
                      (f's_mul_i32 {S(sWc)}, {S(sRot)}, {64*3456}', None), (f's_add_u32 {S(sWc)}, {S(sWc)}, {S(sWo)}', None),
                      (f's_add_u32 {S(sRot)}, {S(sRot)}, 1', None), (f's_cmp_eq_u32 {S(sRot)}, 9', None),
                      (f's_cselect_b32 {S(sRot)}, 0, {S(sRot)}', None)]
            out.append(g + [(f's_add_u32 m0, {S(sM0)}, {slot*SLOT + i*4096}', None),
                            (f's_add_u32 {S(sTmpO)}, {S(sXc)}, {i*32*1152}', None),
                            (f'buffer_load_dwordx4 {V(vDx)}, {S(srdX,4)}, {S(sTmpO)} offen lds', f'st{St}')])
            out.append([(f's_add_u32 m0, {S(sM0)}, {slot*SLOT + 16384 + i*4096}', None),
                        (f's_add_u32 {S(sTmpO)}, {S(sWc)}, {(i&1)*32*3456 + (i>>1)*128}', None),
                        (f'buffer_load_dwordx4 {V(vDw)}, {S(srdW,4)}, {S(sTmpO)} offen lds', f'st{St}')])
        return out

    def emit_group(g):
        for t, tag in g:
            e(t, tag=tag)
    for g in dma(0):
        emit_group(g)
    if self_pf:
        vQ = k.v(4)
        e(f'''
        s_lshr_b32 {S(sT)}, s2, 3
        s_lshl_b32 {S(sT)}, {S(sT)}, 2
        s_add_u32 {S(sT)}, {S(sT)}, {S(sW)}
        s_mul_i32 {S(sT2)}, {S(sT)}, 47
        v_add_u32 {V(vQ)}, {S(sT2)}, v0
        v_lshlrev_b32 {V(vQ)}, 7, {V(vQ)}
        v_add_u32 {V(vQ+1)}, {112*47*128}, {V(vQ)}
        v_add_u32 {V(vQ+2)}, {2*112*47*128}, {V(vQ)}
        s_mul_i32 {S(sT2)}, {S(sT)}, 21
        s_and_b32 {S(sT)}, s2, 7
        s_mul_i32 {S(sT)}, {S(sT)}, 2304
        s_add_u32 {S(sT2)}, {S(sT2)}, {S(sT)}
        v_add_u32 {V(vQ+3)}, {S(sT2)}, v0
        v_lshlrev_b32 {V(vQ+3)}, 7, {V(vQ+3)}
        s_bfm_b64 exec, 21, 0
        buffer_load_dword {V(vQ+3)}, {V(vQ+3)}, {S(srdX,4)}, 0 offen
        s_bfm_b64 exec, 47, 0
        buffer_load_dword {V(vQ)}, {V(vQ)}, {S(srdW,4)}, 0 offen
        buffer_load_dword {V(vQ+1)}, {V(vQ+1)}, {S(srdW,4)}, 0 offen
        buffer_load_dword {V(vQ+2)}, {V(vQ+2)}, {S(srdW,4)}, 0 offen
        s_mov_b64 exec, -1
        ''')
    if code_pf:
        from pf import pf_code
        sPa = k.s(2, 2); sPs = k.s(2, 2); vPc = k.v(4, 2)
        pf_code(k, name, code_pf[0], sPa, sW, sT, sPs, vPc)
    for St in range(1, pre):
        for g in dma(St):
            emit_group(g)
    if tlb_pf:
        vTl = k.v()
        e(f'v_lshlrev_b32 {V(vTl)}, 20, v0')
        e(f's_lshr_b32 {S(sT2)}, s2, 3')
        e(f's_lshl_b32 {S(sT2)}, {S(sT2)}, 2')
        e(f's_add_u32 {S(sT2)}, {S(sT2)}, {S(sW)}')
        e(f's_cmp_lg_u32 {S(sT2)}, 33')
        e(f's_cbranch_scc1 L_{name}_notlb')
        k.opt(True)
        e(f's_bfm_b64 exec, 42, 0')
        e(f'buffer_load_dword {V(vTl)}, {V(vTl)}, {S(srdS,4)}, 0 offen')
        e(f's_mov_b64 exec, -1')
        k.opt(False)
        k.label(f'L_{name}_notlb')
    if code_pf:
        e(f's_lshr_b32 {S(sT2)}, s2, 3')
        e(f's_lshl_b32 {S(sT2)}, {S(sT2)}, 2')
        e(f's_add_u32 {S(sT2)}, {S(sT2)}, {S(sW)}')
        e(f's_and_b32 {S(sT2)}, {S(sT2)}, 31')
        pf_code(k, code_pf[0], code_pf[1], sPa, sT2, sT, sPs, vPc + 2)
    e(f'''
    v_and_b32 {V(tmp)}, 15, v0
    v_lshrrev_b32 {V(tmp+1)}, 4, v0
    v_lshrrev_b32 {V(tmp+2)}, 1, {V(tmp)}
    v_xor_b32 {V(tmp+2)}, {V(tmp+2)}, {V(tmp+1)}
    v_lshlrev_b32 {V(tmp+3)}, 7, {V(tmp)}
    v_lshl_add_u32 {V(tmp+3)}, {V(tmp+2)}, 4, {V(tmp+3)}
    s_lshl_b32 {S(sT)}, {S(sTW)}, 13
    v_add_u32 {V(vT)}, {S(sT)}, {V(tmp+3)}
    v_add_u32 {V(vT+1)}, {2*SLOT}, {V(vT)}
    v_xor_b32 {V(vT+2)}, 64, {V(vT)}
    v_add_u32 {V(vT+3)}, {2*SLOT}, {V(vT+2)}
    v_lshrrev_b32 {V(tmp+2)}, 5, v0
    v_lshlrev_b32 {V(tmp+2)}, 4, {V(tmp+2)}
    v_bfe_u32 {V(tmp+3)}, v0, 2, 3
    v_add_u32 {V(tmp+2)}, {V(tmp+2)}, {V(tmp+3)}
    v_lshlrev_b32 {V(tmp+2)}, 7, {V(tmp+2)}
    v_and_b32 {V(tmp+4)}, 3, v0
    v_lshl_add_u32 {V(tmp+2)}, {V(tmp+4)}, 3, {V(tmp+2)}
    s_lshl_b32 {S(sT)}, {S(sCW)}, 13
    s_add_u32 {S(sT)}, {S(sT)}, 16384
    v_add_u32 {V(tmp+2)}, {S(sT)}, {V(tmp+2)}
    v_bfe_u32 {V(tmp+3)}, v0, 3, 2
    ''')
    for fb in range(4):
        e(f'v_xor_b32 {V(tmp+4)}, {fb}, {V(tmp+3)}')
        e(f'v_lshl_add_u32 {V(vWa+2*fb)}, {V(tmp+4)}, 5, {V(tmp+2)}')
        e(f'v_add_u32 {V(vWa+2*fb+1)}, {2*SLOT}, {V(vWa+2*fb)}')
    for r in range(4):
        e(f'v_mov_b32 {V(ones+r)}, 0x3f803f80')
    e(f'''
    v_and_b32 {V(tmp)}, 3, v0
    v_cmp_eq_u32 {S(sDiag,2)}, 1, {V(tmp)}
    v_cmp_eq_u32 {S(sDiag+2,2)}, 2, {V(tmp)}
    v_cmp_eq_u32 {S(sDiag+4,2)}, 3, {V(tmp)}
    v_bfe_u32 {V(tmp)}, v0, 2, 2
    v_lshrrev_b32 {V(tmp+1)}, 4, v0
    v_cmp_eq_u32 {S(sDiag+6,2)}, {V(tmp)}, {V(tmp+1)}
    ''')

    vT2 = k.v(4)
    e(f's_lshl_b32 {S(sT)}, {S(sCW)}, 12')
    e(f's_sub_u32 {S(sT2)}, 4096, {S(sT)}')
    for q in range(4):
        e(f'v_add_u32 {V(vT2+q)}, {S(sT2)}, {V(vT+q)}')
        e(f'v_add_u32 {V(vT+q)}, {S(sT)}, {V(vT+q)}')
    e(f's_cmp_eq_u32 {S(sTW)}, 0')
    e(f's_cbranch_scc1 L_{name}_nosw')
    k.opt(True)
    for q in range(4):
        e(f'v_swap_b32 {V(vWa+q)}, {V(vWa+4+q)}')
    k.opt(False)
    k.label(f'L_{name}_nosw')

    def reads(ks):
        St, s = ks >> 1, ks & 1
        slot = St % 4
        hi = slot >> 1
        o = []
        b = ks % 2
        for i in range(4):
            va = (vT if i < 2 else vT2) + 2 * s + hi
            o.append(f'ds_read_b128 {V(tf+b*16+i*4,4)}, {V(va)} offset:{(slot&1)*SLOT + (i&1)*2048}')
            off = (slot & 1) * SLOT + s * 4096
            o.append(f'ds_read_b64_tr_b16 {V(wf+b*16+i*4,2)}, {V(vWa+2*i+hi)} offset:{off}')
            o.append(f'ds_read_b64_tr_b16 {V(wf+b*16+i*4+2,2)}, {V(vWa+2*i+hi)} offset:{off+1024}')
        return o

    def statops(ks):
        b = ks % 2
        o = []
        for i in range(2):
            T_, W_ = V(tf + b * 16 + i * 4, 4), V(wf + b * 16 + i * 4, 4)
            for (d, x, y) in ((ssum + 4 * i, V(ones, 4), T_), (ssq + 4 * i, T_, T_), (csum + 4 * i, V(ones, 4), W_)):
                c = '0' if ks == 0 else V(d, 4)
                o.append(f'v_mfma_f32_16x16x32_bf16 {V(d,4)}, {x}, {y}, {c}')
        return o

    def mainloop(orient):
        pend = sum((dma(St) for St in range(pre, 4)), [])
        k.wait_vm(['st0'])
        e('s_barrier')
        if orient == 0:
            stamp()
        for o in reads(0):
            e(o)
        for ks in range(18):
            b = ks % 2
            rd = []
            if ks + 1 < 18:
                if (ks + 1) % 2 == 0:
                    St = (ks + 1) // 2
                    assert not any(x[1] == f'st{St}' for g in pend for x in g)
                    k.wait_vm([f'st{St}'])
                    e('s_waitcnt lgkmcnt(0)')
                    e('s_barrier')
                    if St + 3 < 9:
                        pend += dma(St + 3)
                rd = reads(ks + 1)
            so = statops(ks)
            n = 0
            for i in range(4):
                for j in range(4):
                    a0 = acc + (i * 4 + j) * 4
                    c = '0' if ks == 0 else V(a0, 4)
                    T_, W_ = V(tf + b * 16 + i * 4, 4), V(wf + b * 16 + j * 4, 4)
                    if orient == 0:
                        e(f'v_mfma_f32_16x16x32_bf16 {V(a0,4)}, {W_}, {T_}, {c}')
                    else:
                        e(f'v_mfma_f32_16x16x32_bf16 {V(a0,4)}, {T_}, {W_}, {c}')
                    if rd:
                        e(rd.pop(0))
                    if n >= 10 and so:
                        e(so.pop(0))
                    if n % 2 == 1 and pend:
                        emit_group(pend.pop(0))
                    n += 1
            assert not so and not rd
        assert not pend

    def stats_addr():
        t = tmp
        e(f'''
        v_and_b32 {V(t)}, 15, v0
        v_lshlrev_b32 {V(t)}, 2, {V(t)}
        s_lshl_b32 {S(sT)}, {S(sTW)}, 8
        s_lshl_b32 {S(sT2)}, {S(sCW)}, 7
        s_add_u32 {S(sT)}, {S(sT)}, {S(sT2)}
        s_add_u32 {S(sT)}, {S(sT)}, {STL}
        v_add_u32 {V(adr)}, {S(sT)}, {V(t)}
        s_lshl_b32 {S(sT)}, {S(sCW)}, 8
        s_lshl_b32 {S(sT2)}, {S(sTW)}, 7
        s_add_u32 {S(sT)}, {S(sT)}, {S(sT2)}
        s_add_u32 {S(sT)}, {S(sT)}, {STL+1024}
        v_add_u32 {V(adr+1)}, {S(sT)}, {V(t)}
        ''')

    def stats_finish(store_mean=False):
        ops = [[], []]
        for i in range(2):
            m, v = ssum + 4 * i, ssq + 4 * i
            o = ops[i]
            for r in range(1, 4):
                o.append(f'v_cndmask_b32 {V(v)}, {V(v)}, {V(v+r)}, {S(sDiag+2*(r-1),2)}')
            o.append(f'v_mul_f32 {V(m)}, {F(1.0/576)}, {V(m)}')
            o.append(f'v_mov_b32 {V(m+1)}, {V(m)}')
            o.append(f'v_mul_f32 {V(v)}, {F(1.0/576)}, {V(v)}')
            o.append(f'v_fma_f32 {V(v)}, -{V(m)}, {V(m)}, {V(v)}')
            o.append(f'v_max_f32 {V(v)}, 0, {V(v)}')
            o += bf16_round(m, m) + bf16_round(v, v)
            o.append(f'v_add_f32 {V(v)}, {F(1e-5)}, {V(v)}')
            o += bf16_round(v, v)
            o.append(f'v_sqrt_f32 {V(v)}, {V(v)}')
            o += bf16_round(v, v)
            o.append(f'v_rcp_f32 {V(v)}, {V(v)}')
            o.append(f'v_sub_f32 {V(m)}, 0, {V(m)}')
        e('\n'.join(interleave(ops[0], ops[1])))
        e(f'''
        s_mov_b64 exec, {S(sDiag+6,2)}
        ds_write_b32 {V(adr)}, {V(ssum)}
        ds_write_b32 {V(adr)}, {V(ssum+4)} offset:64
        ds_write_b32 {V(adr)}, {V(ssq)} offset:512
        ds_write_b32 {V(adr)}, {V(ssq+4)} offset:576
        ds_write_b32 {V(adr+1)}, {V(csum)}
        ds_write_b32 {V(adr+1)}, {V(csum+4)} offset:64
        ''')
        if store_mean:
            e(f's_cmp_lg_u32 {S(sN)}, 0')
            e(f's_cbranch_scc1 L_{name}_nomx')
            k.opt(True)
            e(f's_lshl_b32 {S(sT)}, {S(sM)}, 9')
            e(f's_add_u32 {S(sT)}, {S(sT)}, {MX-STL}')
            e(f'buffer_store_dword {V(ssum+1)}, {V(adr)}, {S(srdS,4)}, {S(sT)} offen')
            e(f'buffer_store_dword {V(ssum+5)}, {V(adr)}, {S(srdS,4)}, {S(sT)} offen offset:64')
            k.opt(False)
            k.label(f'L_{name}_nomx')
        e(f'''
        s_mov_b64 exec, -1
        s_waitcnt lgkmcnt(0)
        s_barrier
        ''')

    e(f's_cmp_ge_u32 {S(sC64)}, 18')
    e(f's_cbranch_scc1 L_{name}_v')
    k.save_state()
    t = tmp + 40
    e(f'''
    s_cmp_ge_u32 {S(sC64)}, 9
    s_cselect_b32 {S(sSec)}, 9, 0
    s_cselect_b32 {S(sSt)}, {KF}, {QF}
    s_sub_u32 {S(sSec)}, {S(sC64)}, {S(sSec)}
    s_lshl_b32 {S(sSec)}, {S(sSec)}, 4
    s_lshl_b32 {S(sT)}, {S(sM)}, 3
    s_lshl_b32 {S(sT2)}, {S(sTW)}, 2
    s_add_u32 {S(sT)}, {S(sT)}, {S(sT2)}
    s_add_u32 {S(sT)}, {S(sT)}, 16
    s_mul_i32 {S(sT)}, {S(sT)}, {RQ}
    s_add_u32 {S(sSt)}, {S(sSt)}, {S(sT)}
    v_lshrrev_b32 {V(t)}, 4, v0
    v_add_u32 {V(t)}, {S(sSec)}, {V(t)}
    v_and_b32 {V(t+1)}, 15, v0
    s_lshl_b32 {S(sT)}, {S(sTW)}, 3
    ''')
    for j in range(4):
        e(f'''
        s_xor_b32 {S(sT2)}, {S(sT)}, {4*j}
        v_add_u32 {V(t+2)}, {S(sT2)}, {V(t)}
        v_mul_u32_u24 {V(t+3)}, 7282, {V(t+2)}
        v_lshrrev_b32 {V(t+3)}, 16, {V(t+3)}
        v_mul_u32_u24 {V(t+4)}, 9, {V(t+3)}
        v_sub_u32 {V(t+4)}, {V(t+2)}, {V(t+4)}
        v_cmp_lt_u32 vcc, 4, {V(t+4)}
        v_cmp_eq_u32 {S(sMask+2*j,2)}, 4, {V(t+4)}
        v_mul_u32_u24 {V(t+3)}, {2*HS}, {V(t+3)}
        v_subrev_u32 {V(t+5)}, 5, {V(t+4)}
        v_cndmask_b32 {V(t+4)}, {V(t+4)}, {V(t+5)}, vcc
        v_add_u32 {V(t+5)}, {HS}, {V(t+3)}
        v_cndmask_b32 {V(t+6)}, {V(t+3)}, {V(t+5)}, vcc
        v_lshrrev_b32 {V(t+7)}, 1, {V(t+4)}
        v_lshl_add_u32 {V(t+6)}, {V(t+7)}, 8, {V(t+6)}
        v_and_b32 {V(t+7)}, 1, {V(t+4)}
        v_lshl_add_u32 {V(t+6)}, {V(t+7)}, 3, {V(t+6)}
        v_lshl_add_u32 {V(t+6)}, {V(t+1)}, 4, {V(t+6)}
        v_lshl_add_u32 {V(t+3)}, {V(t+1)}, 2, {V(t+3)}
        v_add_u32 {V(t+3)}, 512, {V(t+3)}
        v_cndmask_b32 {V(t+8+2*j)}, {V(t+6)}, {V(t+3)}, {S(sMask+2*j,2)}
        v_add_u32 {V(t+9+2*j)}, {HS}, {V(t+3)}
        ''')
    stats_addr()
    e(f'''
    v_and_b32 {V(tmp)}, 15, v0
    v_lshlrev_b32 {V(tmp)}, 2, {V(tmp)}
    s_lshl_b32 {S(sT)}, {S(sTW)}, 8
    s_lshl_b32 {S(sT2)}, {S(sCW)}, 7
    s_add_u32 {S(sT)}, {S(sT)}, {STL}
    s_add_u32 {S(sTmpO)}, {S(sT)}, {S(sT2)}
    v_add_u32 {V(adr+2)}, {S(sTmpO)}, {V(tmp)}
    s_sub_u32 {S(sT2)}, 128, {S(sT2)}
    s_add_u32 {S(sTmpO)}, {S(sT)}, {S(sT2)}
    v_add_u32 {V(adr+3)}, {S(sTmpO)}, {V(tmp)}
    v_lshrrev_b32 {V(tmp)}, 4, v0
    v_lshlrev_b32 {V(tmp)}, 4, {V(tmp)}
    s_lshl_b32 {S(sT)}, {S(sCW)}, 8
    s_lshl_b32 {S(sT2)}, {S(sTW)}, 7
    s_add_u32 {S(sT)}, {S(sT)}, {STL+1024}
    s_add_u32 {S(sTmpO)}, {S(sT)}, {S(sT2)}
    v_add_u32 {V(adr+4)}, {S(sTmpO)}, {V(tmp)}
    s_sub_u32 {S(sT2)}, 128, {S(sT2)}
    s_add_u32 {S(sTmpO)}, {S(sT)}, {S(sT2)}
    v_add_u32 {V(adr+5)}, {S(sTmpO)}, {V(tmp)}
    ''')
    mainloop(0)
    stamp()
    aQ = t + 8
    stats_finish(True)
    st = tmp
    for i in range(4):
        va = adr + 2 + (i >> 1)
        e(f'ds_read_b32 {V(st+i)}, {V(va)} offset:{(i&1)*64}')
        e(f'ds_read_b32 {V(st+4+i)}, {V(va)} offset:{512+(i&1)*64}')
    for j in range(4):
        va = adr + 4 + (j >> 1)
        e(f'ds_read_b128 {V(st+8+4*j,4)}, {V(va)} offset:{(j&1)*64}')
    e(f's_cmp_ge_u32 {S(sC64)}, 9')
    e(f's_cselect_b32 {S(sT)}, 1.0, {F(QSCALE)}')
    for i in range(4):
        e(f'v_mul_f32 {V(st+4+i)}, {S(sT)}, {V(st+4+i)}')
    e(f'''
    s_mul_i32 {S(sT)}, {S(sCW)}, {2*RQ}
    s_add_u32 {S(sO0)}, {S(sSt)}, {S(sT)}
    s_sub_u32 {S(sT)}, {2*RQ}, {S(sT)}
    s_add_u32 {S(sO1)}, {S(sSt)}, {S(sT)}
    ''')
    for j in range(4):
        for i in range(4):
            a0 = acc + (i * 4 + j) * 4
            for r in range(4):
                e(f'v_fma_f32 {V(a0+r)}, {V(st+8+4*j+r)}, {V(st+i)}, {V(a0+r)}')
            for r in range(4):
                e(f'v_mul_f32 {V(a0+r)}, {V(a0+r)}, {V(st+4+i)}')
            e(f'v_cvt_pk_bf16_f32 {V(a0)}, {V(a0)}, {V(a0+1)}')
            e(f'v_cvt_pk_bf16_f32 {V(a0+1)}, {V(a0+2)}, {V(a0+3)}')
        e(f's_andn2_b64 exec, -1, {S(sMask+2*j,2)}')
        for i in range(4):
            a0 = acc + (i * 4 + j) * 4
            so_ = sO0 if i < 2 else sO1
            e(f'buffer_store_dwordx2 {V(a0,2)}, {V(aQ+2*j)}, {S(srdS,4)}, {S(so_)} offen offset:{(i&1)*RQ}')
        e(f's_mov_b64 exec, {S(sMask+2*j,2)}')
        e(f's_cbranch_execz L_{name}_ns{j}')
        k.opt(True)
        for i in range(4):
            a0 = acc + (i * 4 + j) * 4
            so_ = sO0 if i < 2 else sO1
            e(f'buffer_store_dword {V(a0)}, {V(aQ+2*j)}, {S(srdS,4)}, {S(so_)} offen offset:{(i&1)*RQ}')
            e(f'buffer_store_dword {V(a0+1)}, {V(aQ+2*j+1)}, {S(srdS,4)}, {S(so_)} offen offset:{(i&1)*RQ}')
        k.opt(False)
        k.label(f'L_{name}_ns{j}')
        e('s_mov_b64 exec, -1')
    if stamps:
        stamp()
        e('s_waitcnt vmcnt(0)')
        stamp()
        emit_stamp_dump(k, e, sStamp, nst, srdW, s_x, sT, sW, tmp, int(stamps) - 1)
    e('s_endpgm')

    k.label(f'L_{name}_v')
    k.reset_state()
    t = tmp + 40
    e(f'''
    s_sub_u32 {S(sSec)}, {S(sC64)}, 18
    s_lshl_b32 {S(sSec)}, {S(sSec)}, 6
    v_and_b32 {V(t)}, 15, v0
    v_add_u32 {V(t)}, {S(sSec)}, {V(t)}
    v_lshrrev_b32 {V(t+1)}, 4, v0
    s_lshl_b32 {S(sT)}, {S(sTW)}, 5
    s_lshl_b32 {S(sSt)}, {S(sM)}, 2
    s_lshl_b32 {S(sT2)}, {S(sTW)}, 1
    s_add_u32 {S(sSt)}, {S(sSt)}, {S(sT2)}
    s_add_u32 {S(sO0)}, {S(sSt)}, {S(sCW)}
    s_sub_u32 {S(sO1)}, 1, {S(sCW)}
    s_add_u32 {S(sO1)}, {S(sO1)}, {S(sSt)}
    ''')
    for j in range(4):
        e(f'''
        s_xor_b32 {S(sT2)}, {S(sT)}, {16*j}
        v_add_u32 {V(t+2)}, {S(sT2)}, {V(t)}
        v_mul_u32_u24 {V(t+3)}, 3641, {V(t+2)}
        v_lshrrev_b32 {V(t+3)}, 16, {V(t+3)}
        v_mul_u32_u24 {V(t+4)}, 18, {V(t+3)}
        v_sub_u32 {V(t+4)}, {V(t+2)}, {V(t+4)}
        v_cmp_lt_u32 vcc, 15, {V(t+4)}
        v_lshlrev_b32 {V(t+3)}, 6, {V(t+3)}
        ''')
        for c in range(2):
            sc = sO0 if c == 0 else sO1
            e(f'''
            v_add_u32 {V(t+5)}, {S(sc)}, {V(t+3)}
            v_lshlrev_b32 {V(t+6)}, 10, {V(t+5)}
            v_lshl_add_u32 {V(t+6)}, {V(t+1)}, 8, {V(t+6)}
            v_lshl_add_u32 {V(t+6)}, {V(t+4)}, 4, {V(t+6)}
            v_add_u32 {V(t+6)}, {VF}, {V(t+6)}
            v_mul_u32_u24 {V(t+7)}, {RV}, {V(t+5)}
            v_lshl_add_u32 {V(t+7)}, {V(t+1)}, 5, {V(t+7)}
            v_lshl_add_u32 {V(t+7)}, {V(t+4)}, 4, {V(t+7)}
            v_add_u32 {V(t+7)}, {VT-256}, {V(t+7)}
            v_cndmask_b32 {V(t+8+2*j+c)}, {V(t+6)}, {V(t+7)}, vcc
            ''')
    stats_addr()
    e(f'''
    v_lshrrev_b32 {V(tmp)}, 4, v0
    v_lshlrev_b32 {V(tmp)}, 4, {V(tmp)}
    s_lshl_b32 {S(sT)}, {S(sTW)}, 8
    s_lshl_b32 {S(sT2)}, {S(sCW)}, 7
    s_add_u32 {S(sT)}, {S(sT)}, {STL}
    s_add_u32 {S(sTmpO)}, {S(sT)}, {S(sT2)}
    v_add_u32 {V(adr+2)}, {S(sTmpO)}, {V(tmp)}
    s_sub_u32 {S(sT2)}, 128, {S(sT2)}
    s_add_u32 {S(sTmpO)}, {S(sT)}, {S(sT2)}
    v_add_u32 {V(adr+3)}, {S(sTmpO)}, {V(tmp)}
    v_and_b32 {V(tmp)}, 15, v0
    v_lshlrev_b32 {V(tmp)}, 2, {V(tmp)}
    s_lshl_b32 {S(sT)}, {S(sCW)}, 8
    s_lshl_b32 {S(sT2)}, {S(sTW)}, 7
    s_add_u32 {S(sT)}, {S(sT)}, {STL+1024}
    s_add_u32 {S(sTmpO)}, {S(sT)}, {S(sT2)}
    v_add_u32 {V(adr+4)}, {S(sTmpO)}, {V(tmp)}
    s_sub_u32 {S(sT2)}, 128, {S(sT2)}
    s_add_u32 {S(sTmpO)}, {S(sT)}, {S(sT2)}
    v_add_u32 {V(adr+5)}, {S(sTmpO)}, {V(tmp)}
    ''')
    mainloop(1)
    aV = t + 8
    stats_finish()
    e(f's_cmp_ge_u32 {S(sC64)}, 27')
    e(f's_cbranch_scc1 L_{name}_x')
    st = tmp
    for i in range(4):
        va = adr + 2 + (i >> 1)
        e(f'ds_read_b128 {V(st+4*i,4)}, {V(va)} offset:{(i&1)*64}')
        e(f'ds_read_b128 {V(st+16+4*i,4)}, {V(va)} offset:{512+(i&1)*64}')
    for j in range(4):
        va = adr + 4 + (j >> 1)
        e(f'ds_read_b32 {V(st+32+j)}, {V(va)} offset:{(j&1)*64}')
    for j in range(4):
        for c in range(2):
            pk = wf + (j * 2 + c) * 4
            for hf in range(2):
                i = 2 * c + hf
                a0 = acc + (i * 4 + j) * 4
                for r in range(4):
                    e(f'v_fma_f32 {V(a0+r)}, {V(st+32+j)}, {V(st+4*i+r)}, {V(a0+r)}')
                for r in range(4):
                    e(f'v_mul_f32 {V(a0+r)}, {V(a0+r)}, {V(st+16+4*i+r)}')
                e(f'v_cvt_pk_bf16_f32 {V(pk+2*hf)}, {V(a0)}, {V(a0+1)}')
                e(f'v_cvt_pk_bf16_f32 {V(pk+2*hf+1)}, {V(a0+2)}, {V(a0+3)}')
            e(f'buffer_store_dwordx4 {V(pk,4)}, {V(aV+2*j+c)}, {S(srdS,4)}, 0 offen')
    k.label(f'L_{name}_x')
    e('s_endpgm')
    k.label(f'L_{name}_pf')
    k.clear_state()
    e(f'''
    s_load_dwordx2 {S(s_x,2)}, s[0:1], {KA_WO}
    s_load_dwordx2 {S(s_ws,2)}, s[0:1], {KA_WS}
    s_sub_u32 {S(sT)}, s2, 224
    s_lshl_b32 {S(sT)}, {S(sT)}, 2
    s_add_u32 {S(sT)}, {S(sT)}, {S(sW)}
    v_lshrrev_b32 v1, 3, v0
    v_mul_u32_u24 v2, 1152, v1
    v_and_b32 v3, 7, v0
    v_lshl_add_u32 v2, v3, 4, v2
    s_mul_i32 {S(sT2)}, {S(sT)}, {8*1152}
    s_mov_b32 {S(sOne)}, {16*RQ + 576}
    s_waitcnt lgkmcnt(0)
    s_mov_b32 {S(srdX)}, {S(s_x)}
    s_mov_b32 {S(srdX+1)}, {S(s_x+1)}
    s_mov_b32 {S(srdX+2)}, {576*1152}
    s_mov_b32 {S(srdX+3)}, 0x00020000
    s_mov_b32 {S(srdS)}, {S(s_ws)}
    s_mov_b32 {S(srdS+1)}, {S(s_ws+1)}
    s_mov_b32 {S(srdS+2)}, {WS_USED}
    s_mov_b32 {S(srdS+3)}, 0x00020000
    ''')
    for i in range(9):
        e(f'buffer_load_dwordx4 {V(16+4*i,4)}, v2, {S(srdX,4)}, {S(sT2)} offen offset:{i*128}')
    e(f'''
    v_mov_b32 v60, 0
    v_mov_b32 v61, 0
    v_mov_b32 v62, 0
    v_mov_b32 v63, 0
    v_mov_b32 v64, 0x3f803f80
    v_mov_b32 v65, 0x3f803f80
    v_mov_b32 v66, 0x3f803f80
    v_mov_b32 v67, 0x3f803f80
    s_sub_u32 {S(sM)}, s2, 224
    s_and_b32 {S(sN)}, {S(sM)}, 7
    s_lshr_b32 {S(sM)}, {S(sM)}, 3
    s_lshl_b32 {S(sM)}, {S(sM)}, 2
    s_add_u32 {S(sM)}, {S(sM)}, {S(sW)}
    s_lshl_b32 {S(sC64)}, {S(sM)}, 6
    v_add_u32 v56, {S(sC64)}, v0
    v_lshrrev_b32 v57, 4, v56
    v_and_b32 v58, 15, v56
    s_lshl_b32 {S(sC64)}, {S(sN)}, 4
    v_add_u32 v58, {S(sC64)}, v58
    v_mul_u32_u24 v57, {HS}, v57
    v_mul_u32_u24 v58, {RQ}, v58
    v_add3_u32 v57, v57, v58, {S(sOne)}
    buffer_store_dwordx4 v[60:63], v57, {S(srdS,4)}, 0 offen
    v_lshrrev_b32 v58, 3, v56
    v_lshlrev_b32 v58, 6, v58
    v_and_b32 v59, 7, v56
    s_lshl_b32 {S(sC64)}, {S(sN)}, 3
    v_add3_u32 v58, v58, v59, {S(sC64)}
    v_mul_u32_u24 v58, {RV}, v58
    v_add_u32 v58, {VT + 128}, v58
    s_cmp_ge_u32 {S(sM)}, 4
    s_cbranch_scc1 L_{name}_nov
    ''')
    k.opt(True)
    e(f'buffer_store_dwordx4 v[64:67], v58, {S(srdS,4)}, 0 offen')
    k.opt(False)
    k.label(f'L_{name}_nov')
    e(f'''
    s_sub_u32 {S(sM)}, s2, 224
    s_mul_i32 {S(sM)}, {S(sM)}, {HS}
    s_add_u32 {S(sM)}, {S(sM)}, {KF}
    s_lshl_b32 {S(sN)}, {S(sW)}, 6
    v_add_u32 v56, {S(sN)}, v0
    v_mov_b32 v69, 0
    v_mov_b32 v70, 0
    v_mov_b32 v71, 0
    v_mov_b32 v73, 0
    v_mov_b32 v74, 0
    v_mov_b32 v75, 0
    v_mov_b32 v77, 0
    v_mov_b32 v78, 0
    v_mov_b32 v79, 0
    v_mov_b32 v59, 0xff7f
    ''')
    for i in range(3):
        e(f'''
        v_mul_u32_u24 v57, 1772, v56
        v_lshrrev_b32 v57, 16, v57
        v_mul_u32_u24 v57, 37, v57
        v_sub_u32 v57, v56, v57
        v_cmp_eq_u32 vcc, 36, v57
        v_cndmask_b32 {V(68+4*i)}, 0, v59, vcc
        v_lshlrev_b32 {V(80+i)}, 4, v56
        v_cmp_gt_u32 vcc, 0x250, v56
        s_and_saveexec_b64 {S(sMask+2,2)}, vcc
        s_cbranch_execz L_{name}_dk{i}
        ''')
        k.opt(True)
        e(f'buffer_store_dwordx4 {V(68+4*i,4)}, {V(80+i)}, {S(srdS,4)}, {S(sM)} offen')
        k.opt(False)
        k.label(f'L_{name}_dk{i}')
        e('s_mov_b64 exec, -1')
        e('v_add_u32 v56, 256, v56')
    e(f's_cmp_ge_u32 {S(sT)}, 72')
    e(f's_cbranch_scc1 L_{name}_x')
    e(f'''
    s_lshl_b32 {S(sT)}, {S(sT)}, 3
    v_add_u32 v1, {S(sT)}, v1
    v_lshrrev_b32 v4, 5, v1
    v_lshlrev_b32 v5, 6, v4
    v_bfe_u32 v4, v1, 2, 2
    v_lshl_add_u32 v5, v4, 4, v5
    v_bfe_u32 v4, v1, 4, 1
    v_lshl_add_u32 v5, v4, 3, v5
    v_and_b32 v4, 3, v1
    v_lshl_add_u32 v5, v4, 1, v5
    v_add_u32 v5, {WB}, v5
    v_mov_b32 v6, 0
    v_mov_b32 v7, 0
    v_cmp_eq_u32 {S(sMask,2)}, 0, v3
    ''')
    for i in range(36):
        e(f'v_lshlrev_b32 v8, 16, {V(16+i)}')
        e(f'v_and_b32 v9, 0xffff0000, {V(16+i)}')
        e(f'v_add_f32 v6, v6, v8')
        e(f'v_add_f32 v7, v7, v9')
    e(f'''
    v_add_f32 v6, v6, v7
    v_add_f32_dpp v7, v6, v6 quad_perm:[1,0,3,2] row_mask:0xf bank_mask:0xf
    v_add_f32_dpp v6, v7, v7 quad_perm:[2,3,0,1] row_mask:0xf bank_mask:0xf
    v_add_f32_dpp v7, v6, v6 row_half_mirror row_mask:0xf bank_mask:0xf
    v_mul_f32 v7, {F(1.0/576)}, v7
    v_cvt_pk_bf16_f32 v8, v7, v7
    v_lshlrev_b32 v9, 16, v8
    v_sub_f32 v7, v7, v9
    v_cvt_pk_bf16_f32 v9, v7, v7
    s_mov_b64 exec, {S(sMask,2)}
    buffer_store_short v8, v5, {S(srdS,4)}, 0 offen
    buffer_store_short v9, v5, {S(srdS,4)}, 0 offen offset:1152
    s_endpgm
    ''')
    return k
```
